```python
import torch

def _softmax(x, axis=-1):
    return torch.softmax(x, dim=axis)
def _gelu(x):
    return torch.nn.functional.gelu(x, approximate="tanh")
def _silu(x):
    return torch.nn.functional.silu(x)
def _sigmoid(x):
    return torch.sigmoid(x)
def _layernorm(x, axis=-1, eps=1e-5):
    m = x.mean(dim=axis, keepdim=True)
    v = x.var(dim=axis, keepdim=True, unbiased=False)
    return (x - m) / torch.sqrt(v + eps)
def _scatter_add(tgt, idx, src, axis=0):
    return tgt.clone().index_add_(axis, idx, src)
def _segment_sum(src, seg, n):
    out = torch.zeros((n,) + src.shape[1:], dtype=src.dtype)
    return out.index_add_(0, seg, src)
def _pad(x, pw):
    flat = tuple(v for pair in reversed(pw) for v in pair)
    return torch.nn.functional.pad(x, flat)

kernel_name = 'recurrent_scan__softmax_full_mha__glu_gated_glu__prompt'

def setup_inputs():

    _w = (lambda a: (lambda t: t.to(torch.bfloat16) if t.is_floating_point() else t)(torch.as_tensor(a)))
    def _A_setup():
        B, S, D = 1, 2048, 1024
        return {
            "x": _w((lambda *s: torch.randn(*s, dtype=torch.bfloat16) * 0.05)(B, S, D)),
            "wqkv": _w((lambda *s: torch.randn(*s, dtype=torch.bfloat16) * 0.05)(D, 3 * D)),
            "wo": _w((lambda *s: torch.randn(*s, dtype=torch.bfloat16) * 0.05)(D, D)),
        }
    _A_in = _A_setup()

    def _B_setup():
        B, S, D, F = 1, 2048, 1024, 3584
        return {
            "x": _w((lambda *s: torch.randn(*s, dtype=torch.bfloat16) * 0.05)(B, S, D)),
            "w_gate": _w((lambda *s: torch.randn(*s, dtype=torch.bfloat16) * 0.05)(D, F)),
            "w_up": _w((lambda *s: torch.randn(*s, dtype=torch.bfloat16) * 0.05)(D, F)),
            "w_down": _w((lambda *s: torch.randn(*s, dtype=torch.bfloat16) * 0.05)(F, D)),
        }
    _B_in = _B_setup()

    return {
        "A_x": _A_in["x"],
        "A_wqkv": _A_in["wqkv"],
        "A_wo": _A_in["wo"],
        "B_x": _B_in["x"],
        "B_w_gate": _B_in["w_gate"],
        "B_w_up": _B_in["w_up"],
        "B_w_down": _B_in["w_down"],
    }

def reference(A_x, A_wqkv, A_wo, B_x, B_w_gate, B_w_up, B_w_down):
    def _A_ref(x, wqkv, wo):
        B, S, D = x.shape
        H = 32; Dh = D // H
        qkv = (lambda x, *d: x.permute(*d))((x @ wqkv).reshape(B, S, 3, H, Dh), 2, 0, 3, 1, 4)
        q, k, v = qkv[0], qkv[1], qkv[2]
        scale = Dh ** -0.5
        scores = torch.einsum("bhqd,bhkd->bhqk", q, k) * scale
        p = _softmax(scores, axis=-1)
        o = torch.einsum("bhqk,bhkd->bhqd", p, v)
        return (lambda x, *d: x.permute(*d))(o, 0, 2, 1, 3).reshape(B, S, D) @ wo

    def _B_ref(x, w_gate, w_up, w_down):
        g = torch.einsum("bsd,df->bsf", x, w_gate)
        u = torch.einsum("bsd,df->bsf", x, w_up)
        h = _sigmoid(g) * u
        return torch.einsum("bsf,fd->bsd", h, w_down)

    x = A_x
    xn = _layernorm(x, axis=-1)
    s = _A_ref(xn, A_wqkv, A_wo)
    g = _silu(_B_ref(xn, B_w_gate, B_w_up, B_w_down))
    return x + s * g
```

```python
import re

class Ins:
    __slots__ = ("text", "kind", "tag")
    def __init__(self, text, kind="", tag=None):
        self.text = text; self.kind = kind; self.tag = tag

def vr(base, n=1, f="v"):
    if isinstance(base, tuple):
        f, base = base
    return f"{f}{base}" if n == 1 else f"{f}[{base}:{base+n-1}]"

def sr(base, n=1):
    return f"s{base}" if n == 1 else f"s[{base}:{base+n-1}]"

class Prog:
    def __init__(self):
        self.ins = []
        self.vmq = []
        self.lgq = []
    def emit(self, text, kind=""):
        for line in text.strip("\n").split("\n"):
            line = line.strip()
            if not line: continue
            self.ins.append(Ins(line, kind))
    def __call__(self, text):
        self.emit(text)
    def label(self, name):
        self.ins.append(Ins(name + ":", "label"))
    def vmem(self, text, tag=None):
        self.ins.append(Ins(text, "vmem", tag)); self.vmq.append(tag)
        assert len(self.vmq) <= 63, "too many vmem outstanding"
    def lds(self, text, tag=None):
        self.ins.append(Ins(text, "lds", tag)); self.lgq.append(tag)
    def _cnt(self, q, tags):
        idx = -1
        for i, t in enumerate(q):
            if t in tags: idx = i
        if idx < 0: return None
        return len(q) - 1 - idx
    def wait(self, vm=(), lg=(), force=False):
        if not isinstance(vm, (list, tuple, set)): vm = [vm]
        if not isinstance(lg, (list, tuple, set)): lg = [lg]
        nv = self._cnt(self.vmq, vm) if vm else None
        nl = self._cnt(self.lgq, lg) if lg else None
        parts = []
        if nv is not None:
            parts.append(f"vmcnt({nv})"); self.vmq = self.vmq[len(self.vmq)-nv:] if nv else []
        if nl is not None:
            n = min(nl, 15)
            parts.append(f"lgkmcnt({n})"); self.lgq = self.lgq[len(self.lgq)-n:] if n else []
        if parts:
            self.ins.append(Ins("s_waitcnt " + " ".join(parts), "wait"))
            return True
        if force:
            self.ins.append(Ins("s_nop 0", "nop"))
        return False
    def wait_all(self, vm=True, lg=True):
        parts = []
        if vm: parts.append("vmcnt(0)"); self.vmq = []
        if lg: parts.append("lgkmcnt(0)"); self.lgq = []
        self.ins.append(Ins("s_waitcnt " + " ".join(parts), "wait"))
    def mark(self):
        return len(self.ins)
    def text(self, a=0, b=None):
        out = []
        for i in self.ins[a:b]:
            out.append(i.text if i.kind == "label" or i.text.startswith(".") else "    " + i.text)
        return "\n".join(out)

_reg_re = re.compile(r"\b([vas])(\d+)\b|\b([vas])\[(\d+):(\d+)\]")
def regs_of(op):
    s = set()
    for m in _reg_re.finditer(op):
        if m.group(1):
            s.add((m.group(1), int(m.group(2))))
        else:
            for i in range(int(m.group(4)), int(m.group(5)) + 1):
                s.add((m.group(3), i))
    if re.search(r"\bvcc\b", op): s.add(("s", "vcc"))
    if re.search(r"\bexec\b", op): s.add(("s", "exec"))
    if re.search(r"\bm0\b", op): s.add(("s", "m0"))
    return s

TRANS = ("v_exp_f32", "v_log_f32", "v_rcp_f32", "v_rsq_f32", "v_sqrt_f32", "v_sin_f32", "v_cos_f32")
def parse(text):
    t = text.split(";")[0].strip()
    if not t or t.endswith(":") or t.startswith("."):
        return None
    parts = t.split(None, 1)
    op = parts[0]
    args = [a.strip() for a in parts[1].split(",")] if len(parts) > 1 else []
    d = dict(op=op, defs=set(), uses=set(), cls="other", ws=1, passes=0, srcC=set(), srcAB=set())
    base = re.sub(r"_(e32|e64|sdwa|dpp)$", "", op)
    if op == "s_nop":
        d["ws"] = int(args[0], 0) + 1; d["cls"] = "nop"; return d
    if op.startswith("v_mfma"):
        d["cls"] = "mfma"
        d["defs"] = regs_of(args[0]); d["srcAB"] = regs_of(args[1]) | regs_of(args[2]); d["srcC"] = regs_of(args[3])
        d["uses"] = d["srcAB"] | d["srcC"]
        d["passes"] = 8 if "32x32" in op else (4 if "16x16" in op else 2)
        return d
    if op.startswith("v_"):
        d["cls"] = "trans" if base in TRANS else "valu"
        if op.startswith("v_cmp"):
            d["defs"] = regs_of(args[0]);
            for a in args[1:]: d["uses"] |= regs_of(a)
            if op.startswith("v_cmpx"): d["defs"].add(("s", "exec"))
        elif op.startswith("v_permlane") and "swap" in op:
            d["defs"] = regs_of(args[0]) | regs_of(args[1]); d["uses"] = set(d["defs"]); d["perm"] = True
        elif base in ("v_add_co_u32", "v_addc_co_u32", "v_sub_co_u32"):
            d["defs"] = regs_of(args[0]) | regs_of(args[1])
            for a in args[2:]: d["uses"] |= regs_of(a)
        else:
            d["defs"] = regs_of(args[0])
            for a in args[1:]: d["uses"] |= regs_of(a)
            if base in ("v_fmac_f32", "v_pk_fmac_f16", "v_dot2c_f32_bf16", "v_writelane_b32"): d["uses"] |= d["defs"]
            if "dst_unused:UNUSED_PRESERVE" in t: d["uses"] |= d["defs"]
        if "dpp" in op or "row_" in t or "quad_perm" in t: d["dpp"] = True
        if base in ("v_readfirstlane_b32", "v_readlane_b32"): d["rdlane"] = True
        return d
    if op.startswith("ds_"):
        d["cls"] = "lds"
        if op.startswith("ds_read") or op.startswith("ds_bpermute") or op.startswith("ds_swizzle"):
            d["defs"] = regs_of(args[0])
            for a in args[1:]: d["uses"] |= regs_of(a.split(" ")[0])
        else:
            for a in args: d["uses"] |= regs_of(a.split(" ")[0])
        return d
    if op.startswith("buffer_") or op.startswith("global_"):
        d["cls"] = "vmem"
        lds = t.rstrip().endswith(" lds") or " lds " in t
        if "load" in op and not lds:
            d["defs"] = regs_of(args[0])
            for a in args[1:]: d["uses"] |= regs_of(a.split(" ")[0])
        elif "load" in op and lds:
            for a in args: d["uses"] |= regs_of(a.split(" ")[0])
            d["uses"].add(("s", "m0")); d["ldsdma"] = True
        else:
            for a in args: d["uses"] |= regs_of(a.split(" ")[0])
            if "x4" in op or "x3" in op: d["wide_store"] = regs_of(args[0]) if op.startswith("buffer_") else regs_of(args[1])
        return d
    if op.startswith("s_"):
        d["cls"] = "salu"
        if op.startswith(("s_cmp", "s_cbranch", "s_branch", "s_waitcnt", "s_barrier", "s_endpgm", "s_setprio", "s_sleep")):
            for a in args: d["uses"] |= regs_of(a)
        else:
            if args:
                d["defs"] = regs_of(args[0])
                for a in args[1:]: d["uses"] |= regs_of(a)
            if "saveexec" in op: d["defs"].add(("s", "exec"))
        return d
    return d

def check_hazards(lines, name=""):
    ps = [(l, parse(l)) for l in lines]
    ps = [(l, p) for l, p in ps if p]
    errs = []
    n = len(ps)
    for i, (li, p) in enumerate(ps):
        dist = 0
        j = i - 1
        while j >= 0 and dist < 24:
            lj, q = ps[j]
            need = 0
            isvalu_p = p["cls"] in ("valu", "trans")
            isvalu_q = q["cls"] in ("valu", "trans")
            vdefs = {r for r in q["defs"] if r[0] in "va"}
            sdefs = {r for r in q["defs"] if r[0] == "s"}
            if isvalu_q and p["cls"] == "mfma" and (vdefs & p["uses"]): need = max(need, 2)
            if isvalu_q and p["cls"] == "mfma" and ("s", "exec") in sdefs: need = max(need, 4)
            if q["cls"] == "mfma":
                ps_ = q["passes"]
                tbl = {2: 5, 4: 8, 8: 12}
                tblC = {2: 4, 4: 6, 8: 10}
                if p["cls"] == "mfma":
                    if q["defs"] & p["srcAB"]: need = max(need, tbl[ps_])
                    if q["defs"] & p["srcC"]:
                        if q["defs"] == p["srcC"] and q["passes"] == p["passes"]:
                            need = max(need, 2 if ps_ == 2 else 0)
                        else: need = max(need, tblC[ps_])
                    elif q["defs"] & p["defs"]:
                        need = max(need, tblC[ps_])
                elif isvalu_p or p["cls"] in ("lds", "vmem"):
                    if q["defs"] & (p["uses"] | p["defs"]): need = max(need, tbl[ps_])
                if isvalu_p and (q["srcC"] & p["defs"]): need = max(need, {2: 1, 4: 3, 8: 7}[ps_])
            if q["cls"] == "trans" and p["cls"] == "valu" and (vdefs & p["uses"]): need = max(need, 1)
            if q["cls"] == "trans" and p["cls"] in ("lds", "vmem", "mfma") and (vdefs & p["uses"]): need = max(need, 1)
            if isvalu_q and p.get("perm") and (vdefs & p["uses"]): need = max(need, 2)
            if isvalu_q and p.get("dpp") and (vdefs & p["uses"]): need = max(need, 2)
            if isvalu_q and p.get("dpp") and ("s", "exec") in sdefs: need = max(need, 5)
            if isvalu_q and p.get("rdlane") and (vdefs & p["uses"]): need = max(need, 1)
            if isvalu_q and p["cls"] == "vmem" and (sdefs & p["uses"]): need = max(need, 5)
            if isvalu_q and isvalu_p and (sdefs & p["uses"]): need = max(need, 2)
            if isvalu_q and p["cls"] == "salu" and (sdefs & p["uses"]): need = max(need, 1)
            if q["cls"] == "salu" and ("s", "m0") in sdefs and p.get("ldsdma"): need = max(need, 1)
            if q.get("wide_store") and (q["wide_store"] & p["defs"]): need = max(need, 2 if isvalu_p else 1)
            if need > dist:
                errs.append(f"[{name}] hazard need {need} have {dist}:\n    {lj}\n    {li}")
            dist += q["ws"]
            j -= 1
    return errs

def kd(name, vgpr, sgpr, accum, ids_y=False):
    return f""".amdhsa_kernel {name}
  .amdhsa_next_free_vgpr {vgpr}
  .amdhsa_next_free_sgpr {sgpr}
  .amdhsa_accum_offset {accum}
  .amdhsa_group_segment_fixed_size 0
  .amdhsa_kernarg_size 80
  .amdhsa_user_sgpr_count 2
  .amdhsa_user_sgpr_kernarg_segment_ptr 1
  .amdhsa_system_sgpr_workgroup_id_x 1
  .amdhsa_float_denorm_mode_32 3
  .amdhsa_float_denorm_mode_16_64 3
.end_amdhsa_kernel
"""
```

```python
import sys, importlib
from common import *
def assemble(kernels, path):
    hdr = open("recurrent_scan__softmax_full_mha__glu_gated_glu__prompt.s.ref").read().split("\n")
    hdr = [l for l in hdr if l.startswith(";") and "@launch" not in l and "Override" not in l and "grid=ceil" not in l]
    out = list(hdr)
    for k in kernels: out.append(k["launch"])
    out.append('.amdgcn_target "amdgcn-amd-amdhsa--gfx950"')
    out.append(".text")
    nerr = 0
    for k in kernels:
        for lin in (k.get("lins") or [k["lin"]]):
            errs = check_hazards(lin, k["name"])
            seen = set()
            for e in errs:
                if e not in seen:
                    print(e); seen.add(e); nerr += 1
        out.append(kernel_text(k["name"], k["prog"]))
    out.append("L_all_end:\n    s_endpgm")
    out.append('.section .rodata,"a"')
    for k in kernels:
        out.append(".p2align 6")
        out.append(k["kd"])
    open(path, "w").write("\n".join(out))
    print("hazard errors:", nerr, " bytes:", len("\n".join(out)))
    return nerr
```

```python
from asmlib import *
MB = 1 << 20
XN_OFF = 0
QF_OFF = 4 * MB
KV_OFF = 8 * MB
HF_OFF = 16 * MB
OF_OFF = 32 * MB
YG_OFF = 36 * MB
S = 2048; D = 1024; F = 3584
KA_X, KA_WQKV, KA_WO, KA_BX, KA_WG, KA_WU, KA_WD, KA_OUT, KA_DBG, KA_WS = [8 * i for i in range(10)]

def srd(p, d, ptr, off, size):
    if off == 0:
        p(f"s_mov_b32 s{d}, s{ptr}")
        p(f"s_and_b32 s{d+1}, s{ptr+1}, 0xffff")
    else:
        o = off if isinstance(off, str) else hex(off)
        p(f"s_add_u32 s{d}, s{ptr}, {o}")
        p(f"s_addc_u32 s{d+1}, s{ptr+1}, 0")
        p(f"s_and_b32 s{d+1}, s{d+1}, 0xffff")
    sz = size if isinstance(size, str) else hex(size)
    p(f"s_mov_b32 s{d+2}, {sz}")
    p(f"s_mov_b32 s{d+3}, 0x20000")

def kernel_text(name, p):
    return f".p2align 8\n.globl {name}\n.type {name},@function\n{name}:\n" + p.text() + "\n"

def csel(p, d, a, b):
    p(f"s_mov_b32 {d}, {hex(b)}")
    p(f"s_cmov_b32 {d}, {hex(a)}")

import os
STAMP = os.environ.get("STAMP", "0") == "1"
DBG_OFF = 64 * MB
def stamp(p, idx, base=80):
    if not STAMP: return
    p(f"s_memtime s[{base+2*idx}:{base+2*idx+1}]")
def stamp_rt(p, idx, base=80):
    if not STAMP: return
    p(f"s_memrealtime s[{base+2*idx}:{base+2*idx+1}]")
def stamp_out(p, n, kidx, wsptr, wave_sgpr, nwaves=4, base=80, tmp=72):
    if not STAMP: return
    p("s_waitcnt vmcnt(0) lgkmcnt(0)")
    srd(p, tmp, wsptr, DBG_OFF + kidx * MB, MB)
    p(f"s_mul_i32 s{tmp+4}, s2, {nwaves}")
    p(f"s_add_u32 s{tmp+4}, s{tmp+4}, {wave_sgpr}")
    p(f"s_lshl_b32 s{tmp+4}, s{tmp+4}, 6")
    p("v_mov_b32 v1, 0")
    for i in range(n):
        p(f"v_mov_b32 v2, s{base+2*i}")
        p(f"buffer_store_dword v2, v1, s[{tmp}:{tmp+3}], s{tmp+4} offen offset:{4*i}")
    p("s_waitcnt vmcnt(0)")
```

```python
from common import *

class GStream:
    def __init__(self, p, acc, wfr, hbase, RH, vdma, vrd, vlin, s_h, s_w, srd_h, srd_w, s_m0, pfx="g"):
        self.__dict__.update(locals())
    def accr(self, mb, nb): return f"a[{self.acc+16*(2*mb+nb)}:{self.acc+16*(2*mb+nb)+15}]"
    def hreg(self, k, mb):
        b = self.hbase + 16 * (k % self.RH) + 4 * mb
        return f"v[{b}:{b+3}]"
    def wreg(self, k, nb, e=None):
        b = self.wfr + 8 * (k & 1) + 4 * nb
        if e is None: return f"a[{b}:{b+3}]"
        return f"a[{b+2*e}:{b+2*e+1}]"
    def mfmas(self, k, first=False):
        out = []
        for mb in range(4):
            for nb in ((0, 1) if mb % 2 == 0 else (1, 0)):
                c = "0" if first else self.accr(mb, nb)
                out.append(f"v_mfma_f32_32x32x16_bf16 {self.accr(mb, nb)}, {self.wreg(k, nb)}, {self.hreg(k, mb)}, {c}")
        return out
    def h_loads(self, k):
        p = self.p
        ops = [lambda mb=mb: p.vmem(f"buffer_load_dwordx4 {self.hreg(k, mb)}, v{self.vlin}, s[{self.srd_h}:{self.srd_h+3}], {self.s_h} offen offset:{1024*mb}", f"{self.pfx}h{k}")
               for mb in range(4)]
        ops.append(lambda: p(f"s_add_u32 {self.s_h}, {self.s_h}, 0x1000"))
        return ops
    def w_dma(self, fg, slot_in_pair):
        p = self.p
        ops = [lambda: p(f"s_add_u32 m0, {self.s_m0}, {slot_in_pair*4096}")]
        ops += [lambda i=i: p.vmem(f"buffer_load_dwordx4 v{self.vdma+i}, s[{self.srd_w}:{self.srd_w+3}], {self.s_w} offen offset:{1024*i} lds", f"{self.pfx}w{fg}")
                for i in range(4)]
        ops.append(lambda: p(f"s_add_u32 {self.s_w}, {self.s_w}, 0x10000"))
        return ops
    def w_reads(self, k, slot_off):
        p = self.p
        s = k & 1
        return [lambda nb=nb, e=e: p.lds(f"ds_read_b64_tr_b16 {self.wreg(k, nb, e)}, v{self.vrd+nb} offset:{slot_off + e*2048 + s*1024}", f"{self.pfx}f{k}")
                for nb in range(2) for e in range(2)]
    def setup_addrs(self, lane, s_ldsbase, t0):
        p = self.p
        a, b, c = t0, t0 + 1, t0 + 2
        p(f"v_lshrrev_b32 v{a}, 3, v{lane}")
        p(f"v_bfe_u32 v{b}, v{lane}, 4, 1")
        p(f"v_lshlrev_b32 v{b}, 2, v{b}")
        p(f"v_and_b32 v{c}, 7, v{lane}")
        p(f"v_xor_b32 v{b}, v{b}, v{c}")
        p(f"v_lshlrev_b32 v{b}, 4, v{b}")
        p(f"v_lshl_add_u32 v{self.vdma}, v{a}, 11, v{b}")
        for i in range(1, 4):
            p(f"v_add_u32 v{self.vdma+i}, {hex(i*(16384-1024))}, v{self.vdma}")
        p(f"v_lshrrev_b32 v{a}, 5, v{lane}")
        p(f"v_lshlrev_b32 v{a}, 9, v{a}")
        p(f"v_bfe_u32 v{b}, v{lane}, 2, 2")
        p(f"v_lshl_add_u32 v{a}, v{b}, 7, v{a}")
        p(f"v_bfe_u32 v{c}, v{lane}, 4, 1")
        p(f"v_lshl_add_u32 v{a}, v{c}, 5, v{a}")
        p(f"v_and_b32 v{c}, 3, v{lane}")
        p(f"v_lshl_add_u32 v{a}, v{c}, 3, v{a}")
        p(f"v_add_u32 v{a}, {s_ldsbase}, v{a}")
        p(f"v_lshrrev_b32 v{b}, 1, v{b}")
        p(f"v_lshl_add_u32 v{self.vrd}, v{b}, 6, v{a}")
        p(f"v_xor_b32 v{b}, 1, v{b}")
        p(f"v_lshl_add_u32 v{self.vrd+1}, v{b}, 6, v{a}")

def fill(p, mf, valu, extra):
    caps = []
    for i, (t, d) in enumerate(mf):
        c = d - 8 - 4 * max(0, len(extra.get(i, [])) - 1)
        caps.append(max(c, 0))
    tot_c = sum(caps); tot_v = sum(c for _, c in valu)
    vi = 0; cum_c = 0; cum_v = 0
    for i, (t, d) in enumerate(mf):
        p(t)
        for fn in extra.get(i, []): fn()
        cum_c += caps[i]
        target = tot_v * cum_c / max(tot_c, 1)
        while vi < len(valu) and (cum_v + valu[vi][1] / 2 <= target or i == len(mf) - 1):
            p(valu[vi][0]); cum_v += valu[vi][1]; vi += 1
```

```python
from common import *

def gen_k0(name="ln_kernel"):
    p = Prog()
    p("s_cmp_ge_u32 s2, 256")
    p("s_cbranch_scc1 L_k0_end")
    p(f"s_load_dwordx2 s[4:5], s[0:1], {KA_X}")
    p(f"s_load_dwordx2 s[6:7], s[0:1], {KA_WS}")
    p("v_and_b32 v1, 7, v0")
    p("v_lshrrev_b32 v2, 3, v0")
    p("s_lshl_b32 s3, s2, 14")
    p("v_lshlrev_b32 v3, 11, v1")
    p("v_lshl_add_u32 v3, v2, 4, v3")
    p("s_waitcnt lgkmcnt(0)")
    srd(p, 8, 4, 0, S * D * 2)
    srd(p, 12, 6, XN_OFF, S * D * 2)
    for i in range(4):
        p.vmem(f"buffer_load_dwordx4 v[{8+4*i}:{11+4*i}], v3, s[8:11], s3 offen offset:{512*i}", "x")
    p("s_lshr_b32 s16, s2, 5")
    p("s_lshl_b32 s16, s16, 19")
    p("s_lshr_b32 s17, s2, 1")
    p("s_and_b32 s17, s17, 15")
    p("s_lshl_b32 s17, s17, 10")
    p("s_add_u32 s16, s16, s17")
    p("s_and_b32 s17, s2, 1")
    p("s_lshl_b32 s17, s17, 7")
    p("s_add_u32 s16, s16, s17")
    p("s_add_u32 s17, s16, 0x20000")
    p("s_add_u32 s18, s16, 0x40000")
    p("s_add_u32 s19, s16, 0x60000")
    p("v_lshrrev_b32 v4, 2, v2")
    p("v_lshlrev_b32 v4, 14, v4")
    p("v_and_b32 v5, 3, v2")
    p("v_lshl_add_u32 v4, v5, 8, v4")
    p("v_lshl_add_u32 v4, v1, 4, v4")
    p("v_mul_u32_u24 v6, 80, v1")
    p("v_lshrrev_b32 v5, 4, v0")
    p("v_lshl_add_u32 v5, v5, 2, v6")
    p("s_mov_b32 s20, 0xffff0000")
    X = 32
    for i in range(4):
        p.wait(vm="x") if i == 0 else None
    for k in range(16):
        p(f"v_lshlrev_b32 v{X+2*k}, 16, v{8+k}")
        p(f"v_and_b32 v{X+2*k+1}, s20, v{8+k}")
    def reduce(src_regs, lds_off, dst):
        t = [24, 25, 26, 27]
        for a in range(4):
            p(f"v_add_f32 v{t[a]}, v{src_regs[a]}, v{src_regs[a+4]}")
        for k in range(8, len(src_regs)):
            p(f"v_add_f32 v{t[k%4]}, v{t[k%4]}, v{src_regs[k]}")
        p("v_add_f32 v24, v24, v25")
        p("v_add_f32 v26, v26, v27")
        p("v_add_f32 v24, v24, v26")
        p("s_nop 1")
        p("v_add_f32_dpp v24, v24, v24 row_ror:8 row_mask:0xf bank_mask:0xf")
        p.lds(f"ds_write_b32 v5, v24 offset:{lds_off}", "w")
        p.wait(lg="w")
        p("s_barrier")
        for j in range(4):
            p.lds(f"ds_read_b128 v[{8+4*j}:{11+4*j}], v6 offset:{lds_off+16*j}", "r")
        p.wait(lg="r")
        for j in range(8):
            p(f"v_add_f32 v{8+j}, v{8+j}, v{16+j}")
        for j in range(4):
            p(f"v_add_f32 v{8+j}, v{8+j}, v{12+j}")
        p("v_add_f32 v8, v8, v9")
        p("v_add_f32 v10, v10, v11")
        p(f"v_add_f32 v{dst}, v8, v10")
    reduce(list(range(X, X+32)), 0, 28)
    p("v_mul_f32 v28, 0x3a800000, v28")
    for k in range(32):
        p(f"v_sub_f32 v{64+k}, v{X+k}, v28")
    for k in range(32):
        p(f"v_mul_f32 v{64+k}, v{64+k}, v{64+k}")
    reduce(list(range(64, 96)), 1024, 29)
    p("v_mul_f32 v29, 0x3a800000, v29")
    p("v_cvt_pk_bf16_f32 v30, v28, v29")
    p("v_lshlrev_b32 v28, 16, v30")
    p("v_and_b32 v29, s20, v30")
    p("v_add_f32 v29, 0x3727c5ac, v29")
    p("v_cvt_pk_bf16_f32 v30, v29, v29")
    p("v_and_b32 v29, s20, v30")
    p("v_sqrt_f32 v29, v29")
    p("s_nop 0")
    p("v_cvt_pk_bf16_f32 v30, v29, v29")
    p("v_and_b32 v29, s20, v30")
    p("v_rcp_f32 v29, v29")
    for k in range(32):
        p(f"v_sub_f32 v{X+k}, v{X+k}, v28")
    for k in range(16):
        p(f"v_cvt_pk_bf16_f32 v{64+k}, v{X+2*k}, v{X+2*k+1}")
    for k in range(16):
        p(f"v_lshlrev_b32 v{X+2*k}, 16, v{64+k}")
        p(f"v_and_b32 v{X+2*k+1}, s20, v{64+k}")
    for k in range(32):
        p(f"v_mul_f32 v{X+k}, v{X+k}, v29")
    for i in range(4):
        for k in range(4):
            kk = 4 * i + k
            p(f"v_cvt_pk_bf16_f32 v{8+kk}, v{X+2*kk}, v{X+2*kk+1}")
        p.vmem(f"buffer_store_dwordx4 v[{8+4*i}:{11+4*i}], v4, s[12:15], s{16+i} offen", "st")
    p.label("L_k0_end")
    p("s_endpgm")
    launch = f"; @launch kernel={name} grid=(256,1,1) block=(256,1,1) lds=2048"
    return dict(name=name, prog=p, launch=launch, kd=kd(name, 96, 32, 96), lin=[i.text for i in p.ins])
```

```python
from common import *
import math, struct

def f2u(x):
    return struct.unpack("<I", struct.pack("<f", x))[0]

def acc(mb, nb):
    if nb < 4:
        return ("v", 48 + 4 * (mb * 4 + nb))
    if nb < 8:
        if mb < 5:
            return ("v", 48 + 128 + 4 * (mb * 4 + nb - 4))
        return ("a", 144 + 4 * ((mb - 5) * 4 + nb - 4))
    return ("a", 144 + 48 + 4 * (mb * 2 + nb - 8))

def fragA(st, mb): return ("a", 72 * st + 4 * mb)
def fragB(st, nb): return ("a", 72 * st + 32 + 4 * nb)

def dma_ops(p, stage, tag):
    ops = []
    ops.append(lambda: p(f"s_add_u32 m0, s40, {stage*16384}"))
    for i in range(4):
        ops.append(lambda i=i: p.vmem(f"buffer_load_dwordx4 v1, s[12:15], s36 offen offset:{1024*i} lds", tag))
    for u in range(5):
        srdn = [16, 16, 20, 20, 24][u]
        voff = "v2" if u < 4 else "v3"
        soff = "s37" if u < 4 else "s38"
        io = 128 if u in (1, 3) else 0
        ops.append(lambda u=u, io=io: p(f"s_add_u32 m0, s41, {u*16384 + stage*4096 - io}"))
        ops.append(lambda srdn=srdn, voff=voff, soff=soff, io=io: p.vmem(
            f"buffer_load_dwordx4 {voff}, s[{srdn}:{srdn+3}], {soff} offen offset:{io} lds", tag))
    ops.append(lambda: p("s_add_u32 s36, s36, 0x4000"))
    ops.append(lambda: p("s_add_u32 s37, s37, s39"))
    ops.append(lambda: p(f"s_add_u32 s38, s38, {32*6144}"))
    return ops

def read_ops(p, stage, st, tag):
    ops = []
    ra = [lambda mb=mb: p.lds(f"ds_read_b128 {vr(fragA(st, mb), 4)}, v4 offset:{stage*16384 + mb*1024}", tag) for mb in range(8)]
    rb = []
    for nb in range(10):
        for e in range(2):
            f, b = fragB(st, nb)
            if nb < 8:
                a = 5 + (nb & 3); off = stage * 4096 + e * 512 + (nb >> 2) * 32768
            else:
                a = 9 + (nb - 8); off = stage * 4096 + e * 512
            rb.append(lambda b=b, e=e, a=a, off=off: p.lds(f"ds_read_b64_tr_b16 a[{b+2*e}:{b+2*e+1}], v{a} offset:{off}", tag))
    out = []
    ia = ib = 0
    while ia < len(ra) or ib < len(rb):
        if ia < len(ra): out.append(ra[ia]); ia += 1
        for _ in range(3 if ia > 4 else 2):
            if ib < len(rb): out.append(rb[ib]); ib += 1
    return out

def merge_ops(a, b):
    out = []
    na, nb = len(a), len(b)
    ia = ib = 0
    while ia < na or ib < nb:
        if ib >= nb or (ia < na and ia * nb <= ib * na):
            out.append(a[ia]); ia += 1
        else:
            out.append(b[ib]); ib += 1
    return out

def iteration(p, t, isV, NK=32, loopctl=None):
    st = t & 1
    stage = t & 3
    slots = {}
    def add(k, fn): slots.setdefault(k, []).append(fn)
    if t + 1 < NK:
        add(0, lambda: p.wait(vm=f"d{t+1}", force=True))
        add(1, lambda: p("s_barrier"))
        rd = read_ops(p, (t + 1) & 3, 1 - st, f"f{t+1}")
        dm = dma_ops(p, stage, f"d{t+4}") if t + 4 < NK else []
        ops = merge_ops(rd, dm)
        k0, k1 = 2, 66
        for i, o in enumerate(ops):
            add(k0 + (i * (k1 - k0)) // max(len(ops), 1), o)
    if loopctl:
        add(76, lambda: p("s_sub_u32 s42, s42, 1"))
        add(77, lambda: p("s_cmp_lg_u32 s42, 0"))
    k = 0
    for mb in range(8):
        order = range(10) if mb % 2 == 0 else range(9, -1, -1)
        for nb in order:
            d = vr(acc(mb, nb), 4)
            xa = vr(fragA(st, mb), 4); wb = vr(fragB(st, nb), 4)
            if isV and nb < 8:
                p(f"v_mfma_f32_16x16x32_bf16 {d}, {xa}, {wb}, {d}")
            else:
                p(f"v_mfma_f32_16x16x32_bf16 {d}, {wb}, {xa}, {d}")
            for fn in slots.get(k, []): fn()
            k += 1
    if t + 1 < NK:
        p.wait(lg=f"f{t+1}")
    if loopctl:
        p(f"s_cbranch_scc1 {loopctl}")

def get4(p, tile, tmp):
    f, b = tile
    if f == "v": return b
    for i in range(4):
        p(f"v_accvgpr_read_b32 v{tmp+i}, a{b+i}")
    return tmp

def epi_qk(p):
    for mb in range(8):
        T = 16 + 16 * (mb & 1)
        a = get4(p, acc(mb, 8), T)
        b = get4(p, acc(mb, 9), T + 4)
        for i in range(0, 8, 2):
            p(f"v_pk_mul_f32 v[{T+i}:{T+i+1}], v[{T+i}:{T+i+1}], s[56:57]")
        for i in range(4):
            p(f"v_cvt_pk_bf16_f32 v{T+8+i}, v{T+2*i}, v{T+2*i+1}")
        p.vmem(f"buffer_store_dwordx4 v[{T+8}:{T+11}], v{13+(mb&1)}, s[32:35], s{52+(mb>>1)} offen", "st")

def epi_f(p):
    n = 0
    for mb in range(8):
        for pr in range(2):
            T = 16 + 16 * (n & 1); n += 1
            g0 = acc(mb, 2 * pr)[1]; g1 = acc(mb, 2 * pr + 1)[1]
            assert g1 == g0 + 4
            for i in range(0, 8, 2):
                p(f"v_pk_mul_f32 v[{g0+i}:{g0+i+1}], v[{g0+i}:{g0+i+1}], s[58:59]")
            u0 = get4(p, acc(mb, 4 + 2 * pr), T)
            u1 = get4(p, acc(mb, 5 + 2 * pr), T + 4)
            assert u1 == u0 + 4
            for i in range(8):
                p(f"v_exp_f32 v{g0+i}, v{g0+i}")
            for i in range(0, 8, 2):
                p(f"v_pk_add_f32 v[{g0+i}:{g0+i+1}], v[{g0+i}:{g0+i+1}], 1.0 op_sel_hi:[1,0]")
            for i in range(8):
                p(f"v_rcp_f32 v{g0+i}, v{g0+i}")
            for i in range(0, 8, 2):
                p(f"v_pk_mul_f32 v[{g0+i}:{g0+i+1}], v[{g0+i}:{g0+i+1}], v[{u0+i}:{u0+i+1}]")
            for i in range(4):
                p(f"v_cvt_pk_bf16_f32 v{T+8+i}, v{g0+2*i}, v{g0+2*i+1}")
            so = "0" if pr == 0 else "s50"
            p.vmem(f"buffer_store_dwordx4 v[{T+8}:{T+11}], v12, s[28:31], {so} offen offset:{(mb>>1)*1024 + (mb&1)*256}", "st")

def epi_v(p):
    n = 0
    for j in range(4):
        for nb in range(8):
            T = 16 + 16 * (n & 1); n += 1
            a = get4(p, acc(2 * j, nb), T)
            b = get4(p, acc(2 * j + 1, nb), T + 4)
            hd = (nb >> 2) * 4 + ((nb & 3) >> 1)
            p(f"s_mov_b32 s51, {hex(hd * 262144 + j * 4096)}")
            p(f"v_cvt_pk_bf16_f32 v{T+8}, v{a}, v{a+1}")
            p(f"v_cvt_pk_bf16_f32 v{T+9}, v{a+2}, v{a+3}")
            p(f"v_cvt_pk_bf16_f32 v{T+10}, v{b}, v{b+1}")
            p(f"v_cvt_pk_bf16_f32 v{T+11}, v{b+2}, v{b+3}")
            p.vmem(f"buffer_store_dwordx4 v[{T+8}:{T+11}], v12, s[28:31], s51 offen offset:{(nb&1)*256}", "st")
            if len(p.vmq) > 40:
                p.vmq = p.vmq[-20:]

def gen_k1(name="gemm1_kernel"):
    p = Prog()
    p("s_cmp_ge_u32 s2, 256")
    p("s_cbranch_scc1 L_k1_end")
    stamp(p, 0); stamp_rt(p, 1)
    p(f"s_load_dwordx2 s[4:5], s[0:1], {KA_WS}")
    p(f"s_load_dwordx2 s[6:7], s[0:1], {KA_WQKV}")
    p(f"s_load_dwordx4 s[8:11], s[0:1], {KA_WG}")
    p("v_lshrrev_b32 v11, 6, v0")
    p("v_and_b32 v0, 63, v0")
    p("v_readfirstlane_b32 s45, v11")
    p("s_and_b32 s44, s2, 7")
    p("s_lshl_b32 s44, s44, 2")
    p("s_lshr_b32 s43, s2, 3")
    p("s_lshr_b32 s3, s43, 3")
    p("s_add_u32 s44, s44, s3")
    p("s_and_b32 s43, s43, 7")
    p("s_lshr_b32 s46, s45, 1")
    p("s_and_b32 s47, s45, 1")
    p("s_cmp_ge_u32 s44, 28")
    p("s_cselect_b32 s48, 1, 0")
    csel(p, "s60", 6144, 7168)
    p("s_lshl_b32 s39, s60, 5")
    p("s_lshl_b32 s40, s45, 12")
    p("v_lshlrev_b32 v1, 4, v0")
    p("v_add_u32 v1, s40, v1")
    p("s_lshl_b32 s41, s45, 10")
    p("s_add_u32 s41, s41, 0x10000")
    p("v_lshrrev_b32 v11, 3, v0")
    p("s_lshl_b32 s3, s45, 3")
    p("v_add_u32 v11, s3, v11")
    p("v_bfe_u32 v12, v0, 4, 1")
    p("s_and_b32 s3, s45, 1")
    p("s_lshl_b32 s3, s3, 1")
    p("v_or_b32 v12, s3, v12")
    p("v_lshlrev_b32 v12, 1, v12")
    p("v_and_b32 v13, 7, v0")
    p("v_xor_b32 v12, v12, v13")
    p("v_lshlrev_b32 v12, 4, v12")
    p("v_mul_lo_u32 v2, v11, s60")
    p("v_add_u32 v2, v2, v12")
    p("v_mul_u32_u24 v3, 6144, v11")
    p("v_add_u32 v3, v3, v12")
    p("s_waitcnt lgkmcnt(0)")
    stamp(p, 8)
    p("s_lshl_b32 s3, s43, 19")
    if XN_OFF: p(f"s_add_u32 s3, s3, {hex(XN_OFF)}")
    srd(p, 12, 4, "s3", 524288)
    p("s_lshl_b32 s61, s44, 8")
    p("s_lshl_b32 s62, s44, 9")
    p(f"s_sub_u32 s62, s62, {28*512 - 4096}")
    p("s_add_u32 s63, s62, 256")
    p("s_cmp_eq_u32 s48, 1")
    p("s_cselect_b32 s64, s62, s61")
    p("s_cselect_b32 s65, s63, s61")
    p("s_cselect_b32 s66, s6, s8")
    p("s_cselect_b32 s67, s7, s9")
    p("s_cselect_b32 s68, s6, s10")
    p("s_cselect_b32 s69, s7, s11")
    csel(p, "s70", D*3*D*2, D*F*2)
    p("s_sub_u32 s71, s70, s64")
    srd(p, 16, 66, "s64", "s71")
    p("s_sub_u32 s71, s70, s65")
    srd(p, 20, 68, "s65", "s71")
    p("s_lshl_b32 s61, s44, 7")
    p(f"s_sub_u32 s71, {hex(D*3*D*2)}, s61")
    srd(p, 24, 6, "s61", "s71")
    p("s_mov_b32 s36, 0")
    p("s_mov_b32 s37, 0")
    p("s_mov_b32 s38, 0")
    for t in range(4):
        for i, o in enumerate(dma_ops(p, t, f"d{t}")):
            n0 = len(p.ins)
            o()
            if "m0" in p.ins[-1].text and p.ins[-1].text.startswith("s_add"):
                p("s_nop 0")
        if t == 0: stamp(p, 9)
    stamp(p, 7)
    p("v_lshlrev_b32 v4, 4, v0")
    p("s_lshl_b32 s3, s46, 13")
    p("v_add_u32 v4, s3, v4")
    p("v_lshrrev_b32 v11, 4, v0")
    p("v_bfe_u32 v12, v0, 2, 2")
    p("v_and_b32 v13, 3, v0")
    p("v_lshlrev_b32 v14, 10, v11")
    p("v_lshl_add_u32 v14, v12, 7, v14")
    p("v_lshl_add_u32 v14, v13, 3, v14")
    p("v_lshrrev_b32 v15, 1, v12")
    p("v_and_b32 v16, 1, v11")
    p("v_lshl_or_b32 v15, v16, 1, v15")
    p("s_lshl_b32 s3, s47, 14")
    p("s_add_u32 s3, s3, 0x10000")
    for nb in range(4):
        p(f"v_xor_b32 v16, {nb}, v15")
        p(f"v_lshl_add_u32 v16, v16, 5, v14")
        p(f"v_add_u32 v{5+nb}, s3, v16")
    p("s_lshl_b32 s3, s47, 1")
    for i in range(2):
        p(f"s_add_u32 s61, s3, {i}")
        p(f"v_xor_b32 v16, s61, v15")
        p(f"v_lshl_add_u32 v16, v16, 5, v14")
        p(f"v_add_u32 v{9+i}, 0x20000, v16")
    p("v_and_b32 v16, 15, v0")
    p("v_lshrrev_b32 v17, 1, v11")
    p("v_and_b32 v18, 1, v11")
    p("v_lshlrev_b32 v19, 9, v18")
    p("s_cmp_eq_u32 s48, 1")
    p("s_cselect_b32 s61, 10, 12")
    p("v_lshlrev_b32 v12, s61, v17")
    p("v_add_u32 v12, v12, v19")
    p("v_lshl_add_u32 v12, v16, 4, v12")
    p("v_lshl_add_u32 v19, v17, 10, v19")
    p("v_lshrrev_b32 v17, 3, v16")
    p("v_and_b32 v18, 7, v16")
    p("v_lshl_add_u32 v17, v17, 4, v18")
    p("s_cmp_lt_u32 s44, 16")
    p("s_cselect_b64 vcc, -1, 0")
    csel(p, "s61", 256, 128)
    csel(p, "s62", 2048, 4096)
    p(f"s_cselect_b32 s56, {hex(f2u(32**-0.5 * math.log2(math.e)))}, 1.0")
    p("s_mov_b32 s57, s56")
    csel(p, "s63", QF_OFF, KV_OFF)
    p("s_cselect_b32 s64, 17, 18")
    p("v_cndmask_b32 v17, v17, v16, vcc")
    p("v_lshl_add_u32 v13, v17, 4, v19")
    p("v_add_u32 v14, s61, v13")
    p("s_mov_b32 s52, 0")
    p("s_mov_b32 s53, s62")
    p("s_lshl_b32 s54, s62, 1")
    p("s_add_u32 s55, s54, s62")
    p("s_and_b32 s65, s44, 15")
    p("s_lshl_b32 s65, s65, 1")
    p("s_add_u32 s65, s65, s47")
    p("s_lshl_b32 s65, s65, s64")
    p("s_add_u32 s63, s63, s65")
    p("s_lshl_b32 s65, s43, 3")
    p("s_lshl_b32 s66, s46, 2")
    p("s_add_u32 s65, s65, s66")
    p("s_mul_i32 s66, s65, s62")
    p("s_add_u32 s63, s63, s66")
    p("s_lshl_b32 s67, s62, 2")
    srd(p, 32, 4, "s63", "s67")
    p("s_lshl_b32 s66, s43, 1")
    p("s_add_u32 s66, s66, s46")
    p("s_mul_i32 s66, s66, 917504")
    p("s_lshl_b32 s67, s44, 1")
    p("s_add_u32 s67, s67, s47")
    p("s_lshl_b32 s67, s67, 14")
    p("s_add_u32 s66, s66, s67")
    p(f"s_add_u32 s66, s66, {hex(HF_OFF)}")
    p("s_sub_u32 s67, s44, 28")
    p("s_lshl_b32 s67, s67, 2")
    p("s_add_u32 s67, s67, s47")
    p("s_lshl_b32 s67, s67, 19")
    p("s_lshl_b32 s68, s65, 12")
    p("s_add_u32 s67, s67, s68")
    p(f"s_add_u32 s67, s67, {hex(KV_OFF + 2048)}")
    p("s_cmp_eq_u32 s48, 1")
    p("s_cselect_b32 s66, s67, s66")
    csel(p, "s67", 5*262144 + 4*4096 - 2048, 0x4000)
    srd(p, 28, 4, "s66", "s67")
    p("s_mov_b32 s50, 0x2000")
    p(f"s_mov_b32 s58, {hex(f2u(-math.log2(math.e)))}")
    p("s_mov_b32 s59, s58")
    for i in range(48, 256): p(f"v_mov_b32 v{i}, 0")
    for i in range(144, 256): p(f"v_accvgpr_write_b32 a{i}, 0")
    stamp(p, 2)
    p.wait(vm="d0")
    p("s_barrier")
    stamp(p, 3)
    for o in read_ops(p, 0, 0, "f0"): o()
    p("s_mov_b32 s42, 7")
    p("s_cmp_eq_u32 s48, 1")
    p.wait(lg="f0")
    p("s_cbranch_scc1 L_k1_v")
    head = p.mark()
    lin_all = []
    out_text = []
    final = Prog()
    final.ins = list(p.ins)
    for isV in (False, True):
        q = Prog(); q.vmq = list(p.vmq); q.lgq = list(p.lgq)
        sfx = "v" if isV else "f"
        marks = []
        for t in range(32):
            if t % 4 == 0: marks.append(q.mark())
            iteration(q, t, isV, loopctl=(f"L_k1_loop_{sfx}" if (t % 4 == 3 and t < 28) else None))
        marks.append(q.mark())
        bodies = [[i.text for i in q.ins[marks[i]:marks[i+1]]] for i in range(8)]
        for i in range(1, 7):
            assert bodies[i] == bodies[0], f"loop body {i} differs"
        stamp(q, 4)
        q("s_nop 7")
        q.vmq = []
        if isV:
            epi_v(q)
        else:
            epi_f(q)
        q.vmq = []
        epi_qk(q)
        stamp(q, 5)
        if STAMP: q("s_waitcnt vmcnt(0)")
        stamp(q, 6); stamp_rt(q, 10)
        stamp_out(q, 11, 1, 4, "s45")
        q("s_endpgm")
        lin_all.append([i.text for i in p.ins] + [i.text for i in q.ins])
        if isV:
            final.label("L_k1_v")
        final.ins.append(Ins(".p2align 6", "dir"))
        final.label(f"L_k1_loop_{sfx}")
        final.ins += q.ins[marks[0]:marks[1]]
        final.ins += q.ins[marks[7]:]
    final.label("L_k1_end")
    final("s_endpgm")
    launch = f"; @launch kernel={name} grid=(256,1,1) block=(256,1,1) lds=147456"
    return dict(name=name, prog=final, launch=launch, kd=kd(name, 512, 102, 256), lins=lin_all)
```

```python
from common import *
from gstream import *
import math, struct
def f2u(x): return struct.unpack("<I", struct.pack("<f", x))[0]

SA, SB, CA, CB, PA, PB, QR, SEL = 16, 32, 48, 64, 80, 88, 96, 112
OA, OB, LA, LB, KB, VB = 0, 16, 32, 36, 40, 56
S_ = [SA, SB]; C_ = [CA, CB]; P_ = [PA, PB]; O_ = [OA, OB]; L_ = [LA, LB]
def Kf(j, f): b = KB + 8 * (j & 1) + 4 * f; return f"a[{b}:{b+3}]"
def Vf(j, f): b = VB + 8 * (j & 1) + 4 * f; return f"a[{b}:{b+3}]"
def Qf(blk, f): b = QR + 8 * blk + 4 * f; return f"v[{b}:{b+3}]"
def r16(b, f="v"): return f"{f}[{b}:{b+15}]"

def qk(blk, j, c=None):
    c = c or r16(C_[blk])
    return [(f"v_mfma_f32_32x32x16_bf16 {r16(S_[blk])}, {Kf(j,0)}, {Qf(blk,0)}, {c}", 32),
            (f"v_mfma_f32_32x32x16_bf16 {r16(S_[blk])}, {Kf(j,1)}, {Qf(blk,1)}, {r16(S_[blk])}", 32)]
def pv(blk, j):
    o = r16(O_[blk], "a"); P = P_[blk]; l = f"a[{L_[blk]}:{L_[blk]+3}]"
    return [(f"v_mfma_f32_32x32x16_bf16 {o}, {Vf(j,0)}, v[{P}:{P+3}], {o}", 32),
            (f"v_mfma_f32_16x16x32_bf16 {l}, v[{SEL}:{SEL+3}], v[{P}:{P+3}], {l}", 16),
            (f"v_mfma_f32_32x32x16_bf16 {o}, {Vf(j,1)}, v[{P+4}:{P+7}], {o}", 32),
            (f"v_mfma_f32_16x16x32_bf16 {l}, v[{SEL}:{SEL+3}], v[{P+4}:{P+7}], {l}", 16)]
def softmax_valu(blk):
    S = S_[blk]; P = P_[blk]
    e = [(f"v_exp_f32 v{S+i}, v{S+i}", 8) for i in range(16)]
    c = [(f"v_cvt_pk_bf16_f32 v{P+k}, v{S+2*k}, v{S+2*k+1}", 4) for k in range(8)]
    out = []
    for i in range(16):
        out.append(e[i])
        if i >= 2 and i % 2 == 0: out.append(c[(i - 2) // 2])
    out = out[:-2] + [e[15], c[6], c[7]]
    return out

def gen_k2(name="attn_kernel", fused=False):
    p = Prog()
    p("s_cmp_ge_u32 s2, 256")
    p("s_cbranch_scc1 L_k2_end")
    stamp(p, 0); stamp_rt(p, 1)
    p(f"s_load_dwordx2 s[4:5], s[0:1], {KA_WS}")
    p("v_lshrrev_b32 v2, 6, v0")
    p("v_and_b32 v0, 63, v0")
    p("v_readfirstlane_b32 s45, v2")
    p("v_lshlrev_b32 v1, 4, v0")
    p("s_and_b32 s44, s2, 7")
    p("s_lshl_b32 s44, s44, 2")
    p("s_lshr_b32 s43, s2, 3")
    p("s_lshr_b32 s3, s43, 3")
    p("s_add_u32 s44, s44, s3")
    p("s_and_b32 s43, s43, 7")
    p("s_waitcnt lgkmcnt(0)")
    p("s_lshl_b32 s3, s44, 18")
    p(f"s_add_u32 s3, s3, {hex(KV_OFF)}")
    srd(p, 12, 4, "s3", 262144)
    p("s_lshl_b32 s3, s44, 17")
    p("s_lshl_b32 s6, s43, 14")
    p("s_add_u32 s3, s3, s6")
    p("s_lshl_b32 s6, s45, 12")
    p("s_add_u32 s3, s3, s6")
    p(f"s_add_u32 s3, s3, {hex(QF_OFF)}")
    srd(p, 16, 4, "s3", 4096)
    p("s_lshl_b32 s36, s45, 12")
    p("s_mov_b32 s37, s36")
    def kv_dma(c):
        ops = [lambda: p("s_mov_b32 m0, s37")]
        ops += [lambda i=i: p.vmem(f"buffer_load_dwordx4 v1, s[12:15], s36 offen offset:{1024*i} lds", f"kv{c}") for i in range(4)]
        ops.append(lambda: p("s_add_u32 s36, s36, 0x4000"))
        ops.append(lambda: p("s_add_u32 s37, s37, 0x4000"))
        ops.append(lambda: p("s_and_b32 s37, s37, 0xffff"))
        return ops
    def run_ops(ops):
        for o in ops:
            o()
            if "m0," in p.ins[-1].text: p("s_nop 0")
    run_ops(kv_dma(0))
    for i in range(4):
        p.vmem(f"buffer_load_dwordx4 v[{QR+4*i}:{QR+4*i+3}], v1, s[16:19], 0 offen offset:{1024*i}", "q")
    run_ops(kv_dma(1))
    run_ops(kv_dma(2))
    p("s_lshl_b32 s3, s43, 1")
    p("s_lshr_b32 s6, s45, 1")
    p("s_add_u32 s3, s3, s6")
    p("s_lshl_b32 s3, s3, 18")
    p("s_lshl_b32 s6, s44, 13")
    p("s_add_u32 s3, s3, s6")
    p("s_and_b32 s6, s45, 1")
    p("s_lshl_b32 s6, s6, 11")
    p("s_add_u32 s3, s3, s6")
    p(f"s_add_u32 s3, s3, {hex(OF_OFF)}")
    srd(p, 20, 4, "s3", 4096 + 2048)
    p("s_mov_b32 s50, 0x1000")
    p("v_lshrrev_b32 v2, 2, v0")
    p("v_lshrrev_b32 v3, 4, v0")
    p("v_xor_b32 v2, v2, v3")
    p("v_and_b32 v2, 1, v2")
    p("v_and_b32 v3, 3, v0")
    p("v_or_b32 v2, v2, v3")
    p("v_cmp_eq_u32 vcc, 0, v2")
    p("v_mov_b32 v3, 0x3f803f80")
    p("s_nop 0")
    p(f"v_cndmask_b32 v{SEL}, 0, v3, vcc")
    for i in range(1, 4): p(f"v_mov_b32 v{SEL+i}, v{SEL}")
    for i in range(0, 40): p(f"v_accvgpr_write_b32 a{i}, 0")
    for i in range(8): p(f"v_accvgpr_write_b32 a{VB+8+i}, 0")
    for i in range(8): p(f"v_mov_b32 v{PB+i}, 0")
    p("v_mov_b32 v4, v1")
    p("v_add_u32 v5, 0x4000, v1")
    p("s_mov_b32 s38, 0x4000")
    p.wait(vm=["kv0", "q"])
    p("s_barrier")
    stamp(p, 2)
    for f in range(2):
        p.lds(f"ds_read_b128 {Kf(0,f)}, v4 offset:{1024*f}", "k0")
    p.wait(lg="k0")
    for blk in range(2):
        for t, _ in qk(blk, 0, "0"): p(t)
    p("s_nop 15")
    for blk in range(2):
        S = S_[blk]
        p(f"v_max3_f32 v6, v{S}, v{S+1}, v{S+2}")
        for i in range(3, 15, 2):
            p(f"v_max3_f32 v6, v6, v{S+i}, v{S+i+1}")
        p(f"v_max_f32 v6, v6, v{S+15}")
        p("v_mov_b32 v7, v6")
        p("s_nop 1")
        p("v_permlane32_swap_b32 v6, v7")
        p("s_nop 1")
        p("v_max_f32 v6, v6, v7")
        for i in range(16):
            p(f"v_sub_f32 v{C_[blk]+i}, 0, v6")
    p("s_nop 1")
    for t, _ in qk(0, 0): p(t)
    p("s_mov_b32 s42, 16")
    p("s_nop 15")
    stamp(p, 3)
    pre = p.mark()
    marks = []
    NC = 16
    for c in range(NC):
        marks.append(p.mark())
        for i in range(4):
            j = 4 * c + i
            mf = qk(1, j) + pv(1, j - 1)
            ex = {}
            kaddr, koff = ("v4", (i + 1) * 4096) if i < 3 else ("v5", 0)
            rdV = [lambda f=f: p.lds(f"ds_read_b128 {Vf(j,f)}, v4 offset:{i*4096 + 2048 + 1024*f}", f"v{j}") for f in range(2)]
            rdK = [lambda f=f: p.lds(f"ds_read_b128 {Kf(j+1,f)}, {kaddr} offset:{koff + 1024*f}", f"k{j+1}") for f in range(2)]
            ex = {0: [rdK[0]], 1: [rdK[1]], 2: [rdV[0]], 3: [rdV[1]], 5: [lambda: p.wait(lg=[f"k{j+1}"])]}
            fill(p, mf, softmax_valu(0), ex)
            mf = qk(0, j + 1) + pv(0, j)
            ex = {}
            va = softmax_valu(1)
            wv = lambda: p.wait(lg=[f"v{j}"])
            ex = {1: [wv]}
            if i == 3:
                d = kv_dma(c + 3)
                ex = {0: [d[0]], 1: [wv, d[1]], 2: [d[2]], 3: [d[3]], 4: [d[4], d[5]], 5: [d[6], d[7]]}
                va = [("v_mov_b32 v4, v5", 4)] + va
            if i == 0:
                ex[0] = [lambda: p("s_sub_u32 s42, s42, 1")]
            if i == 2:
                ex[3] = [lambda: p.wait(vm=f"kv{c+1}", force=True)]
                ex[4] = [lambda: p("s_barrier")]
            fill(p, mf, va, ex)
            if i == 3:
                p("s_add_u32 s38, s38, 0x4000")
                p("s_and_b32 s38, s38, 0xffff")
                p("s_cmp_lg_u32 s42, 0")
                p("v_add_u32 v5, s38, v1")
                p("s_cbranch_scc1 L_k2_loop")
    marks.append(p.mark())
    bodies = [[x.text for x in p.ins[marks[i]:marks[i+1]]] for i in range(NC)]
    for i in range(1, NC):
        assert bodies[i] == bodies[0], (i, [ (a,b) for a,b in zip(bodies[i], bodies[0]) if a != b][:5])
    stamp(p, 4)
    for t, _ in pv(1, 63): p(t)
    p("s_nop 15")
    p.label("L_k2_norm")
    p(f"v_accvgpr_read_b32 v6, a{LA}")
    p(f"v_accvgpr_read_b32 v7, a{LB}")
    p("v_max_f32 v8, v6, v7")
    p("v_min_f32 v9, v6, v7")
    p(f"v_mov_b32 v10, {hex(f2u(2.0**30))}")
    p(f"v_mov_b32 v11, {hex(f2u(2.0**-20))}")
    p("v_cmp_nlt_f32 vcc, v6, v10")
    p("v_cmp_nlt_f32 s[6:7], v7, v10")
    p("v_cmp_ngt_f32 s[8:9], v9, v11")
    p("s_nop 1")
    p("s_or_b64 vcc, vcc, s[6:7]")
    p("s_or_b64 vcc, vcc, s[8:9]")
    p("s_cbranch_vccnz L_k2_fallback")
    p.label("L_k2_out")
    p(f"v_accvgpr_read_b32 v6, a{LA}")
    p(f"v_accvgpr_read_b32 v7, a{LB}")
    p("v_rcp_f32 v6, v6")
    p("v_rcp_f32 v7, v7")
    p.vmq = []
    for blk in range(2):
        T = S_[blk]
        for i in range(16):
            p(f"v_accvgpr_read_b32 v{T+i}, a{O_[blk]+i}")
        for i in range(16):
            p(f"v_mul_f32 v{T+i}, v{T+i}, v{6+blk}")
        for s in range(2):
            P = P_[blk] + 4 * s
            p(f"v_cvt_pk_bf16_f32 v{P}, v{T+4*s}, v{T+4*s+1}")
            p(f"v_cvt_pk_bf16_f32 v{P+1}, v{T+4*s+2}, v{T+4*s+3}")
            p(f"v_cvt_pk_bf16_f32 v{P+2}, v{T+4*s+8}, v{T+4*s+9}")
            p(f"v_cvt_pk_bf16_f32 v{P+3}, v{T+4*s+10}, v{T+4*s+11}")
            so = "0" if s == 0 else "s50"
            p.vmem(f"buffer_store_dwordx4 v[{P}:{P+3}], v1, s[20:23], {so} offen offset:{1024*blk}", "st")
    stamp(p, 5)
    if STAMP: p("s_waitcnt vmcnt(0)")
    stamp(p, 6); stamp_rt(p, 7)
    stamp_out(p, 8, 2, 4, "s45")
    p("s_endpgm")
    end_main = p.mark()
    fb = Prog()
    fb.label("L_k2_fallback")
    fb("s_waitcnt vmcnt(0) lgkmcnt(0)")
    fb("v_mov_b32 v8, 0xff800000")
    fb("v_mov_b32 v9, 0xff800000")
    fb("s_mov_b32 s36, 0")
    fb.label("L_k2_fb1")
    for f in range(2):
        fb(f"buffer_load_dwordx4 {Kf(0,f)}, v1, s[12:15], s36 offen offset:{1024*f}")
    fb("s_waitcnt vmcnt(0)")
    for blk in range(2):
        for t, _ in qk(blk, 0, "0"): fb(t)
    fb("s_nop 15")
    for blk in range(2):
        S = S_[blk]
        for i in range(0, 16, 2):
            fb(f"v_max3_f32 v{8+blk}, v{8+blk}, v{S+i}, v{S+i+1}")
    fb("s_add_u32 s36, s36, 0x1000")
    fb("s_cmp_lt_u32 s36, 0x40000")
    fb("s_cbranch_scc1 L_k2_fb1")
    for blk in range(2):
        fb(f"v_mov_b32 v7, v{8+blk}")
        fb("s_nop 1")
        fb(f"v_permlane32_swap_b32 v{8+blk}, v7")
        fb("s_nop 1")
        fb(f"v_max_f32 v6, v{8+blk}, v7")
        for i in range(16):
            fb(f"v_sub_f32 v{C_[blk]+i}, 0, v6")
    for i in range(0, 40): fb(f"v_accvgpr_write_b32 a{i}, 0")
    fb("s_mov_b32 s36, 0")
    fb.label("L_k2_fb2")
    for f in range(2):
        fb(f"buffer_load_dwordx4 {Kf(0,f)}, v1, s[12:15], s36 offen offset:{1024*f}")
        fb(f"buffer_load_dwordx4 {Vf(0,f)}, v1, s[12:15], s36 offen offset:{2048+1024*f}")
    fb("s_waitcnt vmcnt(0)")
    for blk in range(2):
        for t, _ in qk(blk, 0): fb(t)
    fb("s_nop 15")
    for blk in range(2):
        for t, _ in softmax_valu(blk): fb(t)
    fb("s_nop 1")
    for blk in range(2):
        for t, _ in pv(blk, 0): fb(t)
    fb("s_add_u32 s36, s36, 0x1000")
    fb("s_cmp_lt_u32 s36, 0x40000")
    fb("s_nop 15")
    fb("s_cbranch_scc1 L_k2_fb2")
    fb("s_branch L_k2_out")
    final = Prog()
    final.ins = p.ins[:marks[0]] + [Ins(".p2align 6", "dir"), Ins("L_k2_loop:", "label")] + p.ins[marks[0]:marks[1]] + p.ins[marks[NC]:] + fb.ins
    final.label("L_k2_end")
    final("s_endpgm")
    lins = [[x.text for x in p.ins], [x.text for x in fb.ins] + [x.text for x in fb.ins]]
    launch = f"; @launch kernel={name} grid=(256,1,1) block=(256,1,1) lds=98304"
    return dict(name=name, prog=final, launch=launch, kd=kd(name, 128 + 72, 102, 128), lins=lins)
```

```python
from common import *
from gstream import *
import math, struct
def f2u(x): return struct.unpack("<I", struct.pack("<f", x))[0]

def tile_map(p, s_mt, s_nt):
    p("s_and_b32 s3, s2, 7")
    p("s_lshr_b32 s6, s2, 3")
    p(f"s_lshr_b32 {s_mt}, s3, 1")
    p(f"s_lshl_b32 {s_mt}, {s_mt}, 2")
    p("s_and_b32 s7, s6, 3")
    p(f"s_add_u32 {s_mt}, {s_mt}, s7")
    p(f"s_and_b32 {s_nt}, s3, 1")
    p(f"s_lshl_b32 {s_nt}, {s_nt}, 3")
    p("s_lshr_b32 s7, s6, 2")
    p(f"s_add_u32 {s_nt}, {s_nt}, s7")

def run_ops(p, ops):
    for o in ops:
        o()
        if "m0," in p.ins[-1].text: p("s_nop 0")

def gemm_standalone(p, g, NKS, loop_label, s_cnt):
    NF = NKS // 2
    run_ops(p, g.w_dma(0, 0))
    run_ops(p, g.h_loads(0))
    run_ops(p, g.h_loads(1))
    run_ops(p, g.w_dma(1, 1))
    run_ops(p, g.h_loads(2))
    p(f"s_xor_b32 {g.s_m0}, {g.s_m0}, 0x2000")
    for i in range(128): p(f"v_accvgpr_write_b32 a{g.acc+i}, 0")
    p.wait(vm=f"{g.pfx}w0")
    run_ops(p, g.w_reads(0, 0))
    p(f"s_mov_b32 {s_cnt}, {NKS//4 - 1}")
    marks = []
    nb = NKS // 4
    for b in range(nb):
        marks.append(p.mark())
        last = b == nb - 1
        for i in range(4):
            k = 4 * b + i
            mf = [(t, 32) for t in g.mfmas(k)]
            ex = {}
            def add(pos, fn): ex.setdefault(pos, []).append(fn)
            p.wait(vm=f"{g.pfx}h{k}", lg=f"{g.pfx}f{k}n1")
            if k + 1 < NKS:
                fg1 = (k + 1) // 2
                if (k + 1) % 2 == 0:
                    add(0, lambda fg1=fg1: p.wait(vm=f"{g.pfx}w{fg1}", force=True))
                if i == 3:
                    add(0, lambda: p(f"v_xor_b32 v{g.vrd}, 0x2000, v{g.vrd}"))
                    add(0, lambda: p(f"v_xor_b32 v{g.vrd+1}, 0x2000, v{g.vrd+1}"))
                for n, o in enumerate(g.w_reads(k + 1, (fg1 & 1) * 4096)): add(1 + n // 2, o)
            if k + 3 < NKS:
                for n, o in enumerate(g.h_loads(k + 3)): add(3 + n // 2, o)
            if k % 2 == 0 and k // 2 + 2 < NF:
                fg = k // 2 + 2
                ops = g.w_dma(fg, fg & 1)
                add(4, ops[0])
                for n, o in enumerate(ops[1:]): add(5 + n // 2, o)
                if i == 2: add(7, lambda: p(f"s_xor_b32 {g.s_m0}, {g.s_m0}, 0x2000"))
            if i == 3 and not last:
                add(6, lambda: p(f"s_sub_u32 {s_cnt}, {s_cnt}, 1"))
                add(7, lambda: p(f"s_cmp_lg_u32 {s_cnt}, 0"))
            fill(p, mf, [], ex)
        if not last: p(f"s_cbranch_scc1 {loop_label}")
    marks.append(p.mark())
    bodies = [[x.text for x in p.ins[marks[i]:marks[i+1]]] for i in range(nb)]
    for i in range(1, nb - 1):
        assert bodies[i] == bodies[0], (i, [(a, b) for a, b in zip(bodies[i], bodies[0]) if a != b][:5])
    return marks

def reduce_exchange(p, acc, dst, s_w, vlin, vtmp, lds_base=0, tag="r"):
    lab = f"L_{tag}"
    for w in range(4):
        if w < 3:
            p(f"s_cmp_lg_u32 {s_w}, {w}")
            p(f"s_cbranch_scc1 {lab}_n{w}")
        for dlt in range(1, 4):
            owner = (w + dlt) & 3
            slot = (w - owner - 1) & 3
            base = lds_base + (owner * 3 + slot) * 8192
            p(f"v_add_u32 v{vtmp}, {hex(base)}, v{vlin}")
            for q in range(8):
                r = acc + 32 * owner + 4 * q
                p.lds(f"ds_write_b128 v{vtmp}, a[{r}:{r+3}] offset:{1024*q}", "xw")
        for i in range(32):
            p(f"v_accvgpr_read_b32 v{dst+i}, a{acc+32*w+i}")
        if w < 3:
            p(f"s_branch {lab}_j")
            p.label(f"{lab}_n{w}")
    p.label(f"{lab}_j")
    p(f"s_mul_i32 s3, {s_w}, {3*8192}")
    if lds_base: p(f"s_add_u32 s3, s3, {hex(lds_base)}")
    p(f"v_add_u32 v{vtmp}, s3, v{vlin}")
    p.wait_all(vm=False)
    p("s_barrier")

def reduce_finish(p, dst, vtmp, T):
    for s in range(3):
        for q in range(8):
            p.lds(f"ds_read_b128 v[{T+32*s+4*q}:{T+32*s+4*q+3}], v{vtmp} offset:{s*8192 + 1024*q}", f"xr{s}")
    for s in range(3):
        p.wait(lg=f"xr{s}")
        for i in range(0, 32, 2):
            p(f"v_pk_add_f32 v[{dst+i}:{dst+i+1}], v[{dst+i}:{dst+i+1}], v[{T+32*s+i}:{T+32*s+i+1}]")

def silu_pack(p, Y, T, OUT, s_mask, s_nl2e):
    for k in range(16):
        p(f"v_cvt_pk_bf16_f32 v{OUT+k}, v{Y+2*k}, v{Y+2*k+1}")
    for k in range(16):
        p(f"v_lshlrev_b32 v{Y+2*k}, 16, v{OUT+k}")
        p(f"v_and_b32 v{Y+2*k+1}, {s_mask}, v{OUT+k}")
    for i in range(0, 32, 2):
        p(f"v_pk_mul_f32 v[{T+i}:{T+i+1}], v[{Y+i}:{Y+i+1}], {s_nl2e}")
    for i in range(32):
        p(f"v_exp_f32 v{T+i}, v{T+i}")
    for i in range(0, 32, 2):
        p(f"v_pk_add_f32 v[{T+i}:{T+i+1}], v[{T+i}:{T+i+1}], 1.0 op_sel_hi:[1,0]")
    for i in range(32):
        p(f"v_rcp_f32 v{T+i}, v{T+i}")
    for i in range(0, 32, 2):
        p(f"v_pk_mul_f32 v[{T+i}:{T+i+1}], v[{T+i}:{T+i+1}], v[{Y+i}:{Y+i+1}]")
    for k in range(16):
        p(f"v_cvt_pk_bf16_f32 v{OUT+k}, v{T+2*k}, v{T+2*k+1}")

def gen_k3(name="final_kernel", with_y=True):
    p = Prog()
    p("s_cmp_ge_u32 s2, 256")
    p("s_cbranch_scc1 L_k3_end")
    stamp(p, 0); stamp_rt(p, 1)
    p(f"s_load_dwordx2 s[4:5], s[0:1], {KA_WS}")
    p(f"s_load_dwordx2 s[8:9], s[0:1], {KA_WO}")
    p(f"s_load_dwordx4 s[60:63], s[0:1], {KA_WD}")
    p(f"s_load_dwordx2 s[10:11], s[0:1], {KA_X}")
    code_prefetch(p, "k3", "L_k3_end", 0, 14, 76)
    p("v_lshrrev_b32 v2, 6, v0")
    p("v_and_b32 v0, 63, v0")
    p("v_readfirstlane_b32 s45, v2")
    p("v_lshlrev_b32 v1, 4, v0")
    tile_map(p, "s43", "s44")
    p("s_lshl_b32 s40, s45, 14")
    g = GStream(p, acc=0, wfr=128, hbase=128, RH=4, vdma=4, vrd=8, vlin=1, s_h="s36", s_w="s37", srd_h=12, srd_w=16, s_m0="s38", pfx="y")
    g.setup_addrs(0, "s40", 10)
    p("s_waitcnt lgkmcnt(0)")
    p("s_mov_b32 s50, 0xffff0000")
    p(f"s_mov_b32 s58, {hex(f2u(-math.log2(math.e)))}")
    p("s_mov_b32 s59, s58")
    segs = []
    YP = 64
    if with_y:
        p("s_mul_i32 s3, s43, 917504")
        p(f"s_mul_i32 s6, s45, {56*4096}")
        p("s_add_u32 s3, s3, s6")
        p(f"s_add_u32 s3, s3, {hex(HF_OFF)}")
        srd(p, 12, 4, "s3", 56 * 4096)
        p(f"s_mul_i32 s3, s45, {896*2048}")
        p("s_lshl_b32 s6, s44, 7")
        p("s_add_u32 s3, s3, s6")
        p(f"s_sub_u32 s7, {896*2048}, s6")
        srd(p, 16, 60, "s3", "s7")
        p("s_mov_b32 s36, 0"); p("s_mov_b32 s37, 0"); p("s_mov_b32 s38, s40")
        m = gemm_standalone(p, g, 56, "L_k3_loopy", "s42")
        segs.append((m, "L_k3_loopy"))
        stamp(p, 2)
        p("s_nop 15")
        p("s_barrier")
        reduce_exchange(p, 0, 16, "s45", 1, 10, tag="k3y")
        reduce_finish(p, 16, 10, 128)
        silu_pack(p, 16, 128, YP, "s50", "s[58:59]")
        p("s_barrier")
        p(f"v_xor_b32 v8, 0x2000, v8"); p(f"v_xor_b32 v9, 0x2000, v9")
        stamp(p, 3)
    g.pfx = "s"
    p("s_lshl_b32 s3, s43, 18")
    p("s_lshl_b32 s6, s45, 16")
    p("s_add_u32 s3, s3, s6")
    p(f"s_add_u32 s3, s3, {hex(OF_OFF)}")
    srd(p, 12, 4, "s3", 65536)
    p(f"s_lshl_b32 s3, s45, 19")
    p("s_lshl_b32 s6, s44, 7")
    p("s_add_u32 s3, s3, s6")
    p(f"s_sub_u32 s7, {256*2048}, s6")
    srd(p, 16, 8, "s3", "s7")
    p("s_mov_b32 s36, 0"); p("s_mov_b32 s37, 0"); p("s_mov_b32 s38, s40")
    p("s_lshl_b32 s3, s43, 18")
    p("s_lshl_b32 s6, s45, 16")
    p("s_add_u32 s3, s3, s6")
    p("s_lshl_b32 s6, s44, 7")
    p("s_add_u32 s3, s3, s6")
    p(f"s_sub_u32 s7, 0x10000, s6")
    srd(p, 20, 10, "s3", "s7")
    srd(p, 24, 62, "s3", "s7")
    if not with_y:
        p("s_lshl_b32 s3, s43, 4")
        p("s_add_u32 s3, s3, s44")
        p("s_lshl_b32 s3, s3, 2")
        p("s_add_u32 s3, s3, s45")
        p("s_lshl_b32 s3, s3, 12")
        p(f"s_add_u32 s3, s3, {hex(YG_OFF)}")
        srd(p, 28, 4, "s3", 4096)
    p("v_lshrrev_b32 v2, 3, v0")
    p("v_and_b32 v3, 7, v0")
    p("v_lshlrev_b32 v3, 4, v3")
    p("v_lshl_add_u32 v3, v2, 11, v3")
    for i in range(1, 4): p(f"s_mov_b32 s{51+i}, {hex(i*8*2048)}")
    m = gemm_standalone(p, g, 16, "L_k3_loops", "s42")
    segs.append((m, "L_k3_loops"))
    XR = 80
    for i in range(4):
        so = "0" if i == 0 else f"s{51+i}"
        p.vmem(f"buffer_load_dwordx4 v[{XR+4*i}:{XR+4*i+3}], v3, s[20:23], {so} offen", "x")
    if not with_y:
        for i in range(4):
            p.vmem(f"buffer_load_dwordx4 v[{YP+4*i}:{YP+4*i+3}], v1, s[28:31], 0 offen offset:{1024*i}", "yg")
    stamp(p, 4)
    p("s_nop 15")
    p("s_barrier")
    reduce_exchange(p, 0, 16, "s45", 1, 10, tag="k3s")
    reduce_finish(p, 16, 10, 128)
    Sx = 16; T = 128
    for k in range(16):
        p(f"v_cvt_pk_bf16_f32 v{T+k}, v{Sx+2*k}, v{Sx+2*k+1}")
    if not with_y: p.wait(vm="yg")
    for k in range(16):
        p(f"v_lshlrev_b32 v{Sx+2*k}, 16, v{T+k}")
        p(f"v_and_b32 v{Sx+2*k+1}, s50, v{T+k}")
        p(f"v_lshlrev_b32 v{T+32+2*k}, 16, v{YP+k}")
        p(f"v_and_b32 v{T+32+2*k+1}, s50, v{YP+k}")
    for i in range(0, 32, 2):
        p(f"v_pk_mul_f32 v[{Sx+i}:{Sx+i+1}], v[{Sx+i}:{Sx+i+1}], v[{T+32+i}:{T+32+i+1}]")
    for k in range(16):
        p(f"v_cvt_pk_bf16_f32 v{T+k}, v{Sx+2*k}, v{Sx+2*k+1}")
    p("v_and_b32 v10, 31, v0")
    p("v_mul_u32_u24 v10, 144, v10")
    p("v_lshrrev_b32 v11, 5, v0")
    p("v_lshl_add_u32 v10, v11, 3, v10")
    p("s_mul_i32 s3, s45, 4608")
    p("s_add_u32 s3, s3, 0x18000")
    p("v_add_u32 v10, s3, v10")
    p("v_mul_u32_u24 v11, 144, v2")
    p("v_and_b32 v12, 7, v0")
    p("v_lshl_add_u32 v11, v12, 4, v11")
    p("v_add_u32 v11, s3, v11")
    for nb in range(2):
        for j in range(4):
            r = T + 8 * nb + 2 * j
            p.lds(f"ds_write_b64 v10, v[{r}:{r+1}] offset:{64*nb + 16*j}", "tw")
    p.wait(lg="tw")
    TR = 96
    for i in range(4):
        p.lds(f"ds_read_b128 v[{TR+4*i}:{TR+4*i+3}], v11 offset:{i*8*144}", "tr")
    p.wait(vm="x", lg="tr")
    for i in range(4):
        A = 16 + 16 * (i & 1)
        for k in range(4):
            p(f"v_lshlrev_b32 v{A+2*k}, 16, v{TR+4*i+k}")
            p(f"v_and_b32 v{A+2*k+1}, s50, v{TR+4*i+k}")
            p(f"v_lshlrev_b32 v{A+8+2*k}, 16, v{XR+4*i+k}")
            p(f"v_and_b32 v{A+8+2*k+1}, s50, v{XR+4*i+k}")
        for k in range(0, 8, 2):
            p(f"v_pk_add_f32 v[{A+k}:{A+k+1}], v[{A+k}:{A+k+1}], v[{A+8+k}:{A+8+k+1}]")
        for k in range(4):
            p(f"v_cvt_pk_bf16_f32 v{T+4*i+k}, v{A+2*k}, v{A+2*k+1}")
        so = "0" if i == 0 else f"s{51+i}"
        p.vmem(f"buffer_store_dwordx4 v[{T+4*i}:{T+4*i+3}], v3, s[24:27], {so} offen", "st")
    stamp(p, 5)
    if STAMP: p("s_waitcnt vmcnt(0)")
    stamp(p, 6); stamp_rt(p, 7)
    stamp_out(p, 8, 3, 4, "s45")
    final = Prog()
    pos = 0
    for m, lab in segs:
        final.ins += p.ins[pos:m[0]]
        final.ins += [Ins(".p2align 6", "dir"), Ins(lab + ":", "label")]
        final.ins += p.ins[m[0]:m[1]]
        pos = m[-2]
    final.ins += p.ins[pos:]
    final.label("L_k3_end")
    final("s_endpgm")
    launch = f"; @launch kernel={name} grid=(256,1,1) block=(256,1,1) lds={0x18000 + 4*4608}"
    return dict(name=name, prog=final, launch=launch, kd=kd(name, 256 + 144, 102, 256), lins=[[x.text for x in p.ins]])
```

```python
from build import *
from k0_ln import gen_k0
from k1_gemm1 import gen_k1
from k2_attn import gen_k2
from k3_final import gen_k3
import sys
assemble([gen_k0(), gen_k1(), gen_k2(), gen_k3()], sys.argv[1] if len(sys.argv) > 1 else "a.s")
```

```python
from build import *
from k0_ln import gen_k0
from k1_gemm1 import gen_k1
from k2_attn import gen_k2
from k3_final import gen_k3
import sys
def dummy(n):
    p = Prog(); p("s_endpgm")
    name = f"dummy{n}_kernel"
    return dict(name=name, prog=p, launch=f"; @launch kernel={name} grid=(256,1,1) block=(256,1,1) lds=0", kd=kd(name, 32, 32, 32), lin=["s_endpgm"])
ks = [gen_k0(), gen_k1(), gen_k2(), gen_k3()]
assemble(ks + [dummy(i) for i in range(4)], "d_post4.s")
assemble([dummy(i) for i in range(4)] + ks, "d_pre4.s")
assemble(ks, "d_none.s")
k0b = gen_k0()
assemble([ks[0], ks[1], ks[1], ks[2], ks[3]][:1] + ks[1:], "d_none2.s")
```

```python
import re

class Ins:
    __slots__ = ("text", "kind", "tag")
    def __init__(self, text, kind="", tag=None):
        self.text = text; self.kind = kind; self.tag = tag

def vr(base, n=1, f="v"):
    if isinstance(base, tuple):
        f, base = base
    return f"{f}{base}" if n == 1 else f"{f}[{base}:{base+n-1}]"

def sr(base, n=1):
    return f"s{base}" if n == 1 else f"s[{base}:{base+n-1}]"

class Prog:
    def __init__(self):
        self.ins = []
        self.vmq = []
        self.lgq = []
    def emit(self, text, kind=""):
        for line in text.strip("\n").split("\n"):
            line = line.strip()
            if not line: continue
            self.ins.append(Ins(line, kind))
    def __call__(self, text):
        self.emit(text)
    def label(self, name):
        self.ins.append(Ins(name + ":", "label"))
    def vmem(self, text, tag=None):
        self.ins.append(Ins(text, "vmem", tag)); self.vmq.append(tag)
        assert len(self.vmq) <= 63, "too many vmem outstanding"
    def lds(self, text, tag=None):
        self.ins.append(Ins(text, "lds", tag)); self.lgq.append(tag)
    def _cnt(self, q, tags):
        idx = -1
        for i, t in enumerate(q):
            if t in tags: idx = i
        if idx < 0: return None
        return len(q) - 1 - idx
    def wait(self, vm=(), lg=(), force=False):
        if not isinstance(vm, (list, tuple, set)): vm = [vm]
        if not isinstance(lg, (list, tuple, set)): lg = [lg]
        nv = self._cnt(self.vmq, vm) if vm else None
        nl = self._cnt(self.lgq, lg) if lg else None
        parts = []
        if nv is not None:
            parts.append(f"vmcnt({nv})"); self.vmq = self.vmq[len(self.vmq)-nv:] if nv else []
        if nl is not None:
            n = min(nl, 15)
            parts.append(f"lgkmcnt({n})"); self.lgq = self.lgq[len(self.lgq)-n:] if n else []
        if parts:
            self.ins.append(Ins("s_waitcnt " + " ".join(parts), "wait"))
            return True
        if force:
            self.ins.append(Ins("s_nop 0", "nop"))
        return False
    def wait_all(self, vm=True, lg=True):
        parts = []
        if vm: parts.append("vmcnt(0)"); self.vmq = []
        if lg: parts.append("lgkmcnt(0)"); self.lgq = []
        self.ins.append(Ins("s_waitcnt " + " ".join(parts), "wait"))
    def mark(self):
        return len(self.ins)
    def text(self, a=0, b=None):
        out = []
        for i in self.ins[a:b]:
            out.append(i.text if i.kind == "label" or i.text.startswith(".") else "    " + i.text)
        return "\n".join(out)

_reg_re = re.compile(r"\b([vas])(\d+)\b|\b([vas])\[(\d+):(\d+)\]")
def regs_of(op):
    s = set()
    for m in _reg_re.finditer(op):
        if m.group(1):
            s.add((m.group(1), int(m.group(2))))
        else:
            for i in range(int(m.group(4)), int(m.group(5)) + 1):
                s.add((m.group(3), i))
    if re.search(r"\bvcc\b", op): s.add(("s", "vcc"))
    if re.search(r"\bexec\b", op): s.add(("s", "exec"))
    if re.search(r"\bm0\b", op): s.add(("s", "m0"))
    return s

TRANS = ("v_exp_f32", "v_log_f32", "v_rcp_f32", "v_rsq_f32", "v_sqrt_f32", "v_sin_f32", "v_cos_f32")
def parse(text):
    t = text.split(";")[0].strip()
    if not t or t.endswith(":") or t.startswith("."):
        return None
    parts = t.split(None, 1)
    op = parts[0]
    args = [a.strip() for a in parts[1].split(",")] if len(parts) > 1 else []
    d = dict(op=op, defs=set(), uses=set(), cls="other", ws=1, passes=0, srcC=set(), srcAB=set())
    base = re.sub(r"_(e32|e64|sdwa|dpp)$", "", op)
    if op == "s_nop":
        d["ws"] = int(args[0], 0) + 1; d["cls"] = "nop"; return d
    if op.startswith("v_mfma"):
        d["cls"] = "mfma"
        d["defs"] = regs_of(args[0]); d["srcAB"] = regs_of(args[1]) | regs_of(args[2]); d["srcC"] = regs_of(args[3])
        d["uses"] = d["srcAB"] | d["srcC"]
        d["passes"] = 8 if "32x32" in op else (4 if "16x16" in op else 2)
        return d
    if op.startswith("v_"):
        d["cls"] = "trans" if base in TRANS else "valu"
        if op.startswith("v_cmp"):
            d["defs"] = regs_of(args[0]);
            for a in args[1:]: d["uses"] |= regs_of(a)
            if op.startswith("v_cmpx"): d["defs"].add(("s", "exec"))
        elif op.startswith("v_permlane") and "swap" in op:
            d["defs"] = regs_of(args[0]) | regs_of(args[1]); d["uses"] = set(d["defs"]); d["perm"] = True
        elif base in ("v_add_co_u32", "v_addc_co_u32", "v_sub_co_u32"):
            d["defs"] = regs_of(args[0]) | regs_of(args[1])
            for a in args[2:]: d["uses"] |= regs_of(a)
        else:
            d["defs"] = regs_of(args[0])
            for a in args[1:]: d["uses"] |= regs_of(a)
            if base in ("v_fmac_f32", "v_pk_fmac_f16", "v_dot2c_f32_bf16", "v_writelane_b32"): d["uses"] |= d["defs"]
            if "dst_unused:UNUSED_PRESERVE" in t: d["uses"] |= d["defs"]
        if "dpp" in op or "row_" in t or "quad_perm" in t: d["dpp"] = True
        if base in ("v_readfirstlane_b32", "v_readlane_b32"): d["rdlane"] = True
        return d
    if op.startswith("ds_"):
        d["cls"] = "lds"
        if op.startswith("ds_read") or op.startswith("ds_bpermute") or op.startswith("ds_swizzle"):
            d["defs"] = regs_of(args[0])
            for a in args[1:]: d["uses"] |= regs_of(a.split(" ")[0])
        else:
            for a in args: d["uses"] |= regs_of(a.split(" ")[0])
        return d
    if op.startswith("buffer_") or op.startswith("global_"):
        d["cls"] = "vmem"
        lds = t.rstrip().endswith(" lds") or " lds " in t
        if "load" in op and not lds:
            d["defs"] = regs_of(args[0])
            for a in args[1:]: d["uses"] |= regs_of(a.split(" ")[0])
        elif "load" in op and lds:
            for a in args: d["uses"] |= regs_of(a.split(" ")[0])
            d["uses"].add(("s", "m0")); d["ldsdma"] = True
        else:
            for a in args: d["uses"] |= regs_of(a.split(" ")[0])
            if "x4" in op or "x3" in op: d["wide_store"] = regs_of(args[0]) if op.startswith("buffer_") else regs_of(args[1])
        return d
    if op.startswith("s_"):
        d["cls"] = "salu"
        if op.startswith(("s_cmp", "s_cbranch", "s_branch", "s_waitcnt", "s_barrier", "s_endpgm", "s_setprio", "s_sleep")):
            for a in args: d["uses"] |= regs_of(a)
        else:
            if args:
                d["defs"] = regs_of(args[0])
                for a in args[1:]: d["uses"] |= regs_of(a)
            if "saveexec" in op: d["defs"].add(("s", "exec"))
        return d
    return d

def check_hazards(lines, name=""):
    ps = [(l, parse(l)) for l in lines]
    ps = [(l, p) for l, p in ps if p]
    errs = []
    n = len(ps)
    for i, (li, p) in enumerate(ps):
        dist = 0
        j = i - 1
        while j >= 0 and dist < 24:
            lj, q = ps[j]
            need = 0
            isvalu_p = p["cls"] in ("valu", "trans")
            isvalu_q = q["cls"] in ("valu", "trans")
            vdefs = {r for r in q["defs"] if r[0] in "va"}
            sdefs = {r for r in q["defs"] if r[0] == "s"}
            if isvalu_q and p["cls"] == "mfma" and (vdefs & p["uses"]): need = max(need, 2)
            if isvalu_q and p["cls"] == "mfma" and ("s", "exec") in sdefs: need = max(need, 4)
            if q["cls"] == "mfma":
                ps_ = q["passes"]
                tbl = {2: 5, 4: 8, 8: 12}
                tblC = {2: 4, 4: 6, 8: 10}
                if p["cls"] == "mfma":
                    if q["defs"] & p["srcAB"]: need = max(need, tbl[ps_])
                    if q["defs"] & p["srcC"]:
                        if q["defs"] == p["srcC"] and q["passes"] == p["passes"]:
                            need = max(need, 2 if ps_ == 2 else 0)
                        else: need = max(need, tblC[ps_])
                    elif q["defs"] & p["defs"]:
                        need = max(need, tblC[ps_])
                elif isvalu_p or p["cls"] in ("lds", "vmem"):
                    if q["defs"] & (p["uses"] | p["defs"]): need = max(need, tbl[ps_])
                if isvalu_p and (q["srcC"] & p["defs"]): need = max(need, {2: 1, 4: 3, 8: 7}[ps_])
            if q["cls"] == "trans" and p["cls"] == "valu" and (vdefs & p["uses"]): need = max(need, 1)
            if q["cls"] == "trans" and p["cls"] in ("lds", "vmem", "mfma") and (vdefs & p["uses"]): need = max(need, 1)
            if isvalu_q and p.get("perm") and (vdefs & p["uses"]): need = max(need, 2)
            if isvalu_q and p.get("dpp") and (vdefs & p["uses"]): need = max(need, 2)
            if isvalu_q and p.get("dpp") and ("s", "exec") in sdefs: need = max(need, 5)
            if isvalu_q and p.get("rdlane") and (vdefs & p["uses"]): need = max(need, 1)
            if isvalu_q and p["cls"] == "vmem" and (sdefs & p["uses"]): need = max(need, 5)
            if isvalu_q and isvalu_p and (sdefs & p["uses"]): need = max(need, 2)
            if isvalu_q and p["cls"] == "salu" and (sdefs & p["uses"]): need = max(need, 1)
            if q["cls"] == "salu" and ("s", "m0") in sdefs and p.get("ldsdma"): need = max(need, 1)
            if q.get("wide_store") and (q["wide_store"] & p["defs"]): need = max(need, 2 if isvalu_p else 1)
            if need > dist:
                errs.append(f"[{name}] hazard need {need} have {dist}:\n    {lj}\n    {li}")
            dist += q["ws"]
            j -= 1
    return errs

def kd(name, vgpr, sgpr, accum, ids_y=False):
    return f""".amdhsa_kernel {name}
  .amdhsa_next_free_vgpr {vgpr}
  .amdhsa_next_free_sgpr {sgpr}
  .amdhsa_accum_offset {accum}
  .amdhsa_group_segment_fixed_size 0
  .amdhsa_kernarg_size 80
  .amdhsa_user_sgpr_count 2
  .amdhsa_user_sgpr_kernarg_segment_ptr 1
  .amdhsa_system_sgpr_workgroup_id_x 1
  .amdhsa_float_denorm_mode_32 3
  .amdhsa_float_denorm_mode_16_64 3
.end_amdhsa_kernel
"""

def unify(bodies):
    n = len(bodies[0])
    for b in bodies: assert len(b) == n, "loop bodies differ in length"
    out = []
    for i in range(n):
        ts = [b[i].text for b in bodies]
        if all(t == ts[0] for t in ts):
            out.append(bodies[0][i]); continue
        vm = None; lg = None
        for t in ts:
            if t == "s_nop 0": continue
            assert t.startswith("s_waitcnt"), ("loop bodies differ", ts)
            m = re.search(r"vmcnt\((\d+)\)", t)
            if m: vm = int(m.group(1)) if vm is None else min(vm, int(m.group(1)))
            m = re.search(r"lgkmcnt\((\d+)\)", t)
            if m: lg = int(m.group(1)) if lg is None else min(lg, int(m.group(1)))
        parts = []
        if vm is not None: parts.append(f"vmcnt({vm})")
        if lg is not None: parts.append(f"lgkmcnt({lg})")
        out.append(Ins("s_waitcnt " + " ".join(parts), "wait"))
    return out
```

```python
from asmlib import *
MB = 1 << 20
XN_OFF = 0
QF_OFF = 4 * MB
KV_OFF = 8 * MB
HF_OFF = 16 * MB
OF_OFF = 32 * MB
YG_OFF = 36 * MB
FL_OFF = 40 * MB
S = 2048; D = 1024; F = 3584
KA_X, KA_WQKV, KA_WO, KA_BX, KA_WG, KA_WU, KA_WD, KA_OUT, KA_DBG, KA_WS = [8 * i for i in range(10)]

def srd(p, d, ptr, off, size):
    if off == 0:
        p(f"s_mov_b32 s{d}, s{ptr}")
        p(f"s_and_b32 s{d+1}, s{ptr+1}, 0xffff")
    else:
        o = off if isinstance(off, str) else hex(off)
        p(f"s_add_u32 s{d}, s{ptr}, {o}")
        p(f"s_addc_u32 s{d+1}, s{ptr+1}, 0")
        p(f"s_and_b32 s{d+1}, s{d+1}, 0xffff")
    sz = size if isinstance(size, str) else hex(size)
    p(f"s_mov_b32 s{d+2}, {sz}")
    p(f"s_mov_b32 s{d+3}, 0x20000")

def kernel_text(name, p):
    return f".p2align 8\n.globl {name}\n.type {name},@function\n{name}:\n" + p.text() + "\n"

def csel(p, d, a, b):
    p(f"s_mov_b32 {d}, {hex(b)}")
    p(f"s_cmov_b32 {d}, {hex(a)}")

import os
STAMP = os.environ.get("STAMP", "0") == "1"
DBG_OFF = 64 * MB
def stamp(p, idx, base=80):
    if not STAMP: return
    p(f"s_memtime s[{base+2*idx}:{base+2*idx+1}]")
def stamp_rt(p, idx, base=80):
    if not STAMP: return
    p(f"s_memrealtime s[{base+2*idx}:{base+2*idx+1}]")
def stamp_out(p, n, kidx, wsptr, wave_sgpr, nwaves=4, base=80, tmp=72, extra=()):
    if not STAMP: return
    p("s_waitcnt vmcnt(0) lgkmcnt(0)")
    srd(p, tmp, wsptr, DBG_OFF + kidx * MB, MB)
    p(f"s_mul_i32 s{tmp+4}, s2, {nwaves}")
    p(f"s_add_u32 s{tmp+4}, s{tmp+4}, {wave_sgpr}")
    p(f"s_lshl_b32 s{tmp+4}, s{tmp+4}, 6")
    p("v_mov_b32 v1, 0")
    for i in range(n):
        p(f"v_mov_b32 v2, s{base+2*i}")
        p(f"buffer_store_dword v2, v1, s[{tmp}:{tmp+3}], s{tmp+4} offen offset:{4*i}")
    for i, r in enumerate(extra):
        p(f"v_mov_b32 v2, s{r}")
        p(f"buffer_store_dword v2, v1, s[{tmp}:{tmp+3}], s{tmp+4} offen offset:{4*(n+i)}")
    p("s_waitcnt vmcnt(0)")

CPF = os.environ.get("CPF", "1") == "1"
def code_prefetch(p, tag, end_label, vtid, vt, sp, n=1, start_label=None):
    if not CPF: return
    p(f"s_getpc_b64 s[{sp}:{sp+1}]")
    p.label(f"L_{tag}_pc")
    if start_label:
        p(f"s_add_u32 s{sp}, s{sp}, {start_label}-L_{tag}_pc")
        p(f"s_addc_u32 s{sp+1}, s{sp+1}, 0")
    base = start_label or f"L_{tag}_pc"
    for i in range(n):
        p(f"v_lshlrev_b32 v{vt}, 7, v{vtid}")
        if i: p(f"v_add_u32 v{vt}, {hex(i*32768)}, v{vt}")
        p(f"v_min_u32 v{vt}, {end_label}-{base}, v{vt}")
        p.vmem(f"global_load_dword v{vt+1}, v{vt}, s[{sp}:{sp+1}]", "cpf")
```

```python
from common import *

class GStream:
    def __init__(self, p, acc, wfr, hbase, RH, vdma, vrd, vlin, s_h, s_w, srd_h, srd_w, s_m0, pfx="g"):
        self.__dict__.update(locals())
    def accr(self, mb, nb): return f"a[{self.acc+16*(2*mb+nb)}:{self.acc+16*(2*mb+nb)+15}]"
    def hreg(self, k, mb):
        b = self.hbase + 16 * (k % self.RH) + 4 * mb
        return f"v[{b}:{b+3}]"
    def wreg(self, k, nb, e=None):
        b = self.wfr + 8 * (k & 1) + 4 * nb
        if e is None: return f"a[{b}:{b+3}]"
        return f"a[{b+2*e}:{b+2*e+1}]"
    def mfmas(self, k, first=False):
        out = []
        for mb in range(4):
            for nb in ((0, 1) if mb % 2 == 0 else (1, 0)):
                c = "0" if first else self.accr(mb, nb)
                out.append(f"v_mfma_f32_32x32x16_bf16 {self.accr(mb, nb)}, {self.wreg(k, nb)}, {self.hreg(k, mb)}, {c}")
        return out
    def h_loads(self, k):
        p = self.p
        ops = [lambda mb=mb: p.vmem(f"buffer_load_dwordx4 {self.hreg(k, mb)}, v{self.vlin}, s[{self.srd_h}:{self.srd_h+3}], {self.s_h} offen offset:{1024*mb}", f"{self.pfx}h{k}")
               for mb in range(4)]
        ops.append(lambda: p(f"s_add_u32 {self.s_h}, {self.s_h}, 0x1000"))
        return ops
    def w_dma(self, fg, slot_in_pair):
        p = self.p
        ops = [lambda: p(f"s_add_u32 m0, {self.s_m0}, {slot_in_pair*4096}")]
        ops += [lambda i=i: p.vmem(f"buffer_load_dwordx4 v{self.vdma+i}, s[{self.srd_w}:{self.srd_w+3}], {self.s_w} offen offset:{1024*i} lds", f"{self.pfx}w{fg}")
                for i in range(4)]
        ops.append(lambda: p(f"s_add_u32 {self.s_w}, {self.s_w}, 0x10000"))
        return ops
    def w_reads(self, k, slot_off):
        p = self.p
        s = k & 1
        return [lambda nb=nb, e=e: p.lds(f"ds_read_b64_tr_b16 {self.wreg(k, nb, e)}, v{self.vrd+nb} offset:{slot_off + e*2048 + s*1024}", f"{self.pfx}f{k}n{nb}")
                for nb in range(2) for e in range(2)]
    def setup_addrs(self, lane, s_ldsbase, t0):
        p = self.p
        a, b, c = t0, t0 + 1, t0 + 2
        p(f"v_lshrrev_b32 v{a}, 3, v{lane}")
        p(f"v_bfe_u32 v{b}, v{lane}, 4, 1")
        p(f"v_lshlrev_b32 v{b}, 2, v{b}")
        p(f"v_and_b32 v{c}, 7, v{lane}")
        p(f"v_xor_b32 v{b}, v{b}, v{c}")
        p(f"v_lshlrev_b32 v{b}, 4, v{b}")
        p(f"v_lshl_add_u32 v{self.vdma}, v{a}, 11, v{b}")
        for i in range(1, 4):
            p(f"v_add_u32 v{self.vdma+i}, {hex(i*(16384-1024))}, v{self.vdma}")
        p(f"v_lshrrev_b32 v{a}, 5, v{lane}")
        p(f"v_lshlrev_b32 v{a}, 9, v{a}")
        p(f"v_bfe_u32 v{b}, v{lane}, 2, 2")
        p(f"v_lshl_add_u32 v{a}, v{b}, 7, v{a}")
        p(f"v_bfe_u32 v{c}, v{lane}, 4, 1")
        p(f"v_lshl_add_u32 v{a}, v{c}, 5, v{a}")
        p(f"v_and_b32 v{c}, 3, v{lane}")
        p(f"v_lshl_add_u32 v{a}, v{c}, 3, v{a}")
        p(f"v_add_u32 v{a}, {s_ldsbase}, v{a}")
        p(f"v_lshrrev_b32 v{b}, 1, v{b}")
        p(f"v_lshl_add_u32 v{self.vrd}, v{b}, 6, v{a}")
        p(f"v_xor_b32 v{b}, 1, v{b}")
        p(f"v_lshl_add_u32 v{self.vrd+1}, v{b}, 6, v{a}")

def fill(p, mf, valu, extra):
    caps = []
    ext = {}
    for i in range(len(mf)):
        l = []
        for e in extra.get(i, []):
            l.append(e if isinstance(e, tuple) else (e, "v"))
        ext[i] = l
    for k in extra: assert 0 <= k < len(mf), k
    for i, (t, d) in enumerate(mf):
        c = d - 8 - 4 * len(ext[i])
        if ext[i] and ext[i][0][1] == "s": c += 4
        caps.append(max(c, 0))
    tot_c = sum(caps); tot_v = sum(c for _, c in valu)
    vi = 0; cum_c = 0; cum_v = 0
    for i, (t, d) in enumerate(mf):
        p(t)
        for fn, _ in ext[i]: fn()
        cum_c += caps[i]
        if tot_v <= tot_c:
            used = 0
            rem_cap_after = tot_c - cum_c
            while vi < len(valu):
                c = valu[vi][1]
                rem_v = tot_v - cum_v
                must = rem_v > rem_cap_after or i == len(mf) - 1
                target = tot_v * cum_c / max(tot_c, 1)
                if (used + c <= caps[i] and cum_v + c / 2 <= target + 4) or must:
                    p(valu[vi][0]); cum_v += c; used += c; vi += 1
                else:
                    break
        else:
            target = tot_v * cum_c / max(tot_c, 1)
            while vi < len(valu) and (cum_v + valu[vi][1] / 2 <= target or i == len(mf) - 1):
                p(valu[vi][0]); cum_v += valu[vi][1]; vi += 1
```

```python
from common import *

def gen_k0(name="ln_kernel"):
    p = Prog()
    p("s_cmp_ge_u32 s2, 256")
    p("s_cbranch_scc1 L_k0_end")
    p(f"s_load_dwordx2 s[4:5], s[0:1], {KA_X}")
    p(f"s_load_dwordx2 s[6:7], s[0:1], {KA_WS}")
    R = int(os.environ.get("K0PF", "256"))
    if R:
        p(f"s_load_dwordx2 s[22:23], s[0:1], {KA_WQKV}")
        p(f"s_load_dwordx4 s[24:27], s[0:1], {KA_WG}")
    p("v_and_b32 v1, 7, v0")
    p("v_lshrrev_b32 v2, 3, v0")
    p("s_lshl_b32 s3, s2, 14")
    p("v_lshlrev_b32 v3, 11, v1")
    p("v_lshl_add_u32 v3, v2, 4, v3")
    p("s_waitcnt lgkmcnt(0)")
    srd(p, 8, 4, 0, S * D * 2)
    srd(p, 12, 6, XN_OFF, S * D * 2)
    for i in range(4):
        p.vmem(f"buffer_load_dwordx4 v[{8+4*i}:{11+4*i}], v3, s[8:11], s3 offen offset:{512*i}", "x")
    if R:
        p("v_lshlrev_b32 v7, 8, v0")
        p("v_add_u32 v7, s2, v7")
        p("v_lshlrev_b32 v7, 7, v7")
        srd(p, 28, 22, 0, R * 6144)
        srd(p, 32, 24, 0, R * 7168)
        srd(p, 36, 26, 0, R * 7168)
        for i in range(3):
            p.vmem(f"buffer_load_dword v{96+i}, v7, s[{28+4*i}:{31+4*i}], 0 offen", "pf")
    if os.environ.get("K0CPF", "1") == "1":
        code_prefetch(p, "k0", "L_all_end", 0, 100, 40, n=2)
    p("s_lshr_b32 s16, s2, 5")
    p("s_lshl_b32 s16, s16, 19")
    p("s_lshr_b32 s17, s2, 1")
    p("s_and_b32 s17, s17, 15")
    p("s_lshl_b32 s17, s17, 10")
    p("s_add_u32 s16, s16, s17")
    p("s_and_b32 s17, s2, 1")
    p("s_lshl_b32 s17, s17, 7")
    p("s_add_u32 s16, s16, s17")
    p("s_add_u32 s17, s16, 0x20000")
    p("s_add_u32 s18, s16, 0x40000")
    p("s_add_u32 s19, s16, 0x60000")
    p("v_lshrrev_b32 v4, 2, v2")
    p("v_lshlrev_b32 v4, 14, v4")
    p("v_and_b32 v5, 3, v2")
    p("v_lshl_add_u32 v4, v5, 8, v4")
    p("v_lshl_add_u32 v4, v1, 4, v4")
    p("v_mul_u32_u24 v6, 80, v1")
    p("v_lshrrev_b32 v5, 4, v0")
    p("v_lshl_add_u32 v5, v5, 2, v6")
    p("s_mov_b32 s20, 0xffff0000")
    X = 32
    for i in range(4):
        p.wait(vm="x") if i == 0 else None
    for k in range(16):
        p(f"v_lshlrev_b32 v{X+2*k}, 16, v{8+k}")
        p(f"v_and_b32 v{X+2*k+1}, s20, v{8+k}")
    def reduce(src_regs, lds_off, dst):
        t = [24, 25, 26, 27]
        for a in range(4):
            p(f"v_add_f32 v{t[a]}, v{src_regs[a]}, v{src_regs[a+4]}")
        for k in range(8, len(src_regs)):
            p(f"v_add_f32 v{t[k%4]}, v{t[k%4]}, v{src_regs[k]}")
        p("v_add_f32 v24, v24, v25")
        p("v_add_f32 v26, v26, v27")
        p("v_add_f32 v24, v24, v26")
        p("s_nop 1")
        p("v_add_f32_dpp v24, v24, v24 row_ror:8 row_mask:0xf bank_mask:0xf")
        p.lds(f"ds_write_b32 v5, v24 offset:{lds_off}", "w")
        p.wait(lg="w")
        p("s_barrier")
        for j in range(4):
            p.lds(f"ds_read_b128 v[{8+4*j}:{11+4*j}], v6 offset:{lds_off+16*j}", "r")
        p.wait(lg="r")
        for j in range(8):
            p(f"v_add_f32 v{8+j}, v{8+j}, v{16+j}")
        for j in range(4):
            p(f"v_add_f32 v{8+j}, v{8+j}, v{12+j}")
        p("v_add_f32 v8, v8, v9")
        p("v_add_f32 v10, v10, v11")
        p(f"v_add_f32 v{dst}, v8, v10")
    reduce(list(range(X, X+32)), 0, 28)
    p("v_mul_f32 v28, 0x3a800000, v28")
    for k in range(32):
        p(f"v_sub_f32 v{64+k}, v{X+k}, v28")
    for k in range(32):
        p(f"v_mul_f32 v{64+k}, v{64+k}, v{64+k}")
    reduce(list(range(64, 96)), 1024, 29)
    p("v_mul_f32 v29, 0x3a800000, v29")
    p("v_cvt_pk_bf16_f32 v30, v28, v29")
    p("v_lshlrev_b32 v28, 16, v30")
    p("v_and_b32 v29, s20, v30")
    p("v_add_f32 v29, 0x3727c5ac, v29")
    p("v_cvt_pk_bf16_f32 v30, v29, v29")
    p("v_and_b32 v29, s20, v30")
    p("v_sqrt_f32 v29, v29")
    p("s_nop 0")
    p("v_cvt_pk_bf16_f32 v30, v29, v29")
    p("v_and_b32 v29, s20, v30")
    p("v_rcp_f32 v29, v29")
    for k in range(32):
        p(f"v_sub_f32 v{X+k}, v{X+k}, v28")
    for k in range(16):
        p(f"v_cvt_pk_bf16_f32 v{64+k}, v{X+2*k}, v{X+2*k+1}")
    for k in range(16):
        p(f"v_lshlrev_b32 v{X+2*k}, 16, v{64+k}")
        p(f"v_and_b32 v{X+2*k+1}, s20, v{64+k}")
    for k in range(32):
        p(f"v_mul_f32 v{X+k}, v{X+k}, v29")
    for i in range(4):
        for k in range(4):
            kk = 4 * i + k
            p(f"v_cvt_pk_bf16_f32 v{8+kk}, v{X+2*kk}, v{X+2*kk+1}")
        p.vmem(f"buffer_store_dwordx4 v[{8+4*i}:{11+4*i}], v4, s[12:15], s{16+i} offen", "st")
    p.label("L_k0_end")
    p("s_endpgm")
    launch = f"; @launch kernel={name} grid=(256,1,1) block=(256,1,1) lds=2048"
    return dict(name=name, prog=p, launch=launch, kd=kd(name, 104, 48, 104), lin=[i.text for i in p.ins])
```

```python
from common import *
import math, struct

def f2u(x):
    return struct.unpack("<I", struct.pack("<f", x))[0]

def acc(mb, nb):
    if nb < 4:
        return ("v", 48 + 4 * (mb * 4 + nb))
    if nb < 8:
        if mb < 5:
            return ("v", 48 + 128 + 4 * (mb * 4 + nb - 4))
        return ("a", 144 + 4 * ((mb - 5) * 4 + nb - 4))
    return ("a", 144 + 48 + 4 * (mb * 2 + nb - 8))

def fragA(st, mb): return ("a", 72 * st + 4 * mb)
def fragB(st, nb): return ("a", 72 * st + 32 + 4 * nb)

def dma_ops(p, stage, tag):
    ops = []
    ops.append(lambda: p(f"s_add_u32 m0, s40, {stage*16384}"))
    for i in range(4):
        ops.append(lambda i=i: p.vmem(f"buffer_load_dwordx4 v1, s[12:15], s36 offen offset:{1024*i} lds", tag))
    for u in range(5):
        srdn = [16, 16, 20, 20, 24][u]
        voff = "v2" if u < 4 else "v3"
        soff = "s37" if u < 4 else "s38"
        io = 128 if u in (1, 3) else 0
        ops.append(lambda u=u, io=io: p(f"s_add_u32 m0, s41, {u*16384 + stage*4096 - io}"))
        ops.append(lambda srdn=srdn, voff=voff, soff=soff, io=io: p.vmem(
            f"buffer_load_dwordx4 {voff}, s[{srdn}:{srdn+3}], {soff} offen offset:{io} lds", tag))
    ops.append(lambda: p("s_add_u32 s36, s36, 0x4000"))
    ops.append(lambda: p("s_add_u32 s37, s37, s39"))
    ops.append(lambda: p(f"s_add_u32 s38, s38, {32*6144}"))
    return ops

def read_ops(p, stage, st, tag):
    ops = []
    ra = [lambda mb=mb: p.lds(f"ds_read_b128 {vr(fragA(st, mb), 4)}, v4 offset:{stage*16384 + mb*1024}", tag) for mb in range(8)]
    rb = []
    for nb in range(10):
        for e in range(2):
            f, b = fragB(st, nb)
            if nb < 8:
                a = 5 + (nb & 3); off = stage * 4096 + e * 512 + (nb >> 2) * 32768
            else:
                a = 9 + (nb - 8); off = stage * 4096 + e * 512
            rb.append(lambda b=b, e=e, a=a, off=off: p.lds(f"ds_read_b64_tr_b16 a[{b+2*e}:{b+2*e+1}], v{a} offset:{off}", tag))
    out = []
    ia = ib = 0
    while ia < len(ra) or ib < len(rb):
        if ia < len(ra): out.append(ra[ia]); ia += 1
        for _ in range(3 if ia > 4 else 2):
            if ib < len(rb): out.append(rb[ib]); ib += 1
    return out

def merge_ops(a, b):
    out = []
    na, nb = len(a), len(b)
    ia = ib = 0
    while ia < na or ib < nb:
        if ib >= nb or (ia < na and ia * nb <= ib * na):
            out.append(a[ia]); ia += 1
        else:
            out.append(b[ib]); ib += 1
    return out

PF = os.environ.get('K1PF', '1') == '1'
def iteration(p, t, isV, NK=32, loopctl=None, dmas=None, pf=None):
    st = t & 1
    slots = {}
    def add(k, fn): slots.setdefault(k, []).append(fn)
    if t + 1 < NK:
        add(0, lambda: p.wait(vm=f"d{t+1}", force=True))
        add(1, lambda: p("s_barrier"))
        rd = read_ops(p, (t + 1) & 3, 1 - st, f"f{t+1}")
        dm = []
        for d in dmas: dm += dma_ops(p, d & 3, f"d{d}")
        k0, k1 = 2, 66
        for i, o in enumerate(rd):
            add(k0 + (i * (k1 - k0)) // max(len(rd), 1), o)
        k0, k1 = 3, 76
        for i, o in enumerate(dm):
            add(k0 + (i * (k1 - k0)) // max(len(dm), 1), o)
    if PF and pf == "wd":
        add(77, lambda: p.vmem("buffer_load_dword v11, v15, s[64:67], s49 offen", "pf"))
        add(78, lambda: p("s_add_u32 s49, s49, 0x100000"))
    if PF and pf == "wo":
        add(76, lambda: p("s_sub_u32 s51, s49, 0x100000"))
        add(77, lambda: p.vmem("buffer_load_dword v11, v15, s[68:71], s51 offen", "pf"))
    if loopctl:
        add(77, lambda: p("s_sub_u32 s42, s42, 1"))
        add(78, lambda: p("s_cmp_lg_u32 s42, 0"))
    k = 0
    for mb in range(8):
        order = range(10) if mb % 2 == 0 else range(9, -1, -1)
        for nb in order:
            d = vr(acc(mb, nb), 4)
            c = "0" if t == 0 else d
            xa = vr(fragA(st, mb), 4); wb = vr(fragB(st, nb), 4)
            if isV and nb < 8:
                p(f"v_mfma_f32_16x16x32_bf16 {d}, {xa}, {wb}, {c}")
            else:
                p(f"v_mfma_f32_16x16x32_bf16 {d}, {wb}, {xa}, {c}")
            for fn in slots.get(k, []): fn()
            k += 1
    if STAMP and loopctl: p("s_memtime s[76:77]")
    if t + 1 < NK:
        p.wait(lg=f"f{t+1}")
    if STAMP and loopctl:
        p("s_waitcnt lgkmcnt(0)")
        p("s_mov_b32 m0, s42")
        p("s_nop 1")
        p("v_writelane_b32 v47, s76, m0")
    if loopctl:
        p(f"s_cbranch_scc1 {loopctl}")

def get4(p, tile, tmp):
    f, b = tile
    if f == "v": return b
    for i in range(4):
        p(f"v_accvgpr_read_b32 v{tmp+i}, a{b+i}")
    return tmp

STP = os.environ.get('K1ST', 'sc1')
def epi_qk(p):
    for mb in range(8):
        T = 16 + 16 * (mb & 1)
        a = get4(p, acc(mb, 8), T)
        b = get4(p, acc(mb, 9), T + 4)
        for i in range(0, 8, 2):
            p(f"v_pk_mul_f32 v[{T+i}:{T+i+1}], v[{T+i}:{T+i+1}], s[56:57]")
        for i in range(4):
            p(f"v_cvt_pk_bf16_f32 v{T+8+i}, v{T+2*i}, v{T+2*i+1}")
        p.vmem(f"buffer_store_dwordx4 v[{T+8}:{T+11}], v{13+(mb&1)}, s[32:35], s{52+(mb>>1)} offen {STP}", "st")

def epi_f(p):
    n = 0
    for mb in range(8):
        for pr in range(2):
            T = 16 + 16 * (n & 1); n += 1
            g0 = acc(mb, 2 * pr)[1]; g1 = acc(mb, 2 * pr + 1)[1]
            assert g1 == g0 + 4
            for i in range(0, 8, 2):
                p(f"v_pk_mul_f32 v[{g0+i}:{g0+i+1}], v[{g0+i}:{g0+i+1}], s[58:59]")
            u0 = get4(p, acc(mb, 4 + 2 * pr), T)
            u1 = get4(p, acc(mb, 5 + 2 * pr), T + 4)
            assert u1 == u0 + 4
            for i in range(8):
                p(f"v_exp_f32 v{g0+i}, v{g0+i}")
            for i in range(0, 8, 2):
                p(f"v_pk_add_f32 v[{g0+i}:{g0+i+1}], v[{g0+i}:{g0+i+1}], 1.0 op_sel_hi:[1,0]")
            for i in range(8):
                p(f"v_rcp_f32 v{g0+i}, v{g0+i}")
            for i in range(0, 8, 2):
                p(f"v_pk_mul_f32 v[{g0+i}:{g0+i+1}], v[{g0+i}:{g0+i+1}], v[{u0+i}:{u0+i+1}]")
            for i in range(4):
                p(f"v_cvt_pk_bf16_f32 v{T+8+i}, v{g0+2*i}, v{g0+2*i+1}")
            so = "0" if pr == 0 else "s50"
            p.vmem(f"buffer_store_dwordx4 v[{T+8}:{T+11}], v12, s[28:31], {so} offen offset:{(mb>>1)*1024 + (mb&1)*256} {STP}", "st")

def epi_v(p):
    n = 0
    for j in range(4):
        for nb in range(8):
            T = 16 + 16 * (n & 1); n += 1
            a = get4(p, acc(2 * j, nb), T)
            b = get4(p, acc(2 * j + 1, nb), T + 4)
            hd = (nb >> 2) * 4 + ((nb & 3) >> 1)
            p(f"s_mov_b32 s51, {hex(hd * 262144 + j * 4096)}")
            p(f"v_cvt_pk_bf16_f32 v{T+8}, v{a}, v{a+1}")
            p(f"v_cvt_pk_bf16_f32 v{T+9}, v{a+2}, v{a+3}")
            p(f"v_cvt_pk_bf16_f32 v{T+10}, v{b}, v{b+1}")
            p(f"v_cvt_pk_bf16_f32 v{T+11}, v{b+2}, v{b+3}")
            p.vmem(f"buffer_store_dwordx4 v[{T+8}:{T+11}], v12, s[28:31], s51 offen offset:{(nb&1)*256} {STP}", "st")
            if len(p.vmq) > 40:
                p.vmq = p.vmq[-20:]

def gen_k1(name="gemm1_kernel"):
    p = Prog()
    p("s_cmp_ge_u32 s2, 256")
    p("s_cbranch_scc1 L_k1_end")
    stamp(p, 0); stamp_rt(p, 1)
    p(f"s_load_dwordx2 s[4:5], s[0:1], {KA_WS}")
    p(f"s_load_dwordx2 s[6:7], s[0:1], {KA_WQKV}")
    p(f"s_load_dwordx4 s[8:11], s[0:1], {KA_WG}")
    if PF:
        p(f"s_load_dwordx2 s[72:73], s[0:1], {KA_WD}")
        p(f"s_load_dwordx2 s[74:75], s[0:1], {KA_WO}")
    code_prefetch(p, "k1", "L_k1_end", 0, 20, 76)
    p("v_lshrrev_b32 v11, 6, v0")
    p("v_and_b32 v0, 63, v0")
    p("v_readfirstlane_b32 s45, v11")
    p("s_and_b32 s44, s2, 7")
    p("s_lshl_b32 s44, s44, 2")
    p("s_lshr_b32 s43, s2, 3")
    p("s_lshr_b32 s3, s43, 3")
    p("s_add_u32 s44, s44, s3")
    p("s_and_b32 s43, s43, 7")
    p("s_lshr_b32 s46, s45, 1")
    p("s_and_b32 s47, s45, 1")
    p("s_cmp_ge_u32 s44, 28")
    p("s_cselect_b32 s48, 1, 0")
    csel(p, "s60", 6144, 7168)
    p("s_lshl_b32 s39, s60, 5")
    p("s_lshl_b32 s40, s45, 12")
    p("v_lshlrev_b32 v1, 4, v0")
    p("v_add_u32 v1, s40, v1")
    p("s_lshl_b32 s41, s45, 10")
    p("s_add_u32 s41, s41, 0x10000")
    p("v_lshrrev_b32 v11, 3, v0")
    p("s_lshl_b32 s3, s45, 3")
    p("v_add_u32 v11, s3, v11")
    p("v_bfe_u32 v12, v0, 4, 1")
    p("s_and_b32 s3, s45, 1")
    p("s_lshl_b32 s3, s3, 1")
    p("v_or_b32 v12, s3, v12")
    p("v_lshlrev_b32 v12, 1, v12")
    p("v_and_b32 v13, 7, v0")
    p("v_xor_b32 v12, v12, v13")
    p("v_lshlrev_b32 v12, 4, v12")
    p("v_mul_lo_u32 v2, v11, s60")
    p("v_add_u32 v2, v2, v12")
    p("v_mul_u32_u24 v3, 6144, v11")
    p("v_add_u32 v3, v3, v12")
    p("s_waitcnt lgkmcnt(0)")
    stamp(p, 8)
    p("s_lshl_b32 s3, s43, 19")
    if XN_OFF: p(f"s_add_u32 s3, s3, {hex(XN_OFF)}")
    srd(p, 12, 4, "s3", 524288)
    p("s_lshl_b32 s61, s44, 8")
    p("s_lshl_b32 s62, s44, 9")
    p(f"s_sub_u32 s62, s62, {28*512 - 4096}")
    p("s_add_u32 s63, s62, 256")
    p("s_cmp_eq_u32 s48, 1")
    p("s_cselect_b32 s64, s62, s61")
    p("s_cselect_b32 s65, s63, s61")
    p("s_cselect_b32 s66, s6, s8")
    p("s_cselect_b32 s67, s7, s9")
    p("s_cselect_b32 s68, s6, s10")
    p("s_cselect_b32 s69, s7, s11")
    csel(p, "s70", D*3*D*2, D*F*2)
    p("s_sub_u32 s71, s70, s64")
    srd(p, 16, 66, "s64", "s71")
    p("s_sub_u32 s71, s70, s65")
    srd(p, 20, 68, "s65", "s71")
    p("s_lshl_b32 s61, s44, 7")
    p(f"s_sub_u32 s71, {hex(D*3*D*2)}, s61")
    srd(p, 24, 6, "s61", "s71")
    p("s_mov_b32 s36, 0")
    p("s_mov_b32 s37, 0")
    p("s_mov_b32 s38, 0")
    def pro_dma(t):
        for i, o in enumerate(dma_ops(p, t, f"d{t}")):
            o()
            if "m0" in p.ins[-1].text and p.ins[-1].text.startswith("s_add"):
                p("s_nop 0")
    pro_dma(0)
    stamp(p, 9)
    pro_dma(1)
    p("v_lshlrev_b32 v4, 4, v0")
    p("s_lshl_b32 s3, s46, 13")
    p("v_add_u32 v4, s3, v4")
    p("v_lshrrev_b32 v11, 4, v0")
    p("v_bfe_u32 v12, v0, 2, 2")
    p("v_and_b32 v13, 3, v0")
    p("v_lshlrev_b32 v14, 10, v11")
    p("v_lshl_add_u32 v14, v12, 7, v14")
    p("v_lshl_add_u32 v14, v13, 3, v14")
    p("v_lshrrev_b32 v15, 1, v12")
    p("v_and_b32 v16, 1, v11")
    p("v_lshl_or_b32 v15, v16, 1, v15")
    p("s_lshl_b32 s3, s47, 14")
    p("s_add_u32 s3, s3, 0x10000")
    for nb in range(4):
        p(f"v_xor_b32 v16, {nb}, v15")
        p(f"v_lshl_add_u32 v16, v16, 5, v14")
        p(f"v_add_u32 v{5+nb}, s3, v16")
    p("s_lshl_b32 s3, s47, 1")
    for i in range(2):
        p(f"s_add_u32 s61, s3, {i}")
        p(f"v_xor_b32 v16, s61, v15")
        p(f"v_lshl_add_u32 v16, v16, 5, v14")
        p(f"v_add_u32 v{9+i}, 0x20000, v16")
    p("v_and_b32 v16, 15, v0")
    p("v_lshrrev_b32 v17, 1, v11")
    p("v_and_b32 v18, 1, v11")
    p("v_lshlrev_b32 v19, 9, v18")
    p("s_cmp_eq_u32 s48, 1")
    p("s_cselect_b32 s61, 10, 12")
    p("v_lshlrev_b32 v12, s61, v17")
    p("v_add_u32 v12, v12, v19")
    p("v_lshl_add_u32 v12, v16, 4, v12")
    p("v_lshl_add_u32 v19, v17, 10, v19")
    p("v_lshrrev_b32 v17, 3, v16")
    p("v_and_b32 v18, 7, v16")
    p("v_lshl_add_u32 v17, v17, 4, v18")
    p("s_cmp_lt_u32 s44, 16")
    p("s_cselect_b64 vcc, -1, 0")
    csel(p, "s61", 256, 128)
    csel(p, "s62", 2048, 4096)
    p(f"s_cselect_b32 s56, {hex(f2u(32**-0.5 * math.log2(math.e)))}, 1.0")
    p("s_mov_b32 s57, s56")
    csel(p, "s63", QF_OFF, KV_OFF)
    p("s_cselect_b32 s64, 17, 18")
    p("v_cndmask_b32 v17, v17, v16, vcc")
    p("v_lshl_add_u32 v13, v17, 4, v19")
    p("v_add_u32 v14, s61, v13")
    p("s_mov_b32 s52, 0")
    p("s_mov_b32 s53, s62")
    p("s_lshl_b32 s54, s62, 1")
    p("s_add_u32 s55, s54, s62")
    p("s_and_b32 s65, s44, 15")
    p("s_lshl_b32 s65, s65, 1")
    p("s_add_u32 s65, s65, s47")
    p("s_lshl_b32 s65, s65, s64")
    p("s_add_u32 s63, s63, s65")
    p("s_lshl_b32 s65, s43, 3")
    p("s_lshl_b32 s66, s46, 2")
    p("s_add_u32 s65, s65, s66")
    p("s_mul_i32 s66, s65, s62")
    p("s_add_u32 s63, s63, s66")
    p("s_lshl_b32 s67, s62, 2")
    srd(p, 32, 4, "s63", "s67")
    p("s_lshl_b32 s66, s43, 1")
    p("s_add_u32 s66, s66, s46")
    p("s_mul_i32 s66, s66, 917504")
    p("s_lshl_b32 s67, s44, 1")
    p("s_add_u32 s67, s67, s47")
    p("s_lshl_b32 s67, s67, 14")
    p("s_add_u32 s66, s66, s67")
    p(f"s_add_u32 s66, s66, {hex(HF_OFF)}")
    p("s_sub_u32 s67, s44, 28")
    p("s_lshl_b32 s67, s67, 2")
    p("s_add_u32 s67, s67, s47")
    p("s_lshl_b32 s67, s67, 19")
    p("s_lshl_b32 s68, s65, 12")
    p("s_add_u32 s67, s67, s68")
    p(f"s_add_u32 s67, s67, {hex(KV_OFF + 2048)}")
    p("s_cmp_eq_u32 s48, 1")
    p("s_cselect_b32 s66, s67, s66")
    csel(p, "s67", 5*262144 + 4*4096 - 2048, 0x4000)
    srd(p, 28, 4, "s66", "s67")
    p("s_mov_b32 s50, 0x2000")
    p(f"s_mov_b32 s58, {hex(f2u(-math.log2(math.e)))}")
    p("s_mov_b32 s59, s58")
    stamp(p, 7)
    if PF:
        p("s_lshl_b32 s3, s2, 2")
        p("s_add_u32 s3, s3, s45")
        p("s_lshl_b32 s3, s3, 6")
        p("v_add_u32 v15, s3, v0")
        p("v_lshlrev_b32 v15, 4, v15")
        srd(p, 64, 72, 0, F * D * 2)
        srd(p, 68, 74, 0, D * D * 2)
        p("s_mov_b32 s49, 0")
    stamp(p, 2)
    p.wait(vm="d0")
    p("s_barrier")
    stamp(p, 3)
    for o in read_ops(p, 0, 0, "f0"): o()
    p("s_mov_b32 s42, 7")
    p("s_cmp_eq_u32 s48, 1")
    p.wait(lg="f0")
    p("s_cbranch_scc1 L_k1_v")
    head = p.mark()
    lin_all = []
    out_text = []
    final = Prog()
    final.ins = list(p.ins)
    for isV in (False, True):
        q = Prog(); q.vmq = list(p.vmq); q.lgq = list(p.lgq)
        sfx = "v" if isV else "f"
        marks = []
        iteration(q, 0, isV, dmas=[2, 3])
        iteration(q, 1, isV, dmas=[4, 5])
        for t in range(2, 30):
            if t % 4 == 2: marks.append(q.mark())
            iteration(q, t, isV, loopctl=(f"L_k1_loop_{sfx}" if t % 4 == 1 else None), dmas=[t + 4],
                      pf={2: "wd", 0: "wo"}.get(t % 4))
        marks.append(q.mark())
        iteration(q, 30, isV, dmas=[])
        iteration(q, 31, isV, dmas=[])
        body = unify([q.ins[marks[i]:marks[i+1]] for i in range(7)])
        stamp(q, 4)
        if STAMP:
            for i in range(5): q(f"v_readlane_b32 s{64+i}, v47, {[6,5,4,2,0][i]}")
        q("s_nop 7")
        q.vmq = []
        if isV:
            epi_v(q)
        else:
            epi_f(q)
        q.vmq = []
        epi_qk(q)
        stamp(q, 5)
        if STAMP: q("s_waitcnt vmcnt(0)")
        stamp(q, 6); stamp_rt(q, 10)
        stamp_out(q, 11, 1, 4, "s45", extra=[64, 65, 66, 67, 68])
        q("s_endpgm")
        lin_all.append([i.text for i in p.ins] + [i.text for i in q.ins])
        if isV:
            final.label("L_k1_v")
        final.ins += q.ins[:marks[0]]
        final.ins.append(Ins(".p2align 6", "dir"))
        final.label(f"L_k1_loop_{sfx}")
        final.ins += body
        final.ins += q.ins[marks[7]:]
    final.label("L_k1_end")
    final("s_endpgm")
    launch = f"; @launch kernel={name} grid=(256,1,1) block=(256,1,1) lds=147456"
    return dict(name=name, prog=final, launch=launch, kd=kd(name, 512, 102, 256), lins=lin_all)
```

```python
from common import *
from gstream import *
import math, struct
from k3_final import tile_map, reduce_exchange, reduce_finish, silu_pack
def f2u(x): return struct.unpack("<I", struct.pack("<f", x))[0]

SA, SB, CA, CB, PA, PB, QR, SEL = 16, 32, 48, 64, 80, 88, 96, 112
OA, OB, LA, LB, KB, VB = 0, 16, 32, 36, 40, 56
S_ = [SA, SB]; C_ = [CA, CB]; P_ = [PA, PB]; O_ = [OA, OB]; L_ = [LA, LB]
def Kf(j, f): b = KB + 8 * (j & 1) + 4 * f; return f"a[{b}:{b+3}]"
def Vf(j, f): b = VB + 8 * (j & 1) + 4 * f; return f"a[{b}:{b+3}]"
def Qf(blk, f): b = QR + 8 * blk + 4 * f; return f"v[{b}:{b+3}]"
def r16(b, f="v"): return f"{f}[{b}:{b+15}]"

def qk(blk, j, c=None):
    c = c or r16(C_[blk])
    return [(f"v_mfma_f32_32x32x16_bf16 {r16(S_[blk])}, {Kf(j,0)}, {Qf(blk,0)}, {c}", 32),
            (f"v_mfma_f32_32x32x16_bf16 {r16(S_[blk])}, {Kf(j,1)}, {Qf(blk,1)}, {r16(S_[blk])}", 32)]
def pv(blk, j):
    o = r16(O_[blk], "a"); P = P_[blk]; l = f"a[{L_[blk]}:{L_[blk]+3}]"
    return [(f"v_mfma_f32_32x32x16_bf16 {o}, {Vf(j,0)}, v[{P}:{P+3}], {o}", 32),
            (f"v_mfma_f32_16x16x32_bf16 {l}, v[{SEL}:{SEL+3}], v[{P}:{P+3}], {l}", 16),
            (f"v_mfma_f32_32x32x16_bf16 {o}, {Vf(j,1)}, v[{P+4}:{P+7}], {o}", 32),
            (f"v_mfma_f32_16x16x32_bf16 {l}, v[{SEL}:{SEL+3}], v[{P+4}:{P+7}], {l}", 16)]
def softmax_valu(blk):
    S = S_[blk]; P = P_[blk]
    e = [(f"v_exp_f32 v{S+i}, v{S+i}", 8) for i in range(16)]
    c = [(f"v_cvt_pk_bf16_f32 v{P+k}, v{S+2*k}, v{S+2*k+1}", 4) for k in range(8)]
    out = []
    for i in range(16):
        out.append(e[i])
        if i >= 2 and i % 2 == 0: out.append(c[(i - 2) // 2])
    out = out[:-2] + [e[15], c[6], c[7]]
    return out

def gen_k2(name="attn_kernel", fused=False):
    p = Prog()
    p("s_cmp_ge_u32 s2, 256")
    p("s_cbranch_scc1 L_k2_end")
    stamp(p, 0); stamp_rt(p, 1)
    p(f"s_load_dwordx2 s[4:5], s[0:1], {KA_WS}")
    if fused: p(f"s_load_dwordx2 s[60:61], s[0:1], {KA_WD}")
    code_prefetch(p, "k2", "L_k2_fallback", 0, 12, 76)
    p("v_lshrrev_b32 v2, 6, v0")
    p("v_and_b32 v0, 63, v0")
    p("v_readfirstlane_b32 s45, v2")
    p("v_lshlrev_b32 v1, 4, v0")
    p("s_and_b32 s44, s2, 7")
    p("s_lshl_b32 s44, s44, 2")
    p("s_lshr_b32 s43, s2, 3")
    p("s_lshr_b32 s3, s43, 3")
    p("s_add_u32 s44, s44, s3")
    p("s_and_b32 s43, s43, 7")
    p("s_waitcnt lgkmcnt(0)")
    p("s_lshl_b32 s3, s44, 18")
    p(f"s_add_u32 s3, s3, {hex(KV_OFF)}")
    srd(p, 12, 4, "s3", 262144)
    p("s_lshl_b32 s3, s44, 17")
    p("s_lshl_b32 s6, s43, 14")
    p("s_add_u32 s3, s3, s6")
    p("s_lshl_b32 s6, s45, 12")
    p("s_add_u32 s3, s3, s6")
    p(f"s_add_u32 s3, s3, {hex(QF_OFF)}")
    srd(p, 16, 4, "s3", 4096)
    p("s_lshl_b32 s36, s45, 12")
    p("s_mov_b32 s37, s36")
    def kv_dma(c):
        ops = [lambda: p("s_mov_b32 m0, s37")]
        ops += [lambda i=i: p.vmem(f"buffer_load_dwordx4 v1, s[12:15], s36 offen offset:{1024*i} lds", f"kv{c}") for i in range(4)]
        ops.append(lambda: p("s_add_u32 s36, s36, 0x4000"))
        ops.append(lambda: p("s_add_u32 s37, s37, 0x4000"))
        ops.append(lambda: p("s_and_b32 s37, s37, 0xffff"))
        return ops
    def run_ops(ops):
        for o in ops:
            o()
            if "m0," in p.ins[-1].text: p("s_nop 0")
    run_ops(kv_dma(0))
    for i in range(4):
        p.vmem(f"buffer_load_dwordx4 v[{QR+4*i}:{QR+4*i+3}], v1, s[16:19], 0 offen offset:{1024*i}", "q")
    g = None
    if fused:
        tile_map(p, "s46", "s47")
        p("s_lshl_b32 s41, s45, 14")
        p("s_add_u32 s41, s41, 0x10000")
        g = GStream(p, acc=72, wfr=200, hbase=128, RH=4, vdma=116, vrd=120, vlin=1, s_h="s39", s_w="s40", srd_h=24, srd_w=28, s_m0="s41", pfx="y")
        g.setup_addrs(0, "s41", 6)
        p("s_mul_i32 s3, s46, 917504")
        p(f"s_mul_i32 s6, s45, {56*4096}")
        p("s_add_u32 s3, s3, s6")
        p(f"s_add_u32 s3, s3, {hex(HF_OFF)}")
        srd(p, 24, 4, "s3", 56 * 4096)
        p(f"s_mul_i32 s3, s45, {896*2048}")
        p("s_lshl_b32 s6, s47, 7")
        p("s_add_u32 s3, s3, s6")
        p(f"s_sub_u32 s7, {896*2048}, s6")
        srd(p, 28, 60, "s3", "s7")
        p("s_mov_b32 s39, 0"); p("s_mov_b32 s40, 0")
        run_ops(g.w_dma(0, 0))
        run_ops(g.h_loads(0))
    if not fused:
        run_ops(kv_dma(1))
        run_ops(kv_dma(2))
    p("s_lshl_b32 s3, s43, 1")
    p("s_lshr_b32 s6, s45, 1")
    p("s_add_u32 s3, s3, s6")
    p("s_lshl_b32 s3, s3, 18")
    p("s_lshl_b32 s6, s44, 13")
    p("s_add_u32 s3, s3, s6")
    p("s_and_b32 s6, s45, 1")
    p("s_lshl_b32 s6, s6, 11")
    p("s_add_u32 s3, s3, s6")
    p(f"s_add_u32 s3, s3, {hex(OF_OFF)}")
    srd(p, 20, 4, "s3", 4096 + 2048)
    p("s_mov_b32 s50, 0x1000")
    p("v_lshrrev_b32 v2, 2, v0")
    p("v_lshrrev_b32 v3, 4, v0")
    p("v_xor_b32 v2, v2, v3")
    p("v_and_b32 v2, 1, v2")
    p("v_and_b32 v3, 3, v0")
    p("v_or_b32 v2, v2, v3")
    p("v_cmp_eq_u32 vcc, 0, v2")
    p("v_mov_b32 v3, 0x3f803f80")
    p("s_nop 0")
    p(f"v_cndmask_b32 v{SEL}, 0, v3, vcc")
    for i in range(1, 4): p(f"v_mov_b32 v{SEL+i}, v{SEL}")
    for i in range(0, 40): p(f"v_accvgpr_write_b32 a{i}, 0")
    for i in range(8): p(f"v_accvgpr_write_b32 a{VB+8+i}, 0")
    for i in range(8): p(f"v_mov_b32 v{PB+i}, 0")
    p("v_mov_b32 v4, v1")
    p("v_add_u32 v5, 0x4000, v1")
    p("s_mov_b32 s38, 0x4000")
    if fused:
        for i in range(128): p(f"v_accvgpr_write_b32 a{72+i}, 0")
        p("s_lshl_b32 s3, s46, 4")
        p("s_add_u32 s3, s3, s47")
        p("s_lshl_b32 s3, s3, 2")
        p("s_add_u32 s3, s3, s45")
        p("s_lshl_b32 s3, s3, 12")
        p(f"s_add_u32 s3, s3, {hex(YG_OFF)}")
        srd(p, 32, 4, "s3", 4096)
        p("s_mov_b32 s51, 0xffff0000")
        p(f"s_mov_b32 s58, {hex(f2u(-math.log2(math.e)))}")
        p("s_mov_b32 s59, s58")
    p.wait(vm=["kv0", "q"])
    p("s_barrier")
    stamp(p, 2)
    for f in range(2):
        p.lds(f"ds_read_b128 {Kf(0,f)}, v4 offset:{1024*f}", "k0")
    p.wait(lg="k0")
    for blk in range(2):
        for t, _ in qk(blk, 0, "0"): p(t)
    if fused:
        run_ops(kv_dma(1))
        run_ops(g.h_loads(1))
        run_ops(g.w_dma(1, 1))
        p(f"s_xor_b32 s41, s41, 0x2000")
    p("s_nop 15")
    for blk in range(2):
        S = S_[blk]
        p(f"v_max3_f32 v6, v{S}, v{S+1}, v{S+2}")
        for i in range(3, 15, 2):
            p(f"v_max3_f32 v6, v6, v{S+i}, v{S+i+1}")
        p(f"v_max_f32 v6, v6, v{S+15}")
        p("v_mov_b32 v7, v6")
        p("s_nop 1")
        p("v_permlane32_swap_b32 v6, v7")
        p("s_nop 1")
        p("v_max_f32 v6, v6, v7")
        for i in range(16):
            p(f"v_sub_f32 v{C_[blk]+i}, 0, v6")
    p("s_nop 1")
    for t, _ in qk(0, 0): p(t)
    if fused:
        run_ops(g.h_loads(2))
        run_ops(kv_dma(2))
        p.wait(vm="yw0")
        run_ops(g.w_reads(0, 0))
    p(f"s_mov_b32 s42, {13 if fused else 16}")
    p("s_nop 15")
    stamp(p, 3)
    pre = p.mark()
    marks = []
    NC = 16
    NKS = 56
    SS = lambda fn: (fn, "s")
    for c in range(NC):
        marks.append(p.mark())
        inloop = (c < 13) if fused else True
        for i in range(4):
            j = 4 * c + i
            k = j
            gm = [(t, 32) for t in g.mfmas(k)] if (fused and k < NKS) else None
            a = qk(1, j) + pv(1, j - 1)
            kaddr, koff = ("v4", (i + 1) * 4096) if i < 3 else ("v5", 0)
            rdV = [lambda f=f: p.lds(f"ds_read_b128 {Vf(j,f)}, v4 offset:{i*4096 + 2048 + 1024*f}", f"v{j}") for f in range(2)]
            rdK = [lambda f=f: p.lds(f"ds_read_b128 {Kf(j+1,f)}, {kaddr} offset:{koff + 1024*f}", f"k{j+1}") for f in range(2)]
            va = softmax_valu(0)
            wK = SS(lambda: p.wait(lg=[f"k{j+1}"]))
            if gm and i == 3 and k + 1 < NKS:
                va = [(f"v_xor_b32 v{g.vrd}, 0x2000, v{g.vrd}", 4), (f"v_xor_b32 v{g.vrd+1}, 0x2000, v{g.vrd+1}", 4)] + va
            if gm:
                mf = [a[0], gm[0], a[1], gm[1], a[2], a[3], gm[2], a[4], a[5], gm[3]]
                ex = {0: [SS(lambda: p.wait(vm=f"yh{k}", lg=f"yf{k}n0", force=True)), rdK[0]],
                      2: [SS(lambda: p.wait(lg=f"yf{k}n1", force=True)), rdK[1]], 4: [rdV[0]], 7: [rdV[1]], 9: [wK]}
                if k + 3 < NKS:
                    hl = g.h_loads(k + 3)
                    for n, pos in enumerate([1, 3, 6, 9]): ex.setdefault(pos, []).append(hl[n])
            else:
                mf = a
                ex = {0: [rdK[0]], 1: [rdK[1]], 2: [rdV[0]], 4: [rdV[1]], 5: [wK]}
            fill(p, mf, va, ex)
            a = qk(0, j + 1) + pv(0, j)
            va = softmax_valu(1)
            wv = SS(lambda: p.wait(lg=[f"v{j}"]))
            ex = {}
            def add(pos, e): ex.setdefault(pos, []).append(e)
            if gm:
                mf = [a[0], gm[4], a[1], gm[5], a[2], a[3], gm[6], a[4], a[5], gm[7]]
                add(3, wv)
                if k + 3 < NKS:
                    add(5, SS(hl[4]))
                d = None
                if k % 2 == 0 and k // 2 + 2 < NKS // 2:
                    fg = k // 2 + 2
                    d = g.w_dma(fg, fg & 1)
                    tail = [d[5]]
                    if i == 2: tail.append(lambda: p("s_xor_b32 s41, s41, 0x2000"))
                if i == 3:
                    d = kv_dma(c + 3)
                    tail = d[5:8]
                if d:
                    add(0, SS(d[0]))
                if k + 1 < NKS:
                    fg1 = (k + 1) // 2
                    wr = g.w_reads(k + 1, (fg1 & 1) * 4096)
                    if (k + 1) % 2 == 0:
                        add(0, SS(lambda: p.wait(vm=f"yw{fg1}", force=True)))
                    for n, pos in enumerate([0, 2, 4, 7]): add(pos, wr[n])
                if d:
                    for n, pos in enumerate([1, 3, 6, 9]): add(pos, d[1 + n])
                    for o in tail: add(9, SS(o))
                if i == 2:
                    ex.setdefault(6, []).insert(0, SS(lambda: p.wait(vm=f"kv{c+1}", force=True)))
                    ex.setdefault(7, []).insert(0, SS(lambda: p("s_barrier")))
                if i == 1 and inloop:
                    add(8, SS(lambda: p("s_sub_u32 s42, s42, 1")))
            else:
                mf = a
                add(1, wv)
                if i == 3 and (c + 3 < NC or not fused):
                    d = kv_dma(c + 3)
                    add(0, SS(d[0])); add(1, d[1]); add(2, d[2]); add(4, d[3]); add(4, d[4]); add(5, SS(d[5])); add(5, SS(d[6])); add(5, SS(d[7]))
                if i == 0 and inloop:
                    add(0, SS(lambda: p("s_sub_u32 s42, s42, 1")))
                if i == 2 and (c + 1 < NC or not fused):
                    add(3, SS(lambda: p.wait(vm=f"kv{c+1}", force=True)))
                    add(4, SS(lambda: p("s_barrier")))
            if i == 3:
                va = [("v_mov_b32 v4, v5", 4)] + va
            fill(p, mf, va, ex)
            if i == 3:
                p("s_add_u32 s38, s38, 0x4000")
                p("s_and_b32 s38, s38, 0xffff")
                if inloop: p("s_cmp_lg_u32 s42, 0")
                p("v_add_u32 v5, s38, v1")
                if inloop: p("s_cbranch_scc1 L_k2_loop")
    marks.append(p.mark())
    NL = 13 if fused else NC
    body = unify([p.ins[marks[i]:marks[i+1]] for i in range(NL)])
    stamp(p, 4)
    for t, _ in pv(1, 63): p(t)
    p("s_nop 15")
    p.label("L_k2_norm")
    p(f"v_accvgpr_read_b32 v6, a{LA}")
    p(f"v_accvgpr_read_b32 v7, a{LB}")
    p("v_max_f32 v8, v6, v7")
    p("v_min_f32 v9, v6, v7")
    p(f"v_mov_b32 v10, {hex(f2u(2.0**30))}")
    p(f"v_mov_b32 v11, {hex(f2u(2.0**-20))}")
    p("v_cmp_nlt_f32 vcc, v6, v10")
    p("v_cmp_nlt_f32 s[6:7], v7, v10")
    p("v_cmp_ngt_f32 s[8:9], v9, v11")
    p("s_nop 1")
    p("s_or_b64 vcc, vcc, s[6:7]")
    p("s_or_b64 vcc, vcc, s[8:9]")
    p("s_cbranch_vccnz L_k2_fallback")
    p.label("L_k2_out")
    p(f"v_accvgpr_read_b32 v6, a{LA}")
    p(f"v_accvgpr_read_b32 v7, a{LB}")
    p("v_rcp_f32 v6, v6")
    p("v_rcp_f32 v7, v7")
    p.vmq = []
    for blk in range(2):
        T = S_[blk]
        for i in range(16):
            p(f"v_accvgpr_read_b32 v{T+i}, a{O_[blk]+i}")
        for i in range(16):
            p(f"v_mul_f32 v{T+i}, v{T+i}, v{6+blk}")
        for s in range(2):
            P = P_[blk] + 4 * s
            p(f"v_cvt_pk_bf16_f32 v{P}, v{T+4*s}, v{T+4*s+1}")
            p(f"v_cvt_pk_bf16_f32 v{P+1}, v{T+4*s+2}, v{T+4*s+3}")
            p(f"v_cvt_pk_bf16_f32 v{P+2}, v{T+4*s+8}, v{T+4*s+9}")
            p(f"v_cvt_pk_bf16_f32 v{P+3}, v{T+4*s+10}, v{T+4*s+11}")
            so = "0" if s == 0 else "s50"
            p.vmem(f"buffer_store_dwordx4 v[{P}:{P+3}], v1, s[20:23], {so} offen offset:{1024*blk}", "st")
    if fused:
        stamp(p, 8)
        p("s_barrier")
        reduce_exchange(p, 72, 16, "s45", 1, 10, lds_base=0x10000, tag="k2y")
        reduce_finish(p, 16, 10, 128)
        silu_pack(p, 16, 128, 64, "s51", "s[58:59]")
        for i in range(4):
            p.vmem(f"buffer_store_dwordx4 v[{64+4*i}:{64+4*i+3}], v1, s[32:35], 0 offen offset:{1024*i}", "st")
    stamp(p, 5)
    if STAMP: p("s_waitcnt vmcnt(0)")
    stamp(p, 6); stamp_rt(p, 9)
    stamp_out(p, 10, 2, 4, "s45")
    p("s_endpgm")
    end_main = p.mark()
    fb = Prog()
    fb.label("L_k2_fallback")
    fb("s_waitcnt vmcnt(0) lgkmcnt(0)")
    fb("v_mov_b32 v8, 0xff800000")
    fb("v_mov_b32 v9, 0xff800000")
    fb("s_mov_b32 s36, 0")
    fb.label("L_k2_fb1")
    for f in range(2):
        fb(f"buffer_load_dwordx4 {Kf(0,f)}, v1, s[12:15], s36 offen offset:{1024*f}")
    fb("s_waitcnt vmcnt(0)")
    for blk in range(2):
        for t, _ in qk(blk, 0, "0"): fb(t)
    fb("s_nop 15")
    for blk in range(2):
        S = S_[blk]
        for i in range(0, 16, 2):
            fb(f"v_max3_f32 v{8+blk}, v{8+blk}, v{S+i}, v{S+i+1}")
    fb("s_add_u32 s36, s36, 0x1000")
    fb("s_cmp_lt_u32 s36, 0x40000")
    fb("s_cbranch_scc1 L_k2_fb1")
    for blk in range(2):
        fb(f"v_mov_b32 v7, v{8+blk}")
        fb("s_nop 1")
        fb(f"v_permlane32_swap_b32 v{8+blk}, v7")
        fb("s_nop 1")
        fb(f"v_max_f32 v6, v{8+blk}, v7")
        for i in range(16):
            fb(f"v_sub_f32 v{C_[blk]+i}, 0, v6")
    for i in range(0, 40): fb(f"v_accvgpr_write_b32 a{i}, 0")
    fb("s_mov_b32 s36, 0")
    fb.label("L_k2_fb2")
    for f in range(2):
        fb(f"buffer_load_dwordx4 {Kf(0,f)}, v1, s[12:15], s36 offen offset:{1024*f}")
        fb(f"buffer_load_dwordx4 {Vf(0,f)}, v1, s[12:15], s36 offen offset:{2048+1024*f}")
    fb("s_waitcnt vmcnt(0)")
    for blk in range(2):
        for t, _ in qk(blk, 0): fb(t)
    fb("s_nop 15")
    for blk in range(2):
        for t, _ in softmax_valu(blk): fb(t)
    fb("s_nop 1")
    for blk in range(2):
        for t, _ in pv(blk, 0): fb(t)
    fb("s_add_u32 s36, s36, 0x1000")
    fb("s_cmp_lt_u32 s36, 0x40000")
    fb("s_nop 15")
    fb("s_cbranch_scc1 L_k2_fb2")
    fb("s_branch L_k2_out")
    final = Prog()
    final.ins = p.ins[:marks[0]] + [Ins(".p2align 6", "dir"), Ins("L_k2_loop:", "label")] + body + p.ins[marks[NL]:] + fb.ins
    final.label("L_k2_end")
    final("s_endpgm")
    lins = [[x.text for x in p.ins], [x.text for x in fb.ins] + [x.text for x in fb.ins]]
    launch = f"; @launch kernel={name} grid=(256,1,1) block=(256,1,1) lds={163840 if fused else 98304}"
    return dict(name=name, prog=final, launch=launch, kd=(kd(name, 256 + 216, 102, 256) if fused else kd(name, 128 + 72, 102, 128)), lins=lins)
```

```python
from build import *
from k0_ln import gen_k0
from k1_gemm1 import gen_k1
from k2_attn import gen_k2
from k3_final import gen_k3
import sys
assemble([gen_k0(), gen_k1(), gen_k2(fused=True), gen_k3(with_y=False)], sys.argv[1] if len(sys.argv) > 1 else "b.s")
```

```python
import os
os.environ.setdefault("K0PF", "128")
from build import *
from k0_ln import gen_k0
from k1_gemm1 import gen_k1
from k2_attn import gen_k2
from k3_final import gen_k3
ks = [gen_k0(), gen_k1(), gen_k2(fused=True), gen_k3(with_y=False)]
assemble(ks, "dup_none.s")
base = open("dup_none.s").read()
for i, k in enumerate(ks):
    s = base.replace(k["launch"], k["launch"] + "\n" + k["launch"])
    open(f"dup_{i}.s", "w").write(s)
```

```python
from common import *

class GStream:
    def __init__(self, p, acc, wfr, hbase, RH, vdma, vrd, vlin, s_h, s_w, srd_h, srd_w, s_m0, pfx="g"):
        self.__dict__.update(locals())
    def accr(self, mb, nb): return f"a[{self.acc+16*(2*mb+nb)}:{self.acc+16*(2*mb+nb)+15}]"
    def hreg(self, k, mb):
        b = self.hbase + 16 * (k % self.RH) + 4 * mb
        return f"v[{b}:{b+3}]"
    def wreg(self, k, nb, e=None):
        b = self.wfr + 8 * (k & 1) + 4 * nb
        if e is None: return f"a[{b}:{b+3}]"
        return f"a[{b+2*e}:{b+2*e+1}]"
    def mfmas(self, k, first=False):
        out = []
        for mb in range(4):
            for nb in ((0, 1) if mb % 2 == 0 else (1, 0)):
                c = "0" if first else self.accr(mb, nb)
                out.append(f"v_mfma_f32_32x32x16_bf16 {self.accr(mb, nb)}, {self.wreg(k, nb)}, {self.hreg(k, mb)}, {c}")
        return out
    def h_loads(self, k):
        p = self.p
        if getattr(self, "vrot", None) is not None:
            ops = [lambda mb=mb: p.vmem(f"buffer_load_dwordx4 {self.hreg(k, mb)}, v{self.vrot+mb}, s[{self.srd_h}:{self.srd_h+3}], {self.s_h} offen{getattr(self, 'hsc', '')}", f"{self.pfx}h{k}")
                   for mb in range(4)]
        else:
            ops = [lambda mb=mb: p.vmem(f"buffer_load_dwordx4 {self.hreg(k, mb)}, v{self.vlin}, s[{self.srd_h}:{self.srd_h+3}], {self.s_h} offen offset:{1024*mb}", f"{self.pfx}h{k}")
                   for mb in range(4)]
        ops.append(lambda: p(f"s_add_u32 {self.s_h}, {self.s_h}, 0x1000"))
        return ops
    def w_dma(self, fg, slot_in_pair):
        p = self.p
        ops = [lambda: p(f"s_add_u32 m0, {self.s_m0}, {slot_in_pair*4096}")]
        ops += [lambda i=i: p.vmem(f"buffer_load_dwordx4 v{self.vdma+i}, s[{self.srd_w}:{self.srd_w+3}], {self.s_w} offen offset:{1024*i} lds", f"{self.pfx}w{fg}")
                for i in range(4)]
        ops.append(lambda: p(f"s_add_u32 {self.s_w}, {self.s_w}, 0x10000"))
        return ops
    def w_reads(self, k, slot_off):
        p = self.p
        s = k & 1
        return [lambda nb=nb, e=e: p.lds(f"ds_read_b64_tr_b16 {self.wreg(k, nb, e)}, v{self.vrd+nb} offset:{slot_off + e*2048 + s*1024}", f"{self.pfx}f{k}n{nb}")
                for nb in range(2) for e in range(2)]
    def setup_addrs(self, lane, s_ldsbase, t0):
        p = self.p
        a, b, c = t0, t0 + 1, t0 + 2
        p(f"v_lshrrev_b32 v{a}, 3, v{lane}")
        p(f"v_bfe_u32 v{b}, v{lane}, 4, 1")
        p(f"v_lshlrev_b32 v{b}, 2, v{b}")
        p(f"v_and_b32 v{c}, 7, v{lane}")
        p(f"v_xor_b32 v{b}, v{b}, v{c}")
        p(f"v_lshlrev_b32 v{b}, 4, v{b}")
        p(f"v_lshl_add_u32 v{self.vdma}, v{a}, 11, v{b}")
        for i in range(1, 4):
            p(f"v_add_u32 v{self.vdma+i}, {hex(i*(16384-1024))}, v{self.vdma}")
        p(f"v_lshrrev_b32 v{a}, 5, v{lane}")
        p(f"v_lshlrev_b32 v{a}, 9, v{a}")
        p(f"v_bfe_u32 v{b}, v{lane}, 2, 2")
        p(f"v_lshl_add_u32 v{a}, v{b}, 7, v{a}")
        p(f"v_bfe_u32 v{c}, v{lane}, 4, 1")
        p(f"v_lshl_add_u32 v{a}, v{c}, 5, v{a}")
        p(f"v_and_b32 v{c}, 3, v{lane}")
        p(f"v_lshl_add_u32 v{a}, v{c}, 3, v{a}")
        p(f"v_add_u32 v{a}, {s_ldsbase}, v{a}")
        p(f"v_lshrrev_b32 v{b}, 1, v{b}")
        p(f"v_lshl_add_u32 v{self.vrd}, v{b}, 6, v{a}")
        p(f"v_xor_b32 v{b}, 1, v{b}")
        p(f"v_lshl_add_u32 v{self.vrd+1}, v{b}, 6, v{a}")

def fill(p, mf, valu, extra):
    caps = []
    ext = {}
    for i in range(len(mf)):
        l = []
        for e in extra.get(i, []):
            l.append(e if isinstance(e, tuple) else (e, "v"))
        ext[i] = l
    for k in extra: assert 0 <= k < len(mf), k
    for i, (t, d) in enumerate(mf):
        c = d - 8 - 4 * len(ext[i])
        if ext[i] and ext[i][0][1] == "s": c += 4
        caps.append(max(c, 0))
    tot_c = sum(caps); tot_v = sum(c for _, c in valu)
    vi = 0; cum_c = 0; cum_v = 0
    for i, (t, d) in enumerate(mf):
        p(t)
        for fn, _ in ext[i]: fn()
        cum_c += caps[i]
        if tot_v <= tot_c:
            used = 0
            rem_cap_after = tot_c - cum_c
            while vi < len(valu):
                c = valu[vi][1]
                rem_v = tot_v - cum_v
                must = rem_v > rem_cap_after or i == len(mf) - 1
                target = tot_v * cum_c / max(tot_c, 1)
                if (used + c <= caps[i] and cum_v + c / 2 <= target + 4) or must:
                    p(valu[vi][0]); cum_v += c; used += c; vi += 1
                else:
                    break
        else:
            target = tot_v * cum_c / max(tot_c, 1)
            while vi < len(valu) and (cum_v + valu[vi][1] / 2 <= target or i == len(mf) - 1):
                p(valu[vi][0]); cum_v += valu[vi][1]; vi += 1
```

```python
from common import *

def gen_k0(name="ln_kernel"):
    p = Prog()
    p("s_cmp_ge_u32 s2, 256")
    p("s_cbranch_scc1 L_k0_end")
    p(f"s_load_dwordx2 s[4:5], s[0:1], {KA_X}")
    p(f"s_load_dwordx2 s[6:7], s[0:1], {KA_WS}")
    R = int(os.environ.get("K0PF", "256"))
    if R:
        p(f"s_load_dwordx2 s[22:23], s[0:1], {KA_WQKV}")
        p(f"s_load_dwordx4 s[24:27], s[0:1], {KA_WG}")
    p("v_and_b32 v1, 7, v0")
    p("v_lshrrev_b32 v2, 3, v0")
    p("s_lshl_b32 s3, s2, 14")
    p("v_lshlrev_b32 v3, 11, v1")
    p("v_lshl_add_u32 v3, v2, 4, v3")
    p("s_waitcnt lgkmcnt(0)")
    srd(p, 8, 4, 0, S * D * 2)
    srd(p, 12, 6, XN_OFF, S * D * 2)
    for i in range(4):
        p.vmem(f"buffer_load_dwordx4 v[{8+4*i}:{11+4*i}], v3, s[8:11], s3 offen offset:{512*i}", "x")
    if R:
        p("v_lshlrev_b32 v7, 8, v0")
        p("v_add_u32 v7, s2, v7")
        p("v_lshlrev_b32 v7, 7, v7")
        srd(p, 28, 22, 0, R * 6144)
        srd(p, 32, 24, 0, R * 7168)
        srd(p, 36, 26, 0, R * 7168)
        for i in range(3):
            p.vmem(f"buffer_load_dword v{96+i}, v7, s[{28+4*i}:{31+4*i}], 0 offen", "pf")
    if os.environ.get("K0CPF", "1") == "1":
        code_prefetch(p, "k0", "L_all_end", 0, 100, 40, n=2)
    srd(p, 44, 6, FL_OFF, 16384)
    p("v_mov_b32 v102, 0")
    p("v_lshlrev_b32 v103, 2, v0")
    p("v_cmp_gt_u32 vcc, 16, v0")
    p("s_lshl_b32 s21, s2, 6")
    p("s_and_saveexec_b64 s[42:43], vcc")
    p("s_cbranch_execz L_k0_nofl")
    p("buffer_store_dword v102, v103, s[44:47], s21 offen")
    p.label("L_k0_nofl")
    p("s_mov_b64 exec, s[42:43]")
    p("s_lshr_b32 s16, s2, 5")
    p("s_lshl_b32 s16, s16, 19")
    p("s_lshr_b32 s17, s2, 1")
    p("s_and_b32 s17, s17, 15")
    p("s_lshl_b32 s17, s17, 10")
    p("s_add_u32 s16, s16, s17")
    p("s_and_b32 s17, s2, 1")
    p("s_lshl_b32 s17, s17, 7")
    p("s_add_u32 s16, s16, s17")
    p("s_add_u32 s17, s16, 0x20000")
    p("s_add_u32 s18, s16, 0x40000")
    p("s_add_u32 s19, s16, 0x60000")
    p("v_lshrrev_b32 v4, 2, v2")
    p("v_lshlrev_b32 v4, 14, v4")
    p("v_and_b32 v5, 3, v2")
    p("v_lshl_add_u32 v4, v5, 8, v4")
    p("v_lshl_add_u32 v4, v1, 4, v4")
    p("v_mul_u32_u24 v6, 80, v1")
    p("v_lshrrev_b32 v5, 4, v0")
    p("v_lshl_add_u32 v5, v5, 2, v6")
    p("s_mov_b32 s20, 0xffff0000")
    X = 32
    for i in range(4):
        if i == 0:
            n = p._cnt(p.vmq, ["x"])
            p.wait(vm="x")
    for k in range(16):
        p(f"v_lshlrev_b32 v{X+2*k}, 16, v{8+k}")
        p(f"v_and_b32 v{X+2*k+1}, s20, v{8+k}")
    def reduce(src_regs, lds_off, dst):
        t = [24, 25, 26, 27]
        for a in range(4):
            p(f"v_add_f32 v{t[a]}, v{src_regs[a]}, v{src_regs[a+4]}")
        for k in range(8, len(src_regs)):
            p(f"v_add_f32 v{t[k%4]}, v{t[k%4]}, v{src_regs[k]}")
        p("v_add_f32 v24, v24, v25")
        p("v_add_f32 v26, v26, v27")
        p("v_add_f32 v24, v24, v26")
        p("s_nop 1")
        p("v_add_f32_dpp v24, v24, v24 row_ror:8 row_mask:0xf bank_mask:0xf")
        p.lds(f"ds_write_b32 v5, v24 offset:{lds_off}", "w")
        p.wait(lg="w")
        p("s_barrier")
        for j in range(4):
            p.lds(f"ds_read_b128 v[{8+4*j}:{11+4*j}], v6 offset:{lds_off+16*j}", "r")
        p.wait(lg="r")
        for j in range(8):
            p(f"v_add_f32 v{8+j}, v{8+j}, v{16+j}")
        for j in range(4):
            p(f"v_add_f32 v{8+j}, v{8+j}, v{12+j}")
        p("v_add_f32 v8, v8, v9")
        p("v_add_f32 v10, v10, v11")
        p(f"v_add_f32 v{dst}, v8, v10")
    reduce(list(range(X, X+32)), 0, 28)
    p("v_mul_f32 v28, 0x3a800000, v28")
    for k in range(32):
        p(f"v_sub_f32 v{64+k}, v{X+k}, v28")
    for k in range(32):
        p(f"v_mul_f32 v{64+k}, v{64+k}, v{64+k}")
    reduce(list(range(64, 96)), 1024, 29)
    p("v_mul_f32 v29, 0x3a800000, v29")
    p("v_cvt_pk_bf16_f32 v30, v28, v29")
    p("v_lshlrev_b32 v28, 16, v30")
    p("v_and_b32 v29, s20, v30")
    p("v_add_f32 v29, 0x3727c5ac, v29")
    p("v_cvt_pk_bf16_f32 v30, v29, v29")
    p("v_and_b32 v29, s20, v30")
    p("v_sqrt_f32 v29, v29")
    p("s_nop 0")
    p("v_cvt_pk_bf16_f32 v30, v29, v29")
    p("v_and_b32 v29, s20, v30")
    p("v_rcp_f32 v29, v29")
    for k in range(32):
        p(f"v_sub_f32 v{X+k}, v{X+k}, v28")
    for k in range(16):
        p(f"v_cvt_pk_bf16_f32 v{64+k}, v{X+2*k}, v{X+2*k+1}")
    for k in range(16):
        p(f"v_lshlrev_b32 v{X+2*k}, 16, v{64+k}")
        p(f"v_and_b32 v{X+2*k+1}, s20, v{64+k}")
    for k in range(32):
        p(f"v_mul_f32 v{X+k}, v{X+k}, v29")
    for i in range(4):
        for k in range(4):
            kk = 4 * i + k
            p(f"v_cvt_pk_bf16_f32 v{8+kk}, v{X+2*kk}, v{X+2*kk+1}")
        p.vmem(f"buffer_store_dwordx4 v[{8+4*i}:{11+4*i}], v4, s[12:15], s{16+i} offen", "st")
    p.label("L_k0_end")
    p("s_endpgm")
    launch = f"; @launch kernel={name} grid=(256,1,1) block=(256,1,1) lds=2048"
    return dict(name=name, prog=p, launch=launch, kd=kd(name, 104, 48, 104), lin=[i.text for i in p.ins])
```

```python
from common import *
import math, struct

def f2u(x):
    return struct.unpack("<I", struct.pack("<f", x))[0]

def acc(mb, nb):
    if nb < 4:
        return ("v", 48 + 4 * (mb * 4 + nb))
    if nb < 8:
        if mb < 5:
            return ("v", 48 + 128 + 4 * (mb * 4 + nb - 4))
        return ("a", 144 + 4 * ((mb - 5) * 4 + nb - 4))
    return ("a", 144 + 48 + 4 * (mb * 2 + nb - 8))

def fragA(st, mb): return ("a", 72 * st + 4 * mb)
def fragB(st, nb): return ("a", 72 * st + 32 + 4 * nb)

def dma_ops(p, stage, tag):
    ops = []
    ops.append(lambda: p(f"s_add_u32 m0, s40, {stage*16384}"))
    for i in range(4):
        ops.append(lambda i=i: p.vmem(f"buffer_load_dwordx4 v1, s[12:15], s36 offen offset:{1024*i} lds", tag))
    for u in range(5):
        srdn = [16, 16, 20, 20, 24][u]
        voff = "v2" if u < 4 else "v3"
        soff = "s37" if u < 4 else "s38"
        io = 128 if u in (1, 3) else 0
        ops.append(lambda u=u, io=io: p(f"s_add_u32 m0, s41, {u*16384 + stage*4096 - io}"))
        ops.append(lambda srdn=srdn, voff=voff, soff=soff, io=io: p.vmem(
            f"buffer_load_dwordx4 {voff}, s[{srdn}:{srdn+3}], {soff} offen offset:{io} lds", tag))
    ops.append(lambda: p("s_add_u32 s36, s36, 0x4000"))
    ops.append(lambda: p("s_add_u32 s37, s37, s39"))
    ops.append(lambda: p(f"s_add_u32 s38, s38, {32*6144}"))
    return ops

def read_ops(p, stage, st, tag):
    ops = []
    ra = [lambda mb=mb: p.lds(f"ds_read_b128 {vr(fragA(st, mb), 4)}, v4 offset:{stage*16384 + mb*1024}", tag) for mb in range(8)]
    rb = []
    for nb in range(10):
        for e in range(2):
            f, b = fragB(st, nb)
            if nb < 8:
                a = 5 + (nb & 3); off = stage * 4096 + e * 512 + (nb >> 2) * 32768
            else:
                a = 9 + (nb - 8); off = stage * 4096 + e * 512
            rb.append(lambda b=b, e=e, a=a, off=off: p.lds(f"ds_read_b64_tr_b16 a[{b+2*e}:{b+2*e+1}], v{a} offset:{off}", tag))
    out = []
    ia = ib = 0
    while ia < len(ra) or ib < len(rb):
        if ia < len(ra): out.append(ra[ia]); ia += 1
        for _ in range(3 if ia > 4 else 2):
            if ib < len(rb): out.append(rb[ib]); ib += 1
    return out

def merge_ops(a, b):
    out = []
    na, nb = len(a), len(b)
    ia = ib = 0
    while ia < na or ib < nb:
        if ib >= nb or (ia < na and ia * nb <= ib * na):
            out.append(a[ia]); ia += 1
        else:
            out.append(b[ib]); ib += 1
    return out

PF = os.environ.get('K1PF', '1') == '1'
def iteration(p, t, isV, NK=32, loopctl=None, dmas=None, pf=None):
    st = t & 1
    slots = {}
    def add(k, fn): slots.setdefault(k, []).append(fn)
    if t + 1 < NK:
        add(0, lambda: p.wait(vm=f"d{t+1}", force=True))
        add(1, lambda: p("s_barrier"))
        rd = read_ops(p, (t + 1) & 3, 1 - st, f"f{t+1}")
        dm = []
        for d in dmas: dm += dma_ops(p, d & 3, f"d{d}")
        k0, k1 = 2, 66
        for i, o in enumerate(rd):
            add(k0 + (i * (k1 - k0)) // max(len(rd), 1), o)
        k0, k1 = 3, 76
        for i, o in enumerate(dm):
            add(k0 + (i * (k1 - k0)) // max(len(dm), 1), o)
    if PF and pf == "wd":
        add(77, lambda: p.vmem("buffer_load_dword v11, v15, s[64:67], s49 offen", "pf"))
        add(78, lambda: p("s_add_u32 s49, s49, 0x100000"))
    if PF and pf == "wo":
        add(76, lambda: p("s_sub_u32 s51, s49, 0x100000"))
        add(77, lambda: p.vmem("buffer_load_dword v11, v15, s[68:71], s51 offen", "pf"))
    if loopctl:
        add(77, lambda: p("s_sub_u32 s42, s42, 1"))
        add(78, lambda: p("s_cmp_lg_u32 s42, 0"))
    k = 0
    for mb in range(8):
        order = range(10) if mb % 2 == 0 else range(9, -1, -1)
        for nb in order:
            d = vr(acc(mb, nb), 4)
            c = "0" if t == 0 else d
            xa = vr(fragA(st, mb), 4); wb = vr(fragB(st, nb), 4)
            if isV and nb < 8:
                p(f"v_mfma_f32_16x16x32_bf16 {d}, {xa}, {wb}, {c}")
            else:
                p(f"v_mfma_f32_16x16x32_bf16 {d}, {wb}, {xa}, {c}")
            for fn in slots.get(k, []): fn()
            k += 1
    if STAMP and loopctl: p("s_memtime s[76:77]")
    if t + 1 < NK:
        p.wait(lg=f"f{t+1}")
    if STAMP and loopctl:
        p("s_waitcnt lgkmcnt(0)")
        p("s_mov_b32 m0, s42")
        p("s_nop 1")
        p("v_writelane_b32 v47, s76, m0")
    if loopctl:
        p(f"s_cbranch_scc1 {loopctl}")

def get4(p, tile, tmp):
    f, b = tile
    if f == "v": return b
    for i in range(4):
        p(f"v_accvgpr_read_b32 v{tmp+i}, a{b+i}")
    return tmp

STP = os.environ.get('K1ST', 'sc1')
def epi_qk(p):
    for mb in range(8):
        T = 16 + 16 * (mb & 1)
        a = get4(p, acc(mb, 8), T)
        b = get4(p, acc(mb, 9), T + 4)
        for i in range(0, 8, 2):
            p(f"v_pk_mul_f32 v[{T+i}:{T+i+1}], v[{T+i}:{T+i+1}], s[56:57]")
        for i in range(4):
            p(f"v_cvt_pk_bf16_f32 v{T+8+i}, v{T+2*i}, v{T+2*i+1}")
        p.vmem(f"buffer_store_dwordx4 v[{T+8}:{T+11}], v{13+(mb&1)}, s[32:35], s{52+(mb>>1)} offen {STP}", "st")

def epi_f(p):
    n = 0
    for mb in range(8):
        for pr in range(2):
            T = 16 + 16 * (n & 1); n += 1
            g0 = acc(mb, 2 * pr)[1]; g1 = acc(mb, 2 * pr + 1)[1]
            assert g1 == g0 + 4
            for i in range(0, 8, 2):
                p(f"v_pk_mul_f32 v[{g0+i}:{g0+i+1}], v[{g0+i}:{g0+i+1}], s[58:59]")
            u0 = get4(p, acc(mb, 4 + 2 * pr), T)
            u1 = get4(p, acc(mb, 5 + 2 * pr), T + 4)
            assert u1 == u0 + 4
            for i in range(8):
                p(f"v_exp_f32 v{g0+i}, v{g0+i}")
            for i in range(0, 8, 2):
                p(f"v_pk_add_f32 v[{g0+i}:{g0+i+1}], v[{g0+i}:{g0+i+1}], 1.0 op_sel_hi:[1,0]")
            for i in range(8):
                p(f"v_rcp_f32 v{g0+i}, v{g0+i}")
            for i in range(0, 8, 2):
                p(f"v_pk_mul_f32 v[{g0+i}:{g0+i+1}], v[{g0+i}:{g0+i+1}], v[{u0+i}:{u0+i+1}]")
            for i in range(4):
                p(f"v_cvt_pk_bf16_f32 v{T+8+i}, v{g0+2*i}, v{g0+2*i+1}")
            so = "0" if pr == 0 else "s50"
            p.vmem(f"buffer_store_dwordx4 v[{T+8}:{T+11}], v12, s[28:31], {so} offen offset:{(mb>>1)*1024 + (mb&1)*256} {STP}", "st")

def epi_v(p):
    n = 0
    for j in range(4):
        for nb in range(8):
            T = 16 + 16 * (n & 1); n += 1
            a = get4(p, acc(2 * j, nb), T)
            b = get4(p, acc(2 * j + 1, nb), T + 4)
            hd = (nb >> 2) * 4 + ((nb & 3) >> 1)
            p(f"s_mov_b32 s51, {hex(hd * 262144 + j * 4096)}")
            p(f"v_cvt_pk_bf16_f32 v{T+8}, v{a}, v{a+1}")
            p(f"v_cvt_pk_bf16_f32 v{T+9}, v{a+2}, v{a+3}")
            p(f"v_cvt_pk_bf16_f32 v{T+10}, v{b}, v{b+1}")
            p(f"v_cvt_pk_bf16_f32 v{T+11}, v{b+2}, v{b+3}")
            p.vmem(f"buffer_store_dwordx4 v[{T+8}:{T+11}], v12, s[28:31], s51 offen offset:{(nb&1)*256} {STP}", "st")
            if len(p.vmq) > 40:
                p.vmq = p.vmq[-20:]

def gen_k1(name="gemm1_kernel"):
    p = Prog()
    p("s_cmp_ge_u32 s2, 256")
    p("s_cbranch_scc1 L_k1_end")
    stamp(p, 0); stamp_rt(p, 1)
    p(f"s_load_dwordx2 s[4:5], s[0:1], {KA_WS}")
    p(f"s_load_dwordx2 s[6:7], s[0:1], {KA_WQKV}")
    p(f"s_load_dwordx4 s[8:11], s[0:1], {KA_WG}")
    if PF:
        p(f"s_load_dwordx2 s[72:73], s[0:1], {KA_WD}")
        p(f"s_load_dwordx2 s[74:75], s[0:1], {KA_WO}")
    code_prefetch(p, "k1", "L_k1_end", 0, 20, 76)
    p("v_lshrrev_b32 v11, 6, v0")
    p("v_and_b32 v0, 63, v0")
    p("v_readfirstlane_b32 s45, v11")
    p("s_and_b32 s3, s2, 7")
    p("s_lshr_b32 s43, s2, 3")
    p("s_lshr_b32 s61, s43, 3")
    p("s_and_b32 s43, s43, 7")
    p("s_mul_i32 s44, s3, 3")
    p("s_add_u32 s44, s44, s61")
    p("s_lshr_b32 s62, s43, 2")
    p("s_xor_b32 s62, s62, s3")
    p("s_and_b32 s62, s62, 1")
    p("s_lshl_b32 s62, s62, 2")
    p("s_lshr_b32 s63, s3, 1")
    p("s_sub_u32 s63, s63, s62")
    p("s_add_u32 s63, s63, 28")
    p("s_cmp_eq_u32 s61, 3")
    p("s_cselect_b32 s44, s63, s44")
    p("s_lshr_b32 s46, s45, 1")
    p("s_and_b32 s47, s45, 1")
    p("s_cmp_ge_u32 s44, 28")
    p("s_cselect_b32 s48, 1, 0")
    csel(p, "s60", 6144, 7168)
    p("s_lshl_b32 s39, s60, 5")
    p("s_lshl_b32 s40, s45, 12")
    p("v_lshlrev_b32 v1, 4, v0")
    p("v_add_u32 v1, s40, v1")
    p("s_lshl_b32 s41, s45, 10")
    p("s_add_u32 s41, s41, 0x10000")
    p("v_lshrrev_b32 v11, 3, v0")
    p("s_lshl_b32 s3, s45, 3")
    p("v_add_u32 v11, s3, v11")
    p("v_bfe_u32 v12, v0, 4, 1")
    p("s_and_b32 s3, s45, 1")
    p("s_lshl_b32 s3, s3, 1")
    p("v_or_b32 v12, s3, v12")
    p("v_lshlrev_b32 v12, 1, v12")
    p("v_and_b32 v13, 7, v0")
    p("v_xor_b32 v12, v12, v13")
    p("v_lshlrev_b32 v12, 4, v12")
    p("v_mul_lo_u32 v2, v11, s60")
    p("v_add_u32 v2, v2, v12")
    p("v_mul_u32_u24 v3, 6144, v11")
    p("v_add_u32 v3, v3, v12")
    p("s_waitcnt lgkmcnt(0)")
    stamp(p, 8)
    p("s_lshl_b32 s3, s43, 19")
    if XN_OFF: p(f"s_add_u32 s3, s3, {hex(XN_OFF)}")
    srd(p, 12, 4, "s3", 524288)
    p("s_lshl_b32 s61, s44, 8")
    p("s_lshl_b32 s62, s44, 9")
    p(f"s_sub_u32 s62, s62, {28*512 - 4096}")
    p("s_add_u32 s63, s62, 256")
    p("s_cmp_eq_u32 s48, 1")
    p("s_cselect_b32 s64, s62, s61")
    p("s_cselect_b32 s65, s63, s61")
    p("s_cselect_b32 s66, s6, s8")
    p("s_cselect_b32 s67, s7, s9")
    p("s_cselect_b32 s68, s6, s10")
    p("s_cselect_b32 s69, s7, s11")
    csel(p, "s70", D*3*D*2, D*F*2)
    p("s_sub_u32 s71, s70, s64")
    srd(p, 16, 66, "s64", "s71")
    p("s_sub_u32 s71, s70, s65")
    srd(p, 20, 68, "s65", "s71")
    p("s_lshl_b32 s61, s44, 7")
    p(f"s_sub_u32 s71, {hex(D*3*D*2)}, s61")
    srd(p, 24, 6, "s61", "s71")
    p("s_mov_b32 s36, 0")
    p("s_mov_b32 s37, 0")
    p("s_mov_b32 s38, 0")
    def pro_dma(t):
        for i, o in enumerate(dma_ops(p, t, f"d{t}")):
            o()
            if "m0" in p.ins[-1].text and p.ins[-1].text.startswith("s_add"):
                p("s_nop 0")
    pro_dma(0)
    stamp(p, 9)
    pro_dma(1)
    p("v_lshlrev_b32 v4, 4, v0")
    p("s_lshl_b32 s3, s46, 13")
    p("v_add_u32 v4, s3, v4")
    p("v_lshrrev_b32 v11, 4, v0")
    p("v_bfe_u32 v12, v0, 2, 2")
    p("v_and_b32 v13, 3, v0")
    p("v_lshlrev_b32 v14, 10, v11")
    p("v_lshl_add_u32 v14, v12, 7, v14")
    p("v_lshl_add_u32 v14, v13, 3, v14")
    p("v_lshrrev_b32 v15, 1, v12")
    p("v_and_b32 v16, 1, v11")
    p("v_lshl_or_b32 v15, v16, 1, v15")
    p("s_lshl_b32 s3, s47, 14")
    p("s_add_u32 s3, s3, 0x10000")
    for nb in range(4):
        p(f"v_xor_b32 v16, {nb}, v15")
        p(f"v_lshl_add_u32 v16, v16, 5, v14")
        p(f"v_add_u32 v{5+nb}, s3, v16")
    p("s_lshl_b32 s3, s47, 1")
    for i in range(2):
        p(f"s_add_u32 s61, s3, {i}")
        p(f"v_xor_b32 v16, s61, v15")
        p(f"v_lshl_add_u32 v16, v16, 5, v14")
        p(f"v_add_u32 v{9+i}, 0x20000, v16")
    p("v_and_b32 v16, 15, v0")
    p("v_lshrrev_b32 v17, 1, v11")
    p("v_and_b32 v18, 1, v11")
    p("v_lshlrev_b32 v19, 9, v18")
    p("s_cmp_eq_u32 s48, 1")
    p("s_cselect_b32 s61, 10, 12")
    p("v_lshlrev_b32 v12, s61, v17")
    p("v_add_u32 v12, v12, v19")
    p("v_lshl_add_u32 v12, v16, 4, v12")
    p("v_lshl_add_u32 v19, v17, 10, v19")
    p("v_lshrrev_b32 v17, 3, v16")
    p("v_and_b32 v18, 7, v16")
    p("v_lshl_add_u32 v17, v17, 4, v18")
    p("s_cmp_lt_u32 s44, 16")
    p("s_cselect_b64 vcc, -1, 0")
    csel(p, "s61", 256, 128)
    csel(p, "s62", 2048, 4096)
    p(f"s_cselect_b32 s56, {hex(f2u(32**-0.5 * math.log2(math.e)))}, 1.0")
    p("s_mov_b32 s57, s56")
    csel(p, "s63", QF_OFF, KV_OFF)
    p("s_cselect_b32 s64, 17, 18")
    p("v_cndmask_b32 v17, v17, v16, vcc")
    p("v_lshl_add_u32 v13, v17, 4, v19")
    p("v_add_u32 v14, s61, v13")
    p("s_mov_b32 s52, 0")
    p("s_mov_b32 s53, s62")
    p("s_lshl_b32 s54, s62, 1")
    p("s_add_u32 s55, s54, s62")
    p("s_and_b32 s65, s44, 15")
    p("s_lshl_b32 s65, s65, 1")
    p("s_add_u32 s65, s65, s47")
    p("s_lshl_b32 s65, s65, s64")
    p("s_add_u32 s63, s63, s65")
    p("s_lshl_b32 s65, s43, 3")
    p("s_lshl_b32 s66, s46, 2")
    p("s_add_u32 s65, s65, s66")
    p("s_mul_i32 s66, s65, s62")
    p("s_add_u32 s63, s63, s66")
    p("s_lshl_b32 s67, s62, 2")
    srd(p, 32, 4, "s63", "s67")
    p("s_lshl_b32 s66, s43, 1")
    p("s_add_u32 s66, s66, s46")
    p("s_mul_i32 s66, s66, 917504")
    p("s_lshl_b32 s67, s44, 1")
    p("s_add_u32 s67, s67, s47")
    p("s_lshl_b32 s67, s67, 14")
    p("s_add_u32 s66, s66, s67")
    p(f"s_add_u32 s66, s66, {hex(HF_OFF)}")
    p("s_sub_u32 s67, s44, 28")
    p("s_lshl_b32 s67, s67, 2")
    p("s_add_u32 s67, s67, s47")
    p("s_lshl_b32 s67, s67, 19")
    p("s_lshl_b32 s68, s65, 12")
    p("s_add_u32 s67, s67, s68")
    p(f"s_add_u32 s67, s67, {hex(KV_OFF + 2048)}")
    p("s_cmp_eq_u32 s48, 1")
    p("s_cselect_b32 s66, s67, s66")
    csel(p, "s67", 5*262144 + 4*4096 - 2048, 0x4000)
    srd(p, 28, 4, "s66", "s67")
    p("s_mov_b32 s50, 0x2000")
    p(f"s_mov_b32 s58, {hex(f2u(-math.log2(math.e)))}")
    p("s_mov_b32 s59, s58")
    stamp(p, 7)
    if PF:
        p("s_lshl_b32 s3, s2, 2")
        p("s_add_u32 s3, s3, s45")
        p("s_lshl_b32 s3, s3, 6")
        p("v_add_u32 v15, s3, v0")
        p("v_lshlrev_b32 v15, 4, v15")
        srd(p, 64, 72, 0, F * D * 2)
        srd(p, 68, 74, 0, D * D * 2)
        p("s_mov_b32 s49, 0")
    stamp(p, 2)
    p.wait(vm="d0")
    p("s_barrier")
    stamp(p, 3)
    for o in read_ops(p, 0, 0, "f0"): o()
    p("s_mov_b32 s42, 7")
    p("s_cmp_eq_u32 s48, 1")
    p.wait(lg="f0")
    p("s_cbranch_scc1 L_k1_v")
    head = p.mark()
    lin_all = []
    out_text = []
    final = Prog()
    final.ins = list(p.ins)
    for isV in (False, True):
        q = Prog(); q.vmq = list(p.vmq); q.lgq = list(p.lgq)
        sfx = "v" if isV else "f"
        marks = []
        iteration(q, 0, isV, dmas=[2, 3])
        iteration(q, 1, isV, dmas=[4, 5])
        for t in range(2, 30):
            if t % 4 == 2: marks.append(q.mark())
            iteration(q, t, isV, loopctl=(f"L_k1_loop_{sfx}" if t % 4 == 1 else None), dmas=[t + 4],
                      pf={2: "wd", 0: "wo"}.get(t % 4))
        marks.append(q.mark())
        iteration(q, 30, isV, dmas=[])
        iteration(q, 31, isV, dmas=[])
        body = unify([q.ins[marks[i]:marks[i+1]] for i in range(7)])
        stamp(q, 4)
        if STAMP:
            for i in range(5): q(f"v_readlane_b32 s{64+i}, v47, {[6,5,4,2,0][i]}")
        q("s_nop 7")
        q.vmq = []
        if isV:
            epi_v(q)
        else:
            epi_f(q)
        q.vmq = []
        epi_qk(q)
        stamp(q, 5)
        if STAMP: q("s_waitcnt vmcnt(0)")
        stamp(q, 6); stamp_rt(q, 10)
        stamp_out(q, 11, 1, 4, "s45", extra=[64, 65, 66, 67, 68])
        q("s_endpgm")
        lin_all.append([i.text for i in p.ins] + [i.text for i in q.ins])
        if isV:
            final.label("L_k1_v")
        final.ins += q.ins[:marks[0]]
        final.ins.append(Ins(".p2align 6", "dir"))
        final.label(f"L_k1_loop_{sfx}")
        final.ins += body
        final.ins += q.ins[marks[7]:]
    final.label("L_k1_end")
    final("s_endpgm")
    launch = f"; @launch kernel={name} grid=(256,1,1) block=(256,1,1) lds=147456"
    return dict(name=name, prog=final, launch=launch, kd=kd(name, 512, 102, 256), lins=lin_all)
```

```python
from common import *
from gstream import *
from k2_attn import SA, SB, CA, CB, PA, PB, QR, SEL, OA, OB, LA, LB, KB, VB, S_, C_, P_, O_, L_, Kf, Vf, Qf, r16, qk, pv, softmax_valu, f2u
from k3_final import tile_map, silu_pack
import math

def gen_k23(name="attn_kernel"):
    p = Prog()
    SS = lambda fn: (fn, "s")
    def run_ops(ops):
        for o in ops:
            o()
            if "m0," in p.ins[-1].text: p("s_nop 0")
    p("s_cmp_ge_u32 s2, 256")
    p("s_cbranch_scc1 L_k2_end")
    stamp(p, 0); stamp_rt(p, 1)
    p(f"s_load_dwordx2 s[4:5], s[0:1], {KA_WS}")
    p(f"s_load_dwordx4 s[60:63], s[0:1], {KA_WD}")
    p(f"s_load_dwordx2 s[8:9], s[0:1], {KA_WO}")
    p(f"s_load_dwordx2 s[10:11], s[0:1], {KA_X}")
    code_prefetch(p, "k2", "L_k2_fallback", 0, 12, 76)
    p("v_lshrrev_b32 v2, 6, v0")
    p("v_and_b32 v0, 63, v0")
    p("v_readfirstlane_b32 s45, v2")
    p("v_lshlrev_b32 v1, 4, v0")
    p("s_and_b32 s44, s2, 7")
    p("s_lshl_b32 s44, s44, 2")
    p("s_lshr_b32 s43, s2, 3")
    p("s_lshr_b32 s3, s43, 3")
    p("s_add_u32 s44, s44, s3")
    p("s_and_b32 s43, s43, 7")
    p("s_lshl_b32 s36, s45, 12")
    p("s_mov_b32 s37, s36")
    p("s_lshl_b32 s52, s44, 18")
    p(f"s_add_u32 s52, s52, {hex(KV_OFF)}")
    p("s_lshl_b32 s3, s44, 17")
    p("s_lshl_b32 s6, s43, 14")
    p("s_add_u32 s3, s3, s6")
    p("s_add_u32 s3, s3, s36")
    p(f"s_add_u32 s53, s3, {hex(QF_OFF)}")
    p("s_waitcnt lgkmcnt(0)")
    srd(p, 16, 4, "s53", 4096)
    srd(p, 12, 4, "s52", 262144)
    for i in range(4):
        p.vmem(f"buffer_load_dwordx4 v[{QR+4*i}:{QR+4*i+3}], v1, s[16:19], 0 offen offset:{1024*i}", "q")
    for f in range(2):
        p.vmem(f"buffer_load_dwordx4 {Kf(0,f)}, v1, s[12:15], 0 offen offset:{1024*f}", "q")
    def kv_dma(c):
        ops = [lambda: p("s_mov_b32 m0, s37")]
        ops += [lambda i=i: p.vmem(f"buffer_load_dwordx4 v1, s[12:15], s36 offen offset:{1024*i} lds", f"kv{c}") for i in range(4)]
        ops.append(lambda: p("s_add_u32 s36, s36, 0x4000"))
        ops.append(lambda: p("s_add_u32 s37, s37, 0x4000"))
        ops.append(lambda: p("s_and_b32 s37, s37, 0xffff"))
        return ops
    run_ops(kv_dma(0))
    tile_map(p, "s46", "s47")
    p("s_lshl_b32 s41, s45, 14")
    p("s_add_u32 s41, s41, 0x10000")
    g = GStream(p, acc=72, wfr=200, hbase=128, RH=4, vdma=116, vrd=120, vlin=1, s_h="s39", s_w="s40", srd_h=24, srd_w=28, s_m0="s41", pfx="y")
    g.vrot = 122
    g.setup_addrs(0, "s41", 6)
    for a in range(4):
        p(f"s_add_u32 s3, s45, {a}")
        p("s_and_b32 s3, s3, 3")
        p("s_lshl_b32 s3, s3, 10")
        p(f"v_add_u32 v{122+a}, s3, v1")
    p("s_mul_i32 s3, s46, 917504")
    p(f"s_mul_i32 s6, s45, {56*4096}")
    p("s_add_u32 s3, s3, s6")
    p(f"s_add_u32 s3, s3, {hex(HF_OFF)}")
    srd(p, 24, 4, "s3", 56 * 4096)
    p(f"s_mul_i32 s3, s45, {896*2048}")
    p("s_lshl_b32 s6, s47, 7")
    p("s_add_u32 s3, s3, s6")
    p(f"s_sub_u32 s7, {896*2048}, s6")
    srd(p, 28, 60, "s3", "s7")
    p("s_mov_b32 s39, 0"); p("s_mov_b32 s40, 0")
    p("s_lshl_b32 s3, s43, 19")
    p("s_lshl_b32 s6, s45, 17")
    p("s_add_u32 s3, s3, s6")
    p("s_lshl_b32 s6, s44, 11")
    p("s_add_u32 s3, s3, s6")
    p(f"s_add_u32 s3, s3, {hex(OF_OFF)}")
    srd(p, 20, 4, "s3", 65536 + 2048)
    p("s_mov_b32 s50, 0x10000")
    p("v_lshrrev_b32 v2, 2, v0")
    p("v_lshrrev_b32 v3, 4, v0")
    p("v_xor_b32 v2, v2, v3")
    p("v_and_b32 v2, 1, v2")
    p("v_and_b32 v3, 3, v0")
    p("v_or_b32 v2, v2, v3")
    p("v_cmp_eq_u32 vcc, 0, v2")
    p("v_mov_b32 v3, 0x3f803f80")
    p("s_nop 0")
    p(f"v_cndmask_b32 v{SEL}, 0, v3, vcc")
    for i in range(1, 4): p(f"v_mov_b32 v{SEL+i}, v{SEL}")
    for i in range(0, 40): p(f"v_accvgpr_write_b32 a{i}, 0")
    p("v_mov_b32 v4, v1")
    p("v_add_u32 v5, 0x4000, v1")
    p("s_mov_b32 s38, 0x4000")
    p("s_mov_b32 s51, 0xffff0000")
    p(f"s_mov_b32 s58, {hex(f2u(-math.log2(math.e)))}")
    p("s_mov_b32 s59, s58")
    p("s_lshl_b32 s6, s47, 7")
    p(f"s_sub_u32 s7, {D*D*2}, s6")
    srd(p, 32, 8, "s6", "s7")
    p("s_lshl_b32 s48, s45, 16")
    p("s_lshl_b32 s49, s45, 12")
    p.wait(vm="q")
    stamp(p, 2)
    for blk in range(2):
        for t, _ in qk(blk, 0, "0"): p(t)
    run_ops(g.w_dma(0, 0))
    p("s_nop 7")
    for blk in range(2):
        S = S_[blk]
        p(f"v_max3_f32 v6, v{S}, v{S+1}, v{S+2}")
        for i in range(3, 15, 2):
            p(f"v_max3_f32 v6, v6, v{S+i}, v{S+i+1}")
        p(f"v_max_f32 v6, v6, v{S+15}")
        p("v_mov_b32 v7, v6")
        p("s_nop 1")
        p("v_permlane32_swap_b32 v6, v7")
        p("s_nop 1")
        p("v_max_f32 v6, v6, v7")
        for i in range(16):
            p(f"v_sub_f32 v{C_[blk]+i}, 0, v6")
        if blk == 0:
            for i in range(16):
                p(f"v_sub_f32 v{S+i}, v{S+i}, v6")
    p("s_mov_b32 s42, 13")
    p.wait(vm="kv0")
    p("s_barrier")
    stamp(p, 3)
    NC = 16; NKS = 56; KOFF = 2
    def wo_dma(i):
        off = i * 16384 if i < 2 else 0x10000 + (i - 2) * 16384
        ops = [lambda: p(f"s_add_u32 m0, s49, {hex(off)}")]
        ops += [lambda n=n: p.vmem(f"buffer_load_dwordx4 v{g.vdma+n}, s[32:35], s48 offen offset:{1024*n} lds", f"wo{i}") for n in range(4)]
        ops.append(lambda: p("s_add_u32 s48, s48, 0x40000"))
        return ops
    XW = [lambda a=a, q=q: p.lds(f"ds_write_b128 v{5+a}, a[{72+32*a+4*q}:{72+32*a+4*q+3}] offset:{1024*q}", "xw") for a in (1, 2, 3) for q in range(8)]
    XT = 128
    XR_ = [lambda s=s, q=q: p.lds(f"ds_read_b128 v[{XT+32*s+4*q}:{XT+32*s+4*q+3}], v9 offset:{s*8192 + 1024*q}", "xr") for s in range(3) for q in range(8)]
    marks = []
    for c in range(NC):
        marks.append(p.mark())
        inloop = 1 <= c <= 13
        for i in range(4):
            j = 4 * c + i
            k = j - KOFF
            gm = [(t, 32) for t in g.mfmas(k, first=(k == 0))] if 0 <= k < NKS else None
            lim = (lambda x, n: True) if inloop else (lambda x, n: x < n)
            a = qk(1, j) + (pv(1, j - 1) if j > 0 else [])
            kaddr, koff = ("v4", (i + 1) * 4096) if i < 3 else ("v5", 0)
            rdV = [lambda f=f: p.lds(f"ds_read_b128 {Vf(j,f)}, v4 offset:{i*4096 + 2048 + 1024*f}", f"v{j}") for f in range(2)]
            rdK = [lambda f=f: p.lds(f"ds_read_b128 {Kf(j+1,f)}, {kaddr} offset:{koff + 1024*f}", f"k{j+1}") for f in range(2)]
            if j == 63: rdK = [None, None]
            va = softmax_valu(0)
            wK = SS(lambda: p.wait(lg=[f"k{j+1}"]))
            ex = {}
            def add(pos, e):
                if e is not None: ex.setdefault(pos, []).append(e)
            if gm and (k + 1) % 4 == 0 and k + 1 < NKS:
                va = [(f"v_xor_b32 v{g.vrd}, 0x2000, v{g.vrd}", 4), (f"v_xor_b32 v{g.vrd+1}, 0x2000, v{g.vrd+1}", 4)] + va
            hl = None
            if gm:
                mf = [a[0], gm[0], a[1], gm[1], a[2], a[3], gm[2], a[4], a[5], gm[3]]
                add(0, SS(lambda: p.wait(vm=f"yh{k}", lg=f"yf{k}n0", force=True))); add(0, rdK[0])
                add(2, SS(lambda: p.wait(lg=f"yf{k}n1", force=True))); add(2, rdK[1])
                add(4, rdV[0]); add(7, rdV[1]); add(9, wK)
                if lim(k + 3, NKS):
                    hl = g.h_loads(k + 3)
                    for n, pos in enumerate([1, 3, 6, 9]): add(pos, hl[n])
            elif j == 0:
                mf = a
                add(0, rdK[0]); add(0, rdK[1]); add(1, rdV[0]); add(1, rdV[1])
                h0 = g.h_loads(0)
                add(0, h0[0]); add(1, h0[1])
            else:
                mf = a
                add(0, rdK[0]); add(1, rdK[1]); add(2, rdV[0]); add(4, rdV[1])
                if j < 63: add(5, wK)
                if j == 1:
                    h1 = g.h_loads(1)
                    add(0, h1[0]); add(2, h1[1]); add(3, h1[2]); add(4, h1[3]); add(5, SS(h1[4]))
                if j in (58, 59):
                    x = XW[(j - 58) * 10:(j - 58) * 10 + 5]
                    for n, pos in enumerate([0, 1, 2, 3, 4]): add(pos, x[n])
                if j == 60:
                    x = XW[20:24]
                    for n, pos in enumerate([0, 1, 2, 4]): add(pos, x[n])
                if j == 61:
                    x = XR_[4:14]
                    for n, pos in enumerate([0, 0, 1, 1, 2, 2, 3, 4, 4, 5]): add(pos, x[n])
                if j == 62:
                    add(3, SS(lambda: p("s_barrier")))
                if j == 63:
                    d = wo_dma(3)
                    add(0, d[1]); ex[0].insert(0, SS(d[0])); ex[0].insert(1, SS(lambda: p("s_nop 0")))
                    add(1, d[2]); add(3, d[3]); add(5, d[4]); add(5, SS(d[5]))
            fill(p, mf, va, ex)
            if j == 0:
                p.wait(lg="k1")
            a = (qk(0, j + 1) if j < 63 else []) + pv(0, j)
            va = softmax_valu(1)
            wv = SS(lambda: p.wait(lg=[f"v{j}"]))
            ex = {}
            if gm:
                mf = [a[0], gm[4], a[1], gm[5], a[2], a[3], gm[6], a[4], a[5], gm[7]]
                add(3, wv)
                if hl: add(5, SS(hl[4]))
                d = None
                if k % 2 == 0 and lim(k // 2 + 2, NKS // 2):
                    fg = k // 2 + 2
                    d = g.w_dma(fg, fg & 1)
                    tail = [d[5]]
                    if fg & 1: tail.append(lambda: p("s_xor_b32 s41, s41, 0x2000"))
                if i == 3 and lim(c + 3, NC):
                    d = kv_dma(c + 3)
                    tail = d[5:8]
                if d: add(0, SS(d[0]))
                if k + 1 < NKS:
                    fg1 = (k + 1) // 2
                    wr = g.w_reads(k + 1, (fg1 & 1) * 4096)
                    if (k + 1) % 2 == 0:
                        add(0, SS(lambda: p.wait(vm=f"yw{fg1}", force=True)))
                    for n, pos in enumerate([0, 2, 4, 7]): add(pos, wr[n])
                if d:
                    for n, pos in enumerate([1, 3, 6, 9]): add(pos, d[1 + n])
                    for o in tail: add(9, SS(o))
                if i == 2:
                    ex.setdefault(6, []).insert(0, SS(lambda: p.wait(vm=f"kv{c+1}", force=True)))
                    ex.setdefault(7, []).insert(0, SS(lambda: p("s_barrier")))
                if i == 1 and inloop:
                    add(8, SS(lambda: p("s_sub_u32 s42, s42, 1")))
                if j == 57:
                    add(6, SS(lambda: p.wait(vm=["yw28", "kv16", "kv15"], force=True)))
                    add(7, SS(lambda: p("s_barrier")))
                    pre = []
                    for a_ in (1, 2, 3):
                        add(a_ - 1, SS(lambda a_=a_: p(f"s_add_u32 s{63+a_}, s45, {a_}")))
                        add(a_ - 1, SS(lambda a_=a_: p(f"s_and_b32 s{63+a_}, s{63+a_}, 3")))
                        add(a_ - 1, SS(lambda a_=a_: p(f"s_mul_i32 s{63+a_}, s{63+a_}, {3*8192}")))
                        add(a_ - 1, SS(lambda a_=a_: p(f"s_add_u32 s{63+a_}, s{63+a_}, {hex(0x10000 + (a_-1)*8192)}")))
                    add(4, SS(lambda: p(f"s_mul_i32 s67, s45, {3*8192}")))
                    add(4, SS(lambda: p(f"s_add_u32 s67, s67, 0x10000")))
                    va = va + [(f"v_add_u32 v{5+a_}, s{63+a_}, v1", 4) for a_ in (1, 2, 3)] + [("v_add_u32 v9, s67, v1", 4)]
            else:
                mf = a
                if j < 63: add(1, wv)
                if j == 0:
                    add(0, h0[2]); add(2, h0[3]); add(3, SS(h0[4]))
                    d = kv_dma(1)
                    ex[0].insert(0, SS(d[0]))
                    add(1, d[1]); add(3, d[2]); add(4, d[3]); add(5, d[4])
                    for o in d[5:8]: add(5, SS(o))
                if j == 1:
                    d = g.w_dma(1, 1)
                    add(0, SS(d[0])); add(0, SS(lambda: p.wait(vm="yw0")))
                    wr = g.w_reads(0, 0)
                    add(0, wr[0]); add(1, wr[1]); add(2, wr[2]); add(4, wr[3])
                    add(0, d[1]); add(2, d[2]); add(3, d[3]); add(4, d[4])
                    add(5, SS(d[5])); add(5, SS(lambda: p("s_xor_b32 s41, s41, 0x2000")))
                if j in (58, 59):
                    x = XW[(j - 58) * 10 + 5:(j - 58) * 10 + 10]
                    for n, pos in enumerate([0, 2, 3, 4, 5]): add(pos, x[n])
                    d = wo_dma(j - 58)
                    ex[0].insert(0, SS(d[0]))
                    add(0, d[1]); add(1, d[2]); add(2, d[3]); add(4, d[4]); add(5, SS(d[5]))
                if j == 60:
                    add(2, SS(lambda: p.wait(lg="xw")))
                    add(3, SS(lambda: p("s_barrier")))
                    x = XR_[0:4]
                    for n, pos in enumerate([4, 4, 5, 5]): add(pos, x[n])
                if j == 61:
                    x = XR_[14:24]
                    for n, pos in enumerate([0, 0, 1, 2, 2, 3, 4, 4, 5, 5]): add(pos, x[n])
                if j == 62:
                    d = wo_dma(2)
                    add(0, SS(d[0])); add(1, d[1]); add(2, d[2]); add(4, d[3]); add(5, d[4]); add(5, SS(d[5]))
                if j == 63:
                    p.wait(lg="v63")
                    d = wo_dma(4)
                    add(0, SS(d[0])); add(0, SS(lambda: p("s_nop 0"))); add(0, d[1]); add(1, d[2]); add(2, d[3]); add(3, d[4]); add(3, SS(d[5]))
            if i == 3 and c < 15:
                va = [("v_mov_b32 v4, v5", 4)] + va
            fill(p, mf, va, ex)
            if j == 61: p.wait(lg="xr")
            if j == 1:
                run_ops(g.h_loads(2))
            if j == 2:
                run_ops(kv_dma(2))
            if i == 3 and c < 15:
                p("s_add_u32 s38, s38, 0x4000")
                p("s_and_b32 s38, s38, 0xffff")
                if inloop: p("s_cmp_lg_u32 s42, 0")
                p("v_add_u32 v5, s38, v1")
                if inloop: p("s_cbranch_scc1 L_k2_loop")
    marks.append(p.mark())
    body = unify([p.ins[marks[i]:marks[i+1]] for i in range(1, 14)])
    stamp(p, 4)
    p("s_nop 0")
    for t, _ in pv(1, 63): p(t)
    p(f"v_mov_b32 v10, {hex(f2u(2.0**30))}")
    p(f"v_mov_b32 v11, {hex(f2u(2.0**-20))}")
    p("s_nop 11")
    p(f"v_accvgpr_read_b32 v6, a{LA}")
    p(f"v_accvgpr_read_b32 v7, a{LB}")
    p("v_min_f32 v8, v6, v7")
    p("v_cmp_nlt_f32 vcc, v6, v10")
    p("v_cmp_nlt_f32 s[6:7], v7, v10")
    p("v_cmp_ngt_f32 s[64:65], v8, v11")
    p("s_nop 1")
    p("s_or_b64 vcc, vcc, s[6:7]")
    p("s_or_b64 vcc, vcc, s[64:65]")
    p("s_cbranch_vccnz L_k2_fallback")
    p.label("L_k2_out")
    p(f"v_accvgpr_read_b32 v6, a{LA}")
    p(f"v_accvgpr_read_b32 v7, a{LB}")
    p("v_rcp_f32 v6, v6")
    p("v_rcp_f32 v7, v7")
    for blk in range(2):
        T = S_[blk]
        for i in range(16):
            p(f"v_accvgpr_read_b32 v{T+i}, a{O_[blk]+i}")
        for i in range(16):
            p(f"v_mul_f32 v{T+i}, v{T+i}, v{6+blk}")
        for s in range(2):
            P = P_[blk] + 4 * s
            p(f"v_cvt_pk_bf16_f32 v{P}, v{T+4*s}, v{T+4*s+1}")
            p(f"v_cvt_pk_bf16_f32 v{P+1}, v{T+4*s+2}, v{T+4*s+3}")
            p(f"v_cvt_pk_bf16_f32 v{P+2}, v{T+4*s+8}, v{T+4*s+9}")
            p(f"v_cvt_pk_bf16_f32 v{P+3}, v{T+4*s+10}, v{T+4*s+11}")
            so = "0" if blk == 0 else "s50"
            p.vmem(f"buffer_store_dwordx4 v[{P}:{P+3}], v1, s[20:23], {so} offen offset:{1024*s} sc1", "ost")
    stamp(p, 5)
    srd(p, 64, 4, FL_OFF, 1024)
    p("s_lshl_b32 s68, s43, 5")
    p("s_add_u32 s68, s68, s44")
    p("s_lshl_b32 s68, s68, 2")
    p("s_lshr_b32 s69, s46, 1")
    p("s_lshl_b32 s69, s69, 7")
    run_ops(wo_dma(5))
    Y = 16
    for i in range(32): p(f"v_accvgpr_read_b32 v{Y+i}, a{72+i}")
    run_ops(wo_dma(6))
    for i in range(0, 32, 2):
        p(f"v_pk_add_f32 v[{Y+i}:{Y+i+1}], v[{Y+i}:{Y+i+1}], v[{XT+i}:{XT+i+1}]")
    p.wait(vm="ost")
    p("s_barrier")
    p("s_cmp_lg_u32 s45, 0")
    p("s_cbranch_scc1 L_k2_nosig")
    p("v_mov_b32 v6, 1")
    p("v_mov_b32 v7, 0")
    p("s_mov_b64 exec, 1")
    p("buffer_store_dword v6, v7, s[64:67], s68 offen sc1")
    p("s_mov_b64 exec, -1")
    p.label("L_k2_nosig")
    stamp(p, 7)
    run_ops(wo_dma(7))
    p("s_lshl_b32 s3, s46, 18")
    p("s_lshl_b32 s6, s45, 16")
    p("s_add_u32 s3, s3, s6")
    p("s_lshl_b32 s6, s47, 7")
    p("s_add_u32 s3, s3, s6")
    p(f"s_sub_u32 s7, 0x10000, s6")
    srd(p, 20, 10, "s3", "s7")
    srd(p, 24, 62, "s3", "s7")
    p("v_lshrrev_b32 v2, 3, v0")
    p("v_and_b32 v3, 7, v0")
    p("v_lshlrev_b32 v3, 4, v3")
    p("v_lshl_add_u32 v3, v2, 11, v3")
    for i in range(1, 4): p(f"s_mov_b32 s{52+i}, {hex(i*8*2048)}")
    XR = 80
    for i in range(4):
        so = "0" if i == 0 else f"s{52+i}"
        p.vmem(f"buffer_load_dwordx4 v[{XR+4*i}:{XR+4*i+3}], v3, s[20:23], {so} offen", "x")
    for s in (1, 2):
        for i in range(0, 32, 2):
            p(f"v_pk_add_f32 v[{Y+i}:{Y+i+1}], v[{Y+i}:{Y+i+1}], v[{XT+32*s+i}:{XT+32*s+i+1}]")
    YP = 64
    silu_pack(p, Y, 128, YP, "s51", "s[58:59]")
    p("s_lshl_b32 s3, s46, 2")
    p("s_add_u32 s3, s3, s45")
    p("s_lshl_b32 s3, s3, 16")
    p(f"s_add_u32 s3, s3, {hex(OF_OFF)}")
    srd(p, 28, 4, "s3", 65536)
    p(f"v_and_b32 v{g.vrd}, 0xfff, v{g.vrd}")
    p(f"v_and_b32 v{g.vrd+1}, 0xfff, v{g.vrd+1}")
    p("v_and_b32 v10, 31, v0")
    p("v_mul_u32_u24 v10, 144, v10")
    p("v_lshrrev_b32 v11, 5, v0")
    p("v_lshl_add_u32 v10, v11, 3, v10")
    p("s_mul_i32 s3, s45, 4608")
    p("s_add_u32 s3, s3, 0x8000")
    p("v_add_u32 v10, s3, v10")
    p("v_mul_u32_u24 v11, 144, v2")
    p("v_and_b32 v12, 7, v0")
    p("v_lshl_add_u32 v11, v12, 4, v11")
    p("v_add_u32 v11, s3, v11")
    p.wait_all(lg=False)
    stamp(p, 8)
    p("s_cmp_lg_u32 s45, 0")
    p("s_cbranch_scc1 L_k2_polled")
    p("v_and_b32 v6, 31, v0")
    p("v_lshlrev_b32 v6, 2, v6")
    p("s_mov_b32 s70, 0x40000")
    p.label("L_k2_poll")
    p("buffer_load_dword v7, v6, s[64:67], s69 offen sc1")
    p("s_sub_u32 s70, s70, 1")
    p("s_waitcnt vmcnt(0)")
    p("v_cmp_ne_u32 vcc, 1, v7")
    p("s_cmp_eq_u32 s70, 0")
    p("s_cbranch_scc1 L_k2_polled")
    p("s_nop 2")
    p("s_cbranch_vccnz L_k2_poll")
    p.label("L_k2_polled")
    p("s_barrier")
    stamp(p, 9)
    DEP = 12
    ACC = 16
    WF = 128
    def oload(k):
        if k % 4 == 0 and k > 0: p("s_add_u32 s39, s39, 0x1000")
        p.vmem(f"buffer_load_dwordx4 a[{4*k}:{4*k+3}], v1, s[28:31], s39 offen offset:{1024*(k%4)} sc1", f"o{k}")
    def wreads(k):
        f = k // 2; s = k & 1
        off = (f * 4096 if f < 8 else ((f - 8) % 16) * 4096)
        if k in (16, 48):
            p(f"v_add_u32 v{g.vrd}, 0x10000, v{g.vrd}")
            p(f"v_add_u32 v{g.vrd+1}, 0x10000, v{g.vrd+1}")
        ops = []
        for nb in range(2):
            for e in range(2):
                b = WF + 8 * (k % 4) + 4 * nb + 2 * e
                ops.append(lambda b=b, nb=nb, e=e: p.lds(f"ds_read_b64_tr_b16 v[{b}:{b+1}], v{g.vrd+nb} offset:{off + e*2048 + s*1024}", f"w{k}"))
        return ops
    p("s_mov_b32 s39, 0")
    for k in range(DEP): oload(k)
    for k in range(2):
        for o in wreads(k): o()
    for k in range(64):
        p.wait(vm=f"o{k}", lg=f"w{k}")
        wr = wreads(k + 2) if k + 2 < 64 else [lambda: None] * 4
        for nb in range(2):
            b = WF + 8 * (k % 4) + 4 * nb
            d = r16(ACC + 16 * nb)
            p(f"v_mfma_f32_32x32x16_bf16 {d}, v[{b}:{b+3}], a[{4*k}:{4*k+3}], {'0' if k == 0 else d}")
            if nb == 0 and k + DEP < 64: oload(k + DEP)
            wr[2 * nb](); wr[2 * nb + 1]()
    stamp(p, 10)
    Sx = ACC; T = 128
    for k in range(16):
        p(f"v_lshlrev_b32 v{T+32+2*k}, 16, v{YP+k}")
        p(f"v_and_b32 v{T+32+2*k+1}, s51, v{YP+k}")
    for k in range(16):
        p(f"v_cvt_pk_bf16_f32 v{T+k}, v{Sx+2*k}, v{Sx+2*k+1}")
    for k in range(16):
        p(f"v_lshlrev_b32 v{Sx+2*k}, 16, v{T+k}")
        p(f"v_and_b32 v{Sx+2*k+1}, s51, v{T+k}")
    for i in range(0, 32, 2):
        p(f"v_pk_mul_f32 v[{Sx+i}:{Sx+i+1}], v[{Sx+i}:{Sx+i+1}], v[{T+32+i}:{T+32+i+1}]")
    for nb in range(2):
        for j in range(4):
            r = T + 8 * nb + 2 * j
            k = 8 * nb + 2 * j
            p(f"v_cvt_pk_bf16_f32 v{T+k}, v{Sx+2*k}, v{Sx+2*k+1}")
            p(f"v_cvt_pk_bf16_f32 v{T+k+1}, v{Sx+2*k+2}, v{Sx+2*k+3}")
            p.lds(f"ds_write_b64 v10, v[{r}:{r+1}] offset:{64*nb + 16*j}", "tw")
    XU = 160
    for k in range(16):
        p(f"v_lshlrev_b32 v{XU+2*k}, 16, v{XR+k}")
        p(f"v_and_b32 v{XU+2*k+1}, s51, v{XR+k}")
    p.wait(lg="tw")
    TR = 96
    for i in range(4):
        p.lds(f"ds_read_b128 v[{TR+4*i}:{TR+4*i+3}], v11 offset:{i*8*144}", f"tr{i}")
    for i in range(4):
        A = 16 + 8 * i
        p.wait(lg=f"tr{i}")
        for k in range(4):
            p(f"v_lshlrev_b32 v{A+2*k}, 16, v{TR+4*i+k}")
            p(f"v_and_b32 v{A+2*k+1}, s51, v{TR+4*i+k}")
        for k in range(0, 8, 2):
            p(f"v_pk_add_f32 v[{A+k}:{A+k+1}], v[{A+k}:{A+k+1}], v[{XU+8*i+k}:{XU+8*i+k+1}]")
        for k in range(4):
            p(f"v_cvt_pk_bf16_f32 v{T+4*i+k}, v{A+2*k}, v{A+2*k+1}")
        so = "0" if i == 0 else f"s{52+i}"
        p.vmem(f"buffer_store_dwordx4 v[{T+4*i}:{T+4*i+3}], v3, s[24:27], {so} offen", "st")
    if STAMP: p("s_waitcnt vmcnt(0)")
    stamp(p, 6)
    if STAMP:
        p("s_memrealtime s[78:79]")
        p("s_waitcnt lgkmcnt(0)")
    stamp_out(p, 11, 2, 4, "s45", extra=[78])
    p("s_endpgm")
    fb = Prog()
    fb.label("L_k2_fallback")
    fb("s_waitcnt vmcnt(0) lgkmcnt(0)")
    fb("v_mov_b32 v12, 0xff800000")
    fb("v_mov_b32 v13, 0xff800000")
    fb("s_mov_b32 s36, 0")
    fb.label("L_k2_fb1")
    for f in range(2):
        fb(f"buffer_load_dwordx4 {Kf(0,f)}, v1, s[12:15], s36 offen offset:{1024*f}")
    fb("s_waitcnt vmcnt(0)")
    for blk in range(2):
        for t, _ in qk(blk, 0, "0"): fb(t)
    fb("s_nop 15")
    for blk in range(2):
        S = S_[blk]
        for i in range(0, 16, 2):
            fb(f"v_max3_f32 v{12+blk}, v{12+blk}, v{S+i}, v{S+i+1}")
    fb("s_add_u32 s36, s36, 0x1000")
    fb("s_cmp_lt_u32 s36, 0x40000")
    fb("s_cbranch_scc1 L_k2_fb1")
    for blk in range(2):
        fb(f"v_mov_b32 v7, v{12+blk}")
        fb("s_nop 1")
        fb(f"v_permlane32_swap_b32 v{12+blk}, v7")
        fb("s_nop 1")
        fb(f"v_max_f32 v6, v{12+blk}, v7")
        for i in range(16):
            fb(f"v_sub_f32 v{C_[blk]+i}, 0, v6")
    for i in range(0, 40): fb(f"v_accvgpr_write_b32 a{i}, 0")
    fb("s_mov_b32 s36, 0")
    fb.label("L_k2_fb2")
    for f in range(2):
        fb(f"buffer_load_dwordx4 {Kf(0,f)}, v1, s[12:15], s36 offen offset:{1024*f}")
        fb(f"buffer_load_dwordx4 {Vf(0,f)}, v1, s[12:15], s36 offen offset:{2048+1024*f}")
    fb("s_waitcnt vmcnt(0)")
    for blk in range(2):
        for t, _ in qk(blk, 0): fb(t)
    fb("s_nop 15")
    for blk in range(2):
        for t, _ in softmax_valu(blk): fb(t)
    fb("s_nop 1")
    for blk in range(2):
        for t, _ in pv(blk, 0): fb(t)
    fb("s_add_u32 s36, s36, 0x1000")
    fb("s_cmp_lt_u32 s36, 0x40000")
    fb("s_nop 15")
    fb("s_cbranch_scc1 L_k2_fb2")
    fb("s_branch L_k2_out")
    final = Prog()
    final.ins = p.ins[:marks[1]] + [Ins(".p2align 6", "dir"), Ins("L_k2_loop:", "label")] + body + p.ins[marks[14]:] + fb.ins
    final.label("L_k2_end")
    final("s_endpgm")
    lins = [[x.text for x in p.ins], [x.text for x in fb.ins] + [x.text for x in fb.ins]]
    launch = f"; @launch kernel={name} grid=(256,1,1) block=(256,1,1) lds=163840"
    return dict(name=name, prog=final, launch=launch, kd=kd(name, 512, 102, 256), lins=lins)
```

```python
import os
os.environ.setdefault("K0PF", "192")
from build import *
from k0_ln import gen_k0
from k1_gemm1 import gen_k1
from k23 import gen_k23
import sys
assemble([gen_k0(), gen_k1(), gen_k23()], sys.argv[1] if len(sys.argv) > 1 else "c.s")
```

```python
from common import *

def gen_k0(name="ln_kernel"):
    p = Prog()
    p("s_cmp_ge_u32 s2, 256")
    p("s_cbranch_scc1 L_k0_end")
    stamp(p, 0); stamp_rt(p, 1)
    p(f"s_load_dwordx2 s[4:5], s[0:1], {KA_X}")
    p(f"s_load_dwordx2 s[6:7], s[0:1], {KA_WS}")
    R = int(os.environ.get("K0PF", "256"))
    if R:
        p(f"s_load_dwordx2 s[22:23], s[0:1], {KA_WQKV}")
        p(f"s_load_dwordx4 s[24:27], s[0:1], {KA_WG}")
    p("v_and_b32 v1, 7, v0")
    p("v_lshrrev_b32 v2, 3, v0")
    p("s_lshl_b32 s3, s2, 14")
    p("v_lshlrev_b32 v3, 11, v1")
    p("v_lshl_add_u32 v3, v2, 4, v3")
    p("s_waitcnt lgkmcnt(0)")
    stamp(p, 2)
    srd(p, 8, 4, 0, S * D * 2)
    srd(p, 12, 6, XN_OFF, S * D * 2)
    for i in range(4):
        p.vmem(f"buffer_load_dwordx4 v[{8+4*i}:{11+4*i}], v3, s[8:11], s3 offen offset:{512*i}", "x")
    if R:
        p("v_lshlrev_b32 v7, 8, v0")
        p("v_add_u32 v7, s2, v7")
        p("v_lshlrev_b32 v7, 7, v7")
        srd(p, 28, 22, 0, R * 6144)
        srd(p, 32, 24, 0, R * 7168)
        srd(p, 36, 26, 0, R * 7168)
        for i in range(3):
            p.vmem(f"buffer_load_dword v{96+i}, v7, s[{28+4*i}:{31+4*i}], 0 offen", "pf")
    if os.environ.get("K0CPF", "1") == "1":
        code_prefetch(p, "k0", "L_all_end", 0, 100, 40, n=3)
    srd(p, 44, 6, FL_OFF, 16384)
    p("v_mov_b32 v102, 0")
    p("v_lshlrev_b32 v103, 2, v0")
    p("v_cmp_gt_u32 vcc, 16, v0")
    p("s_lshl_b32 s21, s2, 6")
    p("s_and_saveexec_b64 s[42:43], vcc")
    p("s_cbranch_execz L_k0_nofl")
    p("buffer_store_dword v102, v103, s[44:47], s21 offen")
    p.label("L_k0_nofl")
    p("s_mov_b64 exec, s[42:43]")
    p("s_lshr_b32 s16, s2, 5")
    p("s_lshl_b32 s16, s16, 19")
    p("s_lshr_b32 s17, s2, 1")
    p("s_and_b32 s17, s17, 15")
    p("s_lshl_b32 s17, s17, 10")
    p("s_add_u32 s16, s16, s17")
    p("s_and_b32 s17, s2, 1")
    p("s_lshl_b32 s17, s17, 7")
    p("s_add_u32 s16, s16, s17")
    p("s_add_u32 s17, s16, 0x20000")
    p("s_add_u32 s18, s16, 0x40000")
    p("s_add_u32 s19, s16, 0x60000")
    p("v_lshrrev_b32 v4, 2, v2")
    p("v_lshlrev_b32 v4, 14, v4")
    p("v_and_b32 v5, 3, v2")
    p("v_lshl_add_u32 v4, v5, 8, v4")
    p("v_lshl_add_u32 v4, v1, 4, v4")
    p("v_mul_u32_u24 v6, 80, v1")
    p("v_lshrrev_b32 v5, 4, v0")
    p("v_lshl_add_u32 v5, v5, 2, v6")
    p("s_mov_b32 s20, 0xffff0000")
    X = 32
    for i in range(4):
        if i == 0:
            n = p._cnt(p.vmq, ["x"])
            stamp(p, 3)
            p.wait(vm="x")
            stamp(p, 4)
    for k in range(16):
        p(f"v_lshlrev_b32 v{X+2*k}, 16, v{8+k}")
        p(f"v_and_b32 v{X+2*k+1}, s20, v{8+k}")
    def reduce(src_regs, lds_off, dst):
        t = [24, 25, 26, 27]
        for a in range(4):
            p(f"v_add_f32 v{t[a]}, v{src_regs[a]}, v{src_regs[a+4]}")
        for k in range(8, len(src_regs)):
            p(f"v_add_f32 v{t[k%4]}, v{t[k%4]}, v{src_regs[k]}")
        p("v_add_f32 v24, v24, v25")
        p("v_add_f32 v26, v26, v27")
        p("v_add_f32 v24, v24, v26")
        p("s_nop 1")
        p("v_add_f32_dpp v24, v24, v24 row_ror:8 row_mask:0xf bank_mask:0xf")
        p.lds(f"ds_write_b32 v5, v24 offset:{lds_off}", "w")
        p.wait(lg="w")
        p("s_barrier")
        for j in range(4):
            p.lds(f"ds_read_b128 v[{8+4*j}:{11+4*j}], v6 offset:{lds_off+16*j}", "r")
        p.wait(lg="r")
        for j in range(8):
            p(f"v_add_f32 v{8+j}, v{8+j}, v{16+j}")
        for j in range(4):
            p(f"v_add_f32 v{8+j}, v{8+j}, v{12+j}")
        p("v_add_f32 v8, v8, v9")
        p("v_add_f32 v10, v10, v11")
        p(f"v_add_f32 v{dst}, v8, v10")
    reduce(list(range(X, X+32)), 0, 28)
    p("v_mul_f32 v28, 0x3a800000, v28")
    for k in range(32):
        p(f"v_sub_f32 v{64+k}, v{X+k}, v28")
    for k in range(32):
        p(f"v_mul_f32 v{64+k}, v{64+k}, v{64+k}")
    reduce(list(range(64, 96)), 1024, 29)
    p("v_mul_f32 v29, 0x3a800000, v29")
    p("v_cvt_pk_bf16_f32 v30, v28, v29")
    p("v_lshlrev_b32 v28, 16, v30")
    p("v_and_b32 v29, s20, v30")
    p("v_add_f32 v29, 0x3727c5ac, v29")
    p("v_cvt_pk_bf16_f32 v30, v29, v29")
    p("v_and_b32 v29, s20, v30")
    p("v_sqrt_f32 v29, v29")
    p("s_nop 0")
    p("v_cvt_pk_bf16_f32 v30, v29, v29")
    p("v_and_b32 v29, s20, v30")
    p("v_rcp_f32 v29, v29")
    for k in range(32):
        p(f"v_sub_f32 v{X+k}, v{X+k}, v28")
    for k in range(16):
        p(f"v_cvt_pk_bf16_f32 v{64+k}, v{X+2*k}, v{X+2*k+1}")
    for k in range(16):
        p(f"v_lshlrev_b32 v{X+2*k}, 16, v{64+k}")
        p(f"v_and_b32 v{X+2*k+1}, s20, v{64+k}")
    for k in range(32):
        p(f"v_mul_f32 v{X+k}, v{X+k}, v29")
    for i in range(4):
        for k in range(4):
            kk = 4 * i + k
            p(f"v_cvt_pk_bf16_f32 v{8+kk}, v{X+2*kk}, v{X+2*kk+1}")
        p.vmem(f"buffer_store_dwordx4 v[{8+4*i}:{11+4*i}], v4, s[12:15], s{16+i} offen {os.environ.get('K0ST', '')}", "st")
    stamp(p, 5)
    if STAMP:
        p("s_waitcnt vmcnt(0)")
        p("v_lshrrev_b32 v1, 6, v0")
        p("s_nop 1")
        p("v_readfirstlane_b32 s45, v1")
    stamp(p, 6); stamp_rt(p, 7)
    stamp_out(p, 8, 0, 6, "s45")
    p.label("L_k0_end")
    p("s_endpgm")
    launch = f"; @launch kernel={name} grid=(256,1,1) block=(256,1,1) lds=2048"
    return dict(name=name, prog=p, launch=launch, kd=kd(name, 104, 102 if STAMP else 48, 104), lin=[i.text for i in p.ins])
```

```python
from common import *
import math, struct

def f2u(x):
    return struct.unpack("<I", struct.pack("<f", x))[0]

def acc(mb, nb):
    if nb < 4:
        return ("v", 48 + 4 * (mb * 4 + nb))
    if nb < 8:
        if mb < 5:
            return ("v", 48 + 128 + 4 * (mb * 4 + nb - 4))
        return ("a", 144 + 4 * ((mb - 5) * 4 + nb - 4))
    return ("a", 144 + 48 + 4 * (mb * 2 + nb - 8))

def fragA(st, mb): return ("a", 72 * st + 4 * mb)
def fragB(st, nb): return ("a", 72 * st + 32 + 4 * nb)

def dma_ops(p, stage, tag):
    ops = []
    ops.append(lambda: p(f"s_add_u32 m0, s40, {stage*16384}"))
    for i in range(4):
        ops.append(lambda i=i: p.vmem(f"buffer_load_dwordx4 v1, s[12:15], s36 offen offset:{1024*i} lds", tag))
    for u in range(5):
        srdn = [16, 16, 20, 20, 24][u]
        voff = "v2" if u < 4 else "v3"
        soff = "s37" if u < 4 else "s38"
        io = 128 if u in (1, 3) else 0
        ops.append(lambda u=u, io=io: p(f"s_add_u32 m0, s41, {u*16384 + stage*4096 - io}"))
        ops.append(lambda srdn=srdn, voff=voff, soff=soff, io=io: p.vmem(
            f"buffer_load_dwordx4 {voff}, s[{srdn}:{srdn+3}], {soff} offen offset:{io} lds", tag))
    ops.append(lambda: p("s_add_u32 s36, s36, 0x4000"))
    ops.append(lambda: p("s_add_u32 s37, s37, s39"))
    ops.append(lambda: p(f"s_add_u32 s38, s38, {32*6144}"))
    return ops

def read_ops(p, stage, st, tag):
    ops = []
    ra = [lambda mb=mb: p.lds(f"ds_read_b128 {vr(fragA(st, mb), 4)}, v4 offset:{stage*16384 + mb*1024}", tag) for mb in range(8)]
    rb = []
    for nb in range(10):
        for e in range(2):
            f, b = fragB(st, nb)
            if nb < 8:
                a = 5 + (nb & 3); off = stage * 4096 + e * 512 + (nb >> 2) * 32768
            else:
                a = 9 + (nb - 8); off = stage * 4096 + e * 512
            rb.append(lambda b=b, e=e, a=a, off=off: p.lds(f"ds_read_b64_tr_b16 a[{b+2*e}:{b+2*e+1}], v{a} offset:{off}", tag))
    out = []
    ia = ib = 0
    while ia < len(ra) or ib < len(rb):
        if ia < len(ra): out.append(ra[ia]); ia += 1
        for _ in range(3 if ia > 4 else 2):
            if ib < len(rb): out.append(rb[ib]); ib += 1
    return out

def merge_ops(a, b):
    out = []
    na, nb = len(a), len(b)
    ia = ib = 0
    while ia < na or ib < nb:
        if ib >= nb or (ia < na and ia * nb <= ib * na):
            out.append(a[ia]); ia += 1
        else:
            out.append(b[ib]); ib += 1
    return out

PF = os.environ.get('K1PF', '1') == '1'
def iteration(p, t, isV, NK=32, loopctl=None, dmas=None, pf=None):
    st = t & 1
    slots = {}
    def add(k, fn): slots.setdefault(k, []).append(fn)
    if t + 1 < NK:
        add(0, lambda: p.wait(vm=f"d{t+1}", force=True))
        add(1, lambda: p("s_barrier"))
        rd = read_ops(p, (t + 1) & 3, 1 - st, f"f{t+1}")
        dm = []
        for d in dmas: dm += dma_ops(p, d & 3, f"d{d}")
        k0, k1 = 2, 66
        for i, o in enumerate(rd):
            add(k0 + (i * (k1 - k0)) // max(len(rd), 1), o)
        k0, k1 = 3, 76
        for i, o in enumerate(dm):
            add(k0 + (i * (k1 - k0)) // max(len(dm), 1), o)
    if PF and pf in ("wd", "wo"):
        add(77, lambda: p.vmem("buffer_load_dword v11, v15, s[64:67], s49 offen", "pf"))
        add(78, lambda: p("s_add_u32 s49, s49, s72"))
    if PF and pf == "wo":
        add(40, lambda: p.vmem("buffer_load_dword v11, v16, s[68:71], s51 offen", "pf"))
        add(41, lambda: p("s_add_u32 s51, s51, 0x80000"))
    if loopctl:
        add(76, lambda: p("s_sub_u32 s42, s42, 1"))
        add(79, lambda: p("s_cmp_lg_u32 s42, 0"))
    k = 0
    for mb in range(8):
        order = range(10) if mb % 2 == 0 else range(9, -1, -1)
        for nb in order:
            d = vr(acc(mb, nb), 4)
            c = "0" if t == 0 else d
            xa = vr(fragA(st, mb), 4); wb = vr(fragB(st, nb), 4)
            if isV and nb < 8:
                p(f"v_mfma_f32_16x16x32_bf16 {d}, {xa}, {wb}, {c}")
            else:
                p(f"v_mfma_f32_16x16x32_bf16 {d}, {wb}, {xa}, {c}")
            for fn in slots.get(k, []): fn()
            k += 1
    if STAMP and loopctl: p("s_memtime s[76:77]")
    if t + 1 < NK:
        p.wait(lg=f"f{t+1}")
    if STAMP and loopctl:
        p("s_waitcnt lgkmcnt(0)")
        p("s_mov_b32 m0, s42")
        p("s_nop 1")
        p("v_writelane_b32 v47, s76, m0")
    if loopctl:
        p(f"s_cbranch_scc1 {loopctl}")

def get4(p, tile, tmp):
    f, b = tile
    if f == "v": return b
    for i in range(4):
        p(f"v_accvgpr_read_b32 v{tmp+i}, a{b+i}")
    return tmp

STP = os.environ.get('K1ST', 'sc1')
def epi_qk(p):
    for mb in range(8):
        T = 16 + 16 * (mb & 1)
        a = get4(p, acc(mb, 8), T)
        b = get4(p, acc(mb, 9), T + 4)
        for i in range(0, 8, 2):
            p(f"v_pk_mul_f32 v[{T+i}:{T+i+1}], v[{T+i}:{T+i+1}], s[56:57]")
        for i in range(4):
            p(f"v_cvt_pk_bf16_f32 v{T+8+i}, v{T+2*i}, v{T+2*i+1}")
        p.vmem(f"buffer_store_dwordx4 v[{T+8}:{T+11}], v{13+(mb&1)}, s[32:35], s{52+(mb>>1)} offen {STP}", "st")

def epi_f(p):
    n = 0
    for mb in range(8):
        for pr in range(2):
            T = 16 + 16 * (n & 1); n += 1
            g0 = acc(mb, 2 * pr)[1]; g1 = acc(mb, 2 * pr + 1)[1]
            assert g1 == g0 + 4
            for i in range(0, 8, 2):
                p(f"v_pk_mul_f32 v[{g0+i}:{g0+i+1}], v[{g0+i}:{g0+i+1}], s[58:59]")
            u0 = get4(p, acc(mb, 4 + 2 * pr), T)
            u1 = get4(p, acc(mb, 5 + 2 * pr), T + 4)
            assert u1 == u0 + 4
            for i in range(8):
                p(f"v_exp_f32 v{g0+i}, v{g0+i}")
            for i in range(0, 8, 2):
                p(f"v_pk_add_f32 v[{g0+i}:{g0+i+1}], v[{g0+i}:{g0+i+1}], 1.0 op_sel_hi:[1,0]")
            for i in range(8):
                p(f"v_rcp_f32 v{g0+i}, v{g0+i}")
            for i in range(0, 8, 2):
                p(f"v_pk_mul_f32 v[{g0+i}:{g0+i+1}], v[{g0+i}:{g0+i+1}], v[{u0+i}:{u0+i+1}]")
            for i in range(4):
                p(f"v_cvt_pk_bf16_f32 v{T+8+i}, v{g0+2*i}, v{g0+2*i+1}")
            so = "0" if pr == 0 else "s50"
            p.vmem(f"buffer_store_dwordx4 v[{T+8}:{T+11}], v12, s[28:31], {so} offen offset:{(mb>>1)*1024 + (mb&1)*256} {STP}", "st")

def epi_v(p):
    n = 0
    for j in range(4):
        for nb in range(8):
            T = 16 + 16 * (n & 1); n += 1
            a = get4(p, acc(2 * j, nb), T)
            b = get4(p, acc(2 * j + 1, nb), T + 4)
            hd = (nb >> 2) * 4 + ((nb & 3) >> 1)
            p(f"s_mov_b32 s51, {hex(hd * 262144 + j * 4096)}")
            p(f"v_cvt_pk_bf16_f32 v{T+8}, v{a}, v{a+1}")
            p(f"v_cvt_pk_bf16_f32 v{T+9}, v{a+2}, v{a+3}")
            p(f"v_cvt_pk_bf16_f32 v{T+10}, v{b}, v{b+1}")
            p(f"v_cvt_pk_bf16_f32 v{T+11}, v{b+2}, v{b+3}")
            p.vmem(f"buffer_store_dwordx4 v[{T+8}:{T+11}], v12, s[28:31], s51 offen offset:{(nb&1)*256} {STP}", "st")
            if len(p.vmq) > 40:
                p.vmq = p.vmq[-20:]


def epi_ops_group(p, isV, mbs, nbs, st, packed):
    ops = []
    def V(text, cost=4): ops.append((lambda text=text: p(text), cost))
    def get(tile, tmp):
        f, b = tile
        if f == "v": return b
        for i in range(4): V(f"v_accvgpr_read_b32 v{tmp+i}, a{b+i}")
        return tmp
    def mul_s(base, n, sreg):
        if packed:
            for i in range(0, n, 2): V(f"v_pk_mul_f32 v[{base+i}:{base+i+1}], v[{base+i}:{base+i+1}], s[{sreg}:{sreg+1}]")
        else:
            for i in range(n): V(f"v_mul_f32 v{base+i}, s{sreg}, v{base+i}")
    if nbs == (8, 9):
        for mb in mbs:
            T = 16 + 16 * (st["n"] & 1); st["n"] += 1
            get(acc(mb, 8), T); get(acc(mb, 9), T + 4)
            mul_s(T, 8, 56)
            for i in range(4): V(f"v_cvt_pk_bf16_f32 v{T+8+i}, v{T+2*i}, v{T+2*i+1}")
            ops.append((lambda T=T, mb=mb: p.vmem(f"buffer_store_dwordx4 v[{T+8}:{T+11}], v{13+(mb&1)}, s[32:35], s{52+(mb>>1)} offen {STP}", "st"), 4))
    elif not isV:
        pr = nbs[0] // 2
        for mb in mbs:
            T = 16 + 16 * (st["n"] & 1); st["n"] += 1
            g0 = acc(mb, 2 * pr)[1]
            mul_s(g0, 8, 58)
            for i in range(8): V(f"v_exp_f32 v{g0+i}, v{g0+i}", 8)
            u0 = get(acc(mb, 4 + 2 * pr), T); u1 = get(acc(mb, 5 + 2 * pr), T + 4)
            assert u1 == u0 + 4
            if packed:
                for i in range(0, 8, 2): V(f"v_pk_add_f32 v[{g0+i}:{g0+i+1}], v[{g0+i}:{g0+i+1}], 1.0 op_sel_hi:[1,0]")
            else:
                for i in range(8): V(f"v_add_f32 v{g0+i}, 1.0, v{g0+i}")
            for i in range(8): V(f"v_rcp_f32 v{g0+i}, v{g0+i}", 8)
            if packed:
                for i in range(0, 8, 2): V(f"v_pk_mul_f32 v[{g0+i}:{g0+i+1}], v[{g0+i}:{g0+i+1}], v[{u0+i}:{u0+i+1}]")
            else:
                for i in range(8): V(f"v_mul_f32 v{g0+i}, v{g0+i}, v{u0+i}")
            for i in range(4): V(f"v_cvt_pk_bf16_f32 v{T+8+i}, v{g0+2*i}, v{g0+2*i+1}")
            so = "0" if pr == 0 else "s50"
            ops.append((lambda T=T, mb=mb, so=so: p.vmem(f"buffer_store_dwordx4 v[{T+8}:{T+11}], v12, s[28:31], {so} offen offset:{(mb>>1)*1024 + (mb&1)*256} {STP}", "st"), 4))
    else:
        for j in sorted({mb >> 1 for mb in mbs}):
            for nb in nbs:
                T = 16 + 16 * (st["n"] & 1); st["n"] += 1
                a = get(acc(2 * j, nb), T); b = get(acc(2 * j + 1, nb), T + 4)
                hd = (nb >> 2) * 4 + ((nb & 3) >> 1)
                V(f"s_mov_b32 s51, {hex(hd * 262144 + j * 4096)}")
                V(f"v_cvt_pk_bf16_f32 v{T+8}, v{a}, v{a+1}")
                V(f"v_cvt_pk_bf16_f32 v{T+9}, v{a+2}, v{a+3}")
                V(f"v_cvt_pk_bf16_f32 v{T+10}, v{b}, v{b+1}")
                V(f"v_cvt_pk_bf16_f32 v{T+11}, v{b+2}, v{b+3}")
                ops.append((lambda T=T, nb=nb: p.vmem(f"buffer_store_dwordx4 v[{T+8}:{T+11}], v12, s[28:31], s51 offen offset:{(nb&1)*256} {STP}", "st"), 16))
    return ops

def tail(p, isV, T0=28, NK=32):
    M0, M1 = (0, 1, 2, 3), (4, 5, 6, 7)
    N0, N1, NQ = (0, 1, 4, 5), (2, 3, 6, 7), (8, 9)
    groups = [(M0, N0), (M0, NQ), (M0, N1), (M1, N1), (M1, NQ), (M1, N0)]
    steps = list(range(T0, NK))
    seq = []
    t = T0 - 1
    for mb in range(8):
        for nb in (range(10) if mb % 2 == 0 else range(9, -1, -1)): seq.append((mb, nb, t, -1))
    gend = []
    for gi, (ms, ns) in enumerate(groups):
        for t in steps:
            for a, mb in enumerate(ms):
                for nb in (ns if a % 2 == 0 else ns[::-1]): seq.append((mb, nb, t, gi))
        gend.append(len(seq) - 1)
    uses = {}
    for i, (mb, nb, t, gi) in enumerate(seq):
        uses.setdefault(("A", mb, t), []).append((i, gi))
        uses.setdefault(("B", nb, t), []).append((i, gi))
    inst = []
    for key, u in uses.items():
        cur = None
        for i, gi in u:
            if cur and gi - cur["g"] <= 1:
                cur["last"] = i; cur["g"] = gi
            else:
                cur = dict(key=key, first=i, last=i, g=gi); inst.append(cur)
    st0 = (T0 - 1) & 1
    free_at = {}
    for sl in range(36): free_at[sl] = -1
    where = {}
    for x in inst:
        k, idx, t = x["key"]
        if t == T0 - 1:
            x["slot"] = 18 * st0 + (idx if k == "A" else 8 + idx)
            x["rd"] = None
            free_at[x["slot"]] = x["last"]
    vis = {T0: 1, T0 + 1: 1, T0 + 2: 81, T0 + 3: 81 + 24}
    todo = sorted([x for x in inst if "slot" not in x], key=lambda x: x["first"])
    gap = 2
    for x in todo:
        k, idx, t = x["key"]
        sl = min(free_at, key=lambda s_: free_at[s_])
        g_ = max(gap, free_at[sl], vis[t], x["first"] - 72)
        assert g_ <= x["first"] - 6, (x, g_)
        x["slot"] = sl; x["rd"] = g_
        free_at[sl] = x["last"]
        gap = g_ + (2 if k == "B" else 1)
    reads = {}
    for x in todo:
        k, idx, t = x["key"]
        stage = t & 3; b = 4 * x["slot"]; tag = f"t{k}{idx}_{t}_{x['first']}"
        x["tag"] = tag
        if k == "A":
            reads.setdefault(x["rd"], []).append(lambda b=b, idx=idx, stage=stage, tag=tag: p.lds(f"ds_read_b128 a[{b}:{b+3}], v4 offset:{stage*16384 + idx*1024}", tag))
        else:
            for e in range(2):
                if idx < 8: a = 5 + (idx & 3); off = stage * 4096 + e * 512 + (idx >> 2) * 32768
                else: a = 9 + (idx - 8); off = stage * 4096 + e * 512
                reads.setdefault(x["rd"] + e, []).append(lambda b=b, e=e, a=a, off=off, tag=tag: p.lds(f"ds_read_b64_tr_b16 a[{b+2*e}:{b+2*e+1}], v{a} offset:{off}", tag))
    def find(k, idx, t, i):
        for x in inst:
            if x["key"] == (k, idx, t) and x["first"] <= i <= x["last"]: return x
        raise KeyError
    misc = {}
    def add(k, fn): misc.setdefault(k, []).append(fn)
    add(0, lambda: p.wait(vm=[f"d{T0}", f"d{T0+1}"], force=True)); add(1, lambda: p("s_barrier"))
    dm = dma_ops(p, (T0 + 3) & 3, f"d{T0+3}")
    for i, o in enumerate(dm): add(2 + 2 * i, o)
    add(80, lambda: p.wait(vm=f"d{T0+2}", force=True)); add(81, lambda: p("s_barrier"))
    add(80 + 24, lambda: p.wait(vm=f"d{T0+3}", force=True)); add(81 + 24, lambda: p("s_barrier"))
    stt = {"n": 0}
    epis = [epi_ops_group(p, isV, ms, ns, stt, packed=(gi == len(groups) - 1)) for gi, (ms, ns) in enumerate(groups)]
    DELAY = 4
    tot = sum(c for e in epis[:-1] for _, c in e)
    nm = len(seq) - (gend[0] + DELAY)
    rate = tot / nm
    fifo = []
    credit = 0.0
    for i, (mb, nb, t, gi) in enumerate(seq):
        xa = find("A", mb, t, i); xb = find("B", nb, t, i)
        tags = [x["tag"] for x in (xa, xb) if x.get("tag")]
        if tags: p.wait(lg=tags)
        d = vr(acc(mb, nb), 4)
        ra = f"a[{4*xa['slot']}:{4*xa['slot']+3}]"; rb = f"a[{4*xb['slot']}:{4*xb['slot']+3}]"
        if isV and nb < 8: p(f"v_mfma_f32_16x16x32_bf16 {d}, {ra}, {rb}, {d}")
        else: p(f"v_mfma_f32_16x16x32_bf16 {d}, {rb}, {ra}, {d}")
        for fn in misc.get(i, []): fn()
        for fn in reads.get(i, []): fn()
        for g2, e in enumerate(gend[:-1]):
            if i == e + DELAY: fifo += epis[g2]
        if fifo: credit += rate
        else: credit = 0.0
        while fifo and credit >= fifo[0][1] / 2:
            fn, c = fifo.pop(0); fn(); credit -= c
    stamp(p, 4)
    for fn, c in fifo: fn()
    if len(fifo) < 8: p("s_nop 7")
    for fn, c in epis[-1]: fn()

def gen_k1(name="gemm1_kernel"):
    p = Prog()
    p("s_cmp_ge_u32 s2, 256")
    p("s_cbranch_scc1 L_k1_end")
    stamp(p, 0); stamp_rt(p, 1)
    p(f"s_load_dwordx2 s[4:5], s[0:1], {KA_WS}")
    p(f"s_load_dwordx2 s[6:7], s[0:1], {KA_WQKV}")
    p(f"s_load_dwordx4 s[8:11], s[0:1], {KA_WG}")
    if PF:
        p(f"s_load_dwordx2 s[72:73], s[0:1], {KA_WD}")
        p(f"s_load_dwordx2 s[74:75], s[0:1], {KA_WO}")
    code_prefetch(p, "k1", "L_k1_end", 0, 20, 76, n=2)
    p("v_lshrrev_b32 v11, 6, v0")
    p("v_and_b32 v0, 63, v0")
    p("v_readfirstlane_b32 s45, v11")
    p("s_and_b32 s3, s2, 7")
    p("s_lshr_b32 s43, s2, 3")
    p("s_lshr_b32 s61, s43, 3")
    p("s_and_b32 s43, s43, 7")
    p("s_mul_i32 s44, s3, 3")
    p("s_add_u32 s44, s44, s61")
    p("s_lshr_b32 s62, s43, 2")
    p("s_xor_b32 s62, s62, s3")
    p("s_and_b32 s62, s62, 1")
    p("s_lshl_b32 s62, s62, 2")
    p("s_lshr_b32 s63, s3, 1")
    p("s_sub_u32 s63, s63, s62")
    p("s_add_u32 s63, s63, 28")
    p("s_cmp_eq_u32 s61, 3")
    p("s_cselect_b32 s44, s63, s44")
    p("s_lshr_b32 s46, s45, 1")
    p("s_and_b32 s47, s45, 1")
    p("s_cmp_ge_u32 s44, 28")
    p("s_cselect_b32 s48, 1, 0")
    csel(p, "s60", 6144, 7168)
    p("s_lshl_b32 s39, s60, 5")
    p("s_lshl_b32 s40, s45, 12")
    p("v_lshlrev_b32 v1, 4, v0")
    p("v_add_u32 v1, s40, v1")
    p("s_lshl_b32 s41, s45, 10")
    p("s_add_u32 s41, s41, 0x10000")
    p("v_lshrrev_b32 v11, 3, v0")
    p("s_lshl_b32 s3, s45, 3")
    p("v_add_u32 v11, s3, v11")
    p("v_bfe_u32 v12, v0, 4, 1")
    p("s_and_b32 s3, s45, 1")
    p("s_lshl_b32 s3, s3, 1")
    p("v_or_b32 v12, s3, v12")
    p("v_lshlrev_b32 v12, 1, v12")
    p("v_and_b32 v13, 7, v0")
    p("v_xor_b32 v12, v12, v13")
    p("v_lshlrev_b32 v12, 4, v12")
    p("v_mul_lo_u32 v2, v11, s60")
    p("v_add_u32 v2, v2, v12")
    p("v_mul_u32_u24 v3, 6144, v11")
    p("v_add_u32 v3, v3, v12")
    p("s_waitcnt lgkmcnt(0)")
    stamp(p, 8)
    p("s_lshl_b32 s3, s43, 19")
    if XN_OFF: p(f"s_add_u32 s3, s3, {hex(XN_OFF)}")
    srd(p, 12, 4, "s3", 524288)
    p("s_lshl_b32 s61, s44, 8")
    p("s_lshl_b32 s62, s44, 9")
    p(f"s_sub_u32 s62, s62, {28*512 - 4096}")
    p("s_add_u32 s63, s62, 256")
    p("s_cmp_eq_u32 s48, 1")
    p("s_cselect_b32 s64, s62, s61")
    p("s_cselect_b32 s65, s63, s61")
    p("s_cselect_b32 s66, s6, s8")
    p("s_cselect_b32 s67, s7, s9")
    p("s_cselect_b32 s68, s6, s10")
    p("s_cselect_b32 s69, s7, s11")
    csel(p, "s70", D*3*D*2, D*F*2)
    p("s_sub_u32 s71, s70, s64")
    srd(p, 16, 66, "s64", "s71")
    p("s_sub_u32 s71, s70, s65")
    srd(p, 20, 68, "s65", "s71")
    p("s_lshl_b32 s61, s44, 7")
    p(f"s_sub_u32 s71, {hex(D*3*D*2)}, s61")
    srd(p, 24, 6, "s61", "s71")
    p("s_mov_b32 s36, 0")
    p("s_mov_b32 s37, 0")
    p("s_mov_b32 s38, 0")
    def pro_dma(t):
        for i, o in enumerate(dma_ops(p, t, f"d{t}")):
            o()
            if "m0" in p.ins[-1].text and p.ins[-1].text.startswith("s_add"):
                p("s_nop 0")
    pro_dma(0)
    stamp(p, 9)
    pro_dma(1)
    p("v_lshlrev_b32 v4, 4, v0")
    p("s_lshl_b32 s3, s46, 13")
    p("v_add_u32 v4, s3, v4")
    p("v_lshrrev_b32 v11, 4, v0")
    p("v_bfe_u32 v12, v0, 2, 2")
    p("v_and_b32 v13, 3, v0")
    p("v_lshlrev_b32 v14, 10, v11")
    p("v_lshl_add_u32 v14, v12, 7, v14")
    p("v_lshl_add_u32 v14, v13, 3, v14")
    p("v_lshrrev_b32 v15, 1, v12")
    p("v_and_b32 v16, 1, v11")
    p("v_lshl_or_b32 v15, v16, 1, v15")
    p("s_lshl_b32 s3, s47, 14")
    p("s_add_u32 s3, s3, 0x10000")
    for nb in range(4):
        p(f"v_xor_b32 v16, {nb}, v15")
        p(f"v_lshl_add_u32 v16, v16, 5, v14")
        p(f"v_add_u32 v{5+nb}, s3, v16")
    p("s_lshl_b32 s3, s47, 1")
    for i in range(2):
        p(f"s_add_u32 s61, s3, {i}")
        p(f"v_xor_b32 v16, s61, v15")
        p(f"v_lshl_add_u32 v16, v16, 5, v14")
        p(f"v_add_u32 v{9+i}, 0x20000, v16")
    p("v_and_b32 v16, 15, v0")
    p("v_lshrrev_b32 v17, 1, v11")
    p("v_and_b32 v18, 1, v11")
    p("v_lshlrev_b32 v19, 9, v18")
    p("s_cmp_eq_u32 s48, 1")
    p("s_cselect_b32 s61, 10, 12")
    p("v_lshlrev_b32 v12, s61, v17")
    p("v_add_u32 v12, v12, v19")
    p("v_lshl_add_u32 v12, v16, 4, v12")
    p("v_lshl_add_u32 v19, v17, 10, v19")
    p("v_lshrrev_b32 v17, 3, v16")
    p("v_and_b32 v18, 7, v16")
    p("v_lshl_add_u32 v17, v17, 4, v18")
    p("s_cmp_lt_u32 s44, 16")
    p("s_cselect_b64 vcc, -1, 0")
    csel(p, "s61", 256, 128)
    csel(p, "s62", 2048, 4096)
    p(f"s_cselect_b32 s56, {hex(f2u(32**-0.5 * math.log2(math.e)))}, 1.0")
    p("s_mov_b32 s57, s56")
    csel(p, "s63", QF_OFF, KV_OFF)
    p("s_cselect_b32 s64, 17, 18")
    p("v_cndmask_b32 v17, v17, v16, vcc")
    p("v_lshl_add_u32 v13, v17, 4, v19")
    p("v_add_u32 v14, s61, v13")
    p("s_mov_b32 s52, 0")
    p("s_mov_b32 s53, s62")
    p("s_lshl_b32 s54, s62, 1")
    p("s_add_u32 s55, s54, s62")
    p("s_and_b32 s65, s44, 15")
    p("s_lshl_b32 s65, s65, 1")
    p("s_add_u32 s65, s65, s47")
    p("s_lshl_b32 s65, s65, s64")
    p("s_add_u32 s63, s63, s65")
    p("s_lshl_b32 s65, s43, 3")
    p("s_lshl_b32 s66, s46, 2")
    p("s_add_u32 s65, s65, s66")
    p("s_mul_i32 s66, s65, s62")
    p("s_add_u32 s63, s63, s66")
    p("s_lshl_b32 s67, s62, 2")
    srd(p, 32, 4, "s63", "s67")
    p("s_lshl_b32 s66, s43, 1")
    p("s_add_u32 s66, s66, s46")
    p("s_mul_i32 s66, s66, 917504")
    p("s_lshl_b32 s67, s44, 1")
    p("s_add_u32 s67, s67, s47")
    p("s_lshl_b32 s67, s67, 14")
    p("s_add_u32 s66, s66, s67")
    p(f"s_add_u32 s66, s66, {hex(HF_OFF)}")
    p("s_sub_u32 s67, s44, 28")
    p("s_lshl_b32 s67, s67, 2")
    p("s_add_u32 s67, s67, s47")
    p("s_lshl_b32 s67, s67, 19")
    p("s_lshl_b32 s68, s65, 12")
    p("s_add_u32 s67, s67, s68")
    p(f"s_add_u32 s67, s67, {hex(KV_OFF + 2048)}")
    p("s_cmp_eq_u32 s48, 1")
    p("s_cselect_b32 s66, s67, s66")
    csel(p, "s67", 5*262144 + 4*4096 - 2048, 0x4000)
    srd(p, 28, 4, "s66", "s67")
    p("s_mov_b32 s50, 0x2000")
    p(f"s_mov_b32 s58, {hex(f2u(-math.log2(math.e)))}")
    p("s_mov_b32 s59, s58")
    stamp(p, 7)
    if PF:
        R0 = int(os.environ.get("K0PF", "192"))
        p("s_lshl_b32 s3, s2, 2")
        p("s_add_u32 s3, s3, s45")
        p("s_lshl_b32 s3, s3, 6")
        p("v_add_u32 v16, s3, v0")
        p("v_lshlrev_b32 v16, 3, v16")
        srd(p, 68, 74, 0, D * D * 2)
        p("s_mov_b32 s51, 0")
        p("s_mov_b64 s[62:63], s[6:7]"); p("s_mov_b32 s61, 6"); p(f"s_mov_b32 s60, {hex(D*3*D*2)}"); p(f"s_mov_b32 s49, {R0*6144}")
        p("s_cmp_eq_u32 s45, 0")
        p("s_cbranch_scc1 L_k1_pfsel")
        p("s_mov_b64 s[62:63], s[8:9]"); p("s_mov_b32 s61, 7"); p(f"s_mov_b32 s60, {hex(D*F*2)}"); p(f"s_mov_b32 s49, {R0*7168}")
        p("s_cmp_eq_u32 s45, 1")
        p("s_cbranch_scc1 L_k1_pfsel")
        p("s_mov_b64 s[62:63], s[10:11]")
        p("s_cmp_eq_u32 s45, 2")
        p("s_cbranch_scc1 L_k1_pfsel")
        p("s_mov_b64 s[62:63], s[72:73]"); p("s_mov_b32 s61, 10"); p("s_mov_b32 s49, 0")
        p.label("L_k1_pfsel")
        srd(p, 64, 62, 0, "s60")
        p("s_lshl_b32 s72, s61, 15")
        p("s_mul_i32 s3, s2, s61")
        p("v_add_u32 v15, s3, v0")
        p("v_lshlrev_b32 v15, 7, v15")
        p("v_cmp_gt_u32 vcc, s61, v0")
        p("v_bfrev_b32 v17, 1")
        p("s_nop 0")
        p("v_cndmask_b32 v15, v17, v15, vcc")
    stamp(p, 2)
    p.wait(vm="d0")
    p("s_barrier")
    stamp(p, 3)
    for o in read_ops(p, 0, 0, "f0"): o()
    p("s_mov_b32 s42, 6")
    p("s_cmp_eq_u32 s48, 1")
    p.wait(lg="f0")
    p("s_cbranch_scc1 L_k1_v")
    head = p.mark()
    lin_all = []
    out_text = []
    final = Prog()
    final.ins = list(p.ins)
    for isV in (False, True):
        q = Prog(); q.vmq = list(p.vmq); q.lgq = list(p.lgq)
        sfx = "v" if isV else "f"
        marks = []
        iteration(q, 0, isV, dmas=[2, 3], pf="wd")
        iteration(q, 1, isV, dmas=[4, 5], pf="wd")
        for t in range(2, 26):
            if t % 4 == 2: marks.append(q.mark())
            iteration(q, t, isV, loopctl=(f"L_k1_loop_{sfx}" if t % 4 == 1 else None), dmas=[t + 4],
                      pf=("wo" if t % 4 == 0 else "wd"))
        marks.append(q.mark())
        iteration(q, 26, isV, dmas=[30])
        body = unify([q.ins[marks[i]:marks[i+1]] for i in range(6)])
        if STAMP:
            for i in range(5): q(f"v_readlane_b32 s{64+i}, v47, {[5,4,3,1,0][i]}")
        tail(q, isV)
        stamp(q, 5)
        if STAMP: q("s_waitcnt vmcnt(0)")
        stamp(q, 6); stamp_rt(q, 10)
        stamp_out(q, 11, 1, 4, "s45", extra=[64, 65, 66, 67, 68])
        q("s_endpgm")
        lin_all.append([i.text for i in p.ins] + [i.text for i in q.ins])
        if isV:
            final.label("L_k1_v")
        final.ins += q.ins[:marks[0]]
        final.ins.append(Ins(".p2align 6", "dir"))
        final.label(f"L_k1_loop_{sfx}")
        final.ins += body
        final.ins += q.ins[marks[6]:]
    final.label("L_k1_end")
    final("s_endpgm")
    launch = f"; @launch kernel={name} grid=(256,1,1) block=(256,1,1) lds=147456"
    return dict(name=name, prog=final, launch=launch, kd=kd(name, 512, 102, 256), lins=lin_all)
```

```python
from asmlib import *
MB = 1 << 20
XN_OFF = 0
QF_OFF = 4 * MB
KV_OFF = 8 * MB
HF_OFF = 16 * MB
OF_OFF = 32 * MB
YG_OFF = 36 * MB
FL_OFF = 40 * MB
S = 2048; D = 1024; F = 3584
KA_X, KA_WQKV, KA_WO, KA_BX, KA_WG, KA_WU, KA_WD, KA_OUT, KA_DBG, KA_WS = [8 * i for i in range(10)]

def srd(p, d, ptr, off, size):
    if off == 0:
        p(f"s_mov_b32 s{d}, s{ptr}")
        p(f"s_and_b32 s{d+1}, s{ptr+1}, 0xffff")
    else:
        o = off if isinstance(off, str) else hex(off)
        p(f"s_add_u32 s{d}, s{ptr}, {o}")
        p(f"s_addc_u32 s{d+1}, s{ptr+1}, 0")
        p(f"s_and_b32 s{d+1}, s{d+1}, 0xffff")
    sz = size if isinstance(size, str) else hex(size)
    p(f"s_mov_b32 s{d+2}, {sz}")
    p(f"s_mov_b32 s{d+3}, 0x20000")

def kernel_text(name, p):
    return f".p2align 8\n.globl {name}\n.type {name},@function\n{name}:\n" + p.text() + "\n"

def csel(p, d, a, b):
    p(f"s_mov_b32 {d}, {hex(b)}")
    p(f"s_cmov_b32 {d}, {hex(a)}")

import os
STAMP = os.environ.get("STAMP", "0") == "1"
DBG_OFF = 64 * MB
STS = int(os.environ.get("STS", "2"))
def stamp(p, idx, grp=0, base=80):
    if not STAMP or (grp and grp != STS): return
    p(f"{'s_memrealtime' if os.environ.get('RT') == '1' else 's_memtime'} s[{base+2*idx}:{base+2*idx+1}]")
def stamp_rt(p, idx, base=80):
    if not STAMP: return
    p(f"s_memrealtime s[{base+2*idx}:{base+2*idx+1}]")
def stamp_out(p, n, kidx, wsptr, wave_sgpr, nwaves=4, base=80, tmp=72, extra=(), vt=1):
    if not STAMP: return
    p("s_waitcnt vmcnt(0) lgkmcnt(0)")
    srd(p, tmp, wsptr, DBG_OFF + kidx * MB, MB)
    p(f"s_mul_i32 s{tmp+4}, s2, {nwaves}")
    p(f"s_add_u32 s{tmp+4}, s{tmp+4}, {wave_sgpr}")
    p(f"s_lshl_b32 s{tmp+4}, s{tmp+4}, 6")
    p(f"v_mov_b32 v{vt}, 0")
    for i in range(n):
        p(f"v_mov_b32 v{vt+1}, s{base+2*i}")
        p(f"buffer_store_dword v{vt+1}, v{vt}, s[{tmp}:{tmp+3}], s{tmp+4} offen offset:{4*i}")
    for i, r in enumerate(extra):
        p(f"v_mov_b32 v{vt+1}, s{r}")
        p(f"buffer_store_dword v{vt+1}, v{vt}, s[{tmp}:{tmp+3}], s{tmp+4} offen offset:{4*(n+i)}")
    p("s_waitcnt vmcnt(0)")

CPF = os.environ.get("CPF", "1") == "1"
def code_prefetch(p, tag, end_label, vtid, vt, sp, n=1, start_label=None):
    if not CPF: return
    p(f"s_getpc_b64 s[{sp}:{sp+1}]")
    p.label(f"L_{tag}_pc")
    if start_label:
        p(f"s_add_u32 s{sp}, s{sp}, {start_label}-L_{tag}_pc")
        p(f"s_addc_u32 s{sp+1}, s{sp+1}, 0")
    base = start_label or f"L_{tag}_pc"
    for i in range(n):
        p(f"v_lshlrev_b32 v{vt}, 7, v{vtid}")
        if i: p(f"v_add_u32 v{vt}, {hex(i*32768)}, v{vt}")
        p(f"v_min_u32 v{vt}, {end_label}-{base}, v{vt}")
        p.vmem(f"global_load_dword v{vt+1}, v{vt}, s[{sp}:{sp+1}]", "cpf")
```

```python
from common import *
import math, struct

def f2u(x):
    return struct.unpack("<I", struct.pack("<f", x))[0]

def acc(mb, nb):
    if nb < 4:
        return ("v", 48 + 4 * (mb * 4 + nb))
    if nb < 8:
        if mb < 5:
            return ("v", 48 + 128 + 4 * (mb * 4 + nb - 4))
        return ("a", 144 + 4 * ((mb - 5) * 4 + nb - 4))
    return ("a", 144 + 48 + 4 * (mb * 2 + nb - 8))

def fragA(st, mb): return ("a", 72 * st + 4 * mb)
def fragB(st, nb): return ("a", 72 * st + 32 + 4 * nb)

HSC = os.environ.get("HSC", "sc1")
MERGED = [False]
def dma_ops(p, stage, tag, parts="AB"):
    ops = []
    sc = (" " + HSC) if MERGED[0] else ""
    if "A" in parts:
        ops.append(lambda: p(f"s_add_u32 m0, s40, {stage*16384}"))
        for i in range(4):
            ops.append(lambda i=i: p.vmem(f"buffer_load_dwordx4 v1, s[12:15], s36 offen offset:{1024*i}{sc} lds", tag))
    if "B" in parts:
        for u in range(5):
            srdn = [16, 16, 20, 20, 24][u]
            voff = "v2" if u < 4 else "v3"
            soff = "s37" if u < 4 else "s38"
            io = 128 if u in (1, 3) else 0
            ops.append(lambda u=u, io=io: p(f"s_add_u32 m0, s41, {u*16384 + stage*4096 - io}"))
            ops.append(lambda srdn=srdn, voff=voff, soff=soff, io=io: p.vmem(
                f"buffer_load_dwordx4 {voff}, s[{srdn}:{srdn+3}], {soff} offen offset:{io} lds", tag))
    if "A" in parts:
        ops.append(lambda: p("s_add_u32 s36, s36, 0x4000"))
    if "B" in parts:
        ops.append(lambda: p("s_add_u32 s37, s37, s39"))
        ops.append(lambda: p(f"s_add_u32 s38, s38, {32*6144}"))
    return ops

def read_ops(p, stage, st, tag):
    ops = []
    ra = [lambda mb=mb: p.lds(f"ds_read_b128 {vr(fragA(st, mb), 4)}, v4 offset:{stage*16384 + mb*1024}", tag) for mb in range(8)]
    rb = []
    for nb in range(10):
        for e in range(2):
            f, b = fragB(st, nb)
            if nb < 8:
                a = 5 + (nb & 3); off = stage * 4096 + e * 512 + (nb >> 2) * 32768
            else:
                a = 9 + (nb - 8); off = stage * 4096 + e * 512
            rb.append(lambda b=b, e=e, a=a, off=off: p.lds(f"ds_read_b64_tr_b16 a[{b+2*e}:{b+2*e+1}], v{a} offset:{off}", tag))
    out = []
    ia = ib = 0
    while ia < len(ra) or ib < len(rb):
        if ia < len(ra): out.append(ra[ia]); ia += 1
        for _ in range(3 if ia > 4 else 2):
            if ib < len(rb): out.append(rb[ib]); ib += 1
    return out

def merge_ops(a, b):
    out = []
    na, nb = len(a), len(b)
    ia = ib = 0
    while ia < na or ib < nb:
        if ib >= nb or (ia < na and ia * nb <= ib * na):
            out.append(a[ia]); ia += 1
        else:
            out.append(b[ib]); ib += 1
    return out

PF = os.environ.get('K1PF', '1') == '1'
def iteration(p, t, isV, NK=32, loopctl=None, dmas=None, pf=None):
    st = t & 1
    slots = {}
    def add(k, fn): slots.setdefault(k, []).append(fn)
    if t + 1 < NK:
        add(0, lambda: p.wait(vm=f"d{t+1}", force=True))
        add(1, lambda: p("s_barrier"))
        rd = read_ops(p, (t + 1) & 3, 1 - st, f"f{t+1}")
        dm = []
        for d in dmas:
            d, parts = d if isinstance(d, tuple) else (d, "AB")
            dm += dma_ops(p, d & 3, f"d{d}", parts)
        k0, k1 = 2, 66
        for i, o in enumerate(rd):
            add(k0 + (i * (k1 - k0)) // max(len(rd), 1), o)
        k0, k1 = 3, 76
        for i, o in enumerate(dm):
            add(k0 + (i * (k1 - k0)) // max(len(dm), 1), o)
    if PF and pf in ("wd", "wo"):
        add(77, lambda: p.vmem("buffer_load_dword v46, v44, s[64:67], s49 offen", "pf"))
        add(78, lambda: p("s_add_u32 s49, s49, s72"))
    if PF and pf == "wo":
        add(40, lambda: p.vmem("buffer_load_dword v46, v45, s[68:71], s51 offen", "pf"))
        add(41, lambda: p("s_add_u32 s51, s51, 0x80000"))
    if loopctl:
        add(76, lambda: p("s_sub_u32 s42, s42, 1"))
        add(79, lambda: p("s_cmp_lg_u32 s42, 0"))
    k = 0
    for mb in range(8):
        order = range(10) if mb % 2 == 0 else range(9, -1, -1)
        for nb in order:
            d = vr(acc(mb, nb), 4)
            c = "0" if t == 0 else d
            xa = vr(fragA(st, mb), 4); wb = vr(fragB(st, nb), 4)
            if isV and nb < 8:
                p(f"v_mfma_f32_16x16x32_bf16 {d}, {xa}, {wb}, {c}")
            else:
                p(f"v_mfma_f32_16x16x32_bf16 {d}, {wb}, {xa}, {c}")
            for fn in slots.get(k, []): fn()
            k += 1
    if STAMP and loopctl: p("s_memtime s[76:77]")
    if t + 1 < NK:
        p.wait(lg=f"f{t+1}")
    if STAMP and loopctl:
        p("s_waitcnt lgkmcnt(0)")
        p("s_mov_b32 m0, s42")
        p("s_nop 1")
        p("v_writelane_b32 v47, s76, m0")
    if loopctl:
        p(f"s_cbranch_scc1 {loopctl}")

def get4(p, tile, tmp):
    f, b = tile
    if f == "v": return b
    for i in range(4):
        p(f"v_accvgpr_read_b32 v{tmp+i}, a{b+i}")
    return tmp

STP = os.environ.get('K1ST', 'sc1')
def epi_qk(p):
    for mb in range(8):
        T = 16 + 16 * (mb & 1)
        a = get4(p, acc(mb, 8), T)
        b = get4(p, acc(mb, 9), T + 4)
        for i in range(0, 8, 2):
            p(f"v_pk_mul_f32 v[{T+i}:{T+i+1}], v[{T+i}:{T+i+1}], s[56:57]")
        for i in range(4):
            p(f"v_cvt_pk_bf16_f32 v{T+8+i}, v{T+2*i}, v{T+2*i+1}")
        p.vmem(f"buffer_store_dwordx4 v[{T+8}:{T+11}], v{13+(mb&1)}, s[32:35], s{52+(mb>>1)} offen {STP}", "st")

def epi_f(p):
    n = 0
    for mb in range(8):
        for pr in range(2):
            T = 16 + 16 * (n & 1); n += 1
            g0 = acc(mb, 2 * pr)[1]; g1 = acc(mb, 2 * pr + 1)[1]
            assert g1 == g0 + 4
            for i in range(0, 8, 2):
                p(f"v_pk_mul_f32 v[{g0+i}:{g0+i+1}], v[{g0+i}:{g0+i+1}], s[58:59]")
            u0 = get4(p, acc(mb, 4 + 2 * pr), T)
            u1 = get4(p, acc(mb, 5 + 2 * pr), T + 4)
            assert u1 == u0 + 4
            for i in range(8):
                p(f"v_exp_f32 v{g0+i}, v{g0+i}")
            for i in range(0, 8, 2):
                p(f"v_pk_add_f32 v[{g0+i}:{g0+i+1}], v[{g0+i}:{g0+i+1}], 1.0 op_sel_hi:[1,0]")
            for i in range(8):
                p(f"v_rcp_f32 v{g0+i}, v{g0+i}")
            for i in range(0, 8, 2):
                p(f"v_pk_mul_f32 v[{g0+i}:{g0+i+1}], v[{g0+i}:{g0+i+1}], v[{u0+i}:{u0+i+1}]")
            for i in range(4):
                p(f"v_cvt_pk_bf16_f32 v{T+8+i}, v{g0+2*i}, v{g0+2*i+1}")
            so = "0" if pr == 0 else "s50"
            p.vmem(f"buffer_store_dwordx4 v[{T+8}:{T+11}], v12, s[28:31], {so} offen offset:{(mb>>1)*1024 + (mb&1)*256} {STP}", "st")

def epi_v(p):
    n = 0
    for j in range(4):
        for nb in range(8):
            T = 16 + 16 * (n & 1); n += 1
            a = get4(p, acc(2 * j, nb), T)
            b = get4(p, acc(2 * j + 1, nb), T + 4)
            hd = (nb >> 2) * 4 + ((nb & 3) >> 1)
            p(f"s_mov_b32 s51, {hex(hd * 262144 + j * 4096)}")
            p(f"v_cvt_pk_bf16_f32 v{T+8}, v{a}, v{a+1}")
            p(f"v_cvt_pk_bf16_f32 v{T+9}, v{a+2}, v{a+3}")
            p(f"v_cvt_pk_bf16_f32 v{T+10}, v{b}, v{b+1}")
            p(f"v_cvt_pk_bf16_f32 v{T+11}, v{b+2}, v{b+3}")
            p.vmem(f"buffer_store_dwordx4 v[{T+8}:{T+11}], v12, s[28:31], s51 offen offset:{(nb&1)*256} {STP}", "st")
            if len(p.vmq) > 40:
                p.vmq = p.vmq[-20:]


def epi_ops_group(p, isV, mbs, nbs, st, packed):
    ops = []
    def V(text, cost=4): ops.append((lambda text=text: p(text), cost))
    def get(tile, tmp):
        f, b = tile
        if f == "v": return b
        for i in range(4): V(f"v_accvgpr_read_b32 v{tmp+i}, a{b+i}")
        return tmp
    def mul_s(base, n, sreg):
        if packed:
            for i in range(0, n, 2): V(f"v_pk_mul_f32 v[{base+i}:{base+i+1}], v[{base+i}:{base+i+1}], s[{sreg}:{sreg+1}]")
        else:
            for i in range(n): V(f"v_mul_f32 v{base+i}, s{sreg}, v{base+i}")
    if nbs == (8, 9):
        for mb in mbs:
            T = 16 + 16 * (st["n"] & 1); st["n"] += 1
            get(acc(mb, 8), T); get(acc(mb, 9), T + 4)
            mul_s(T, 8, 56)
            for i in range(4): V(f"v_cvt_pk_bf16_f32 v{T+8+i}, v{T+2*i}, v{T+2*i+1}")
            ops.append((lambda T=T, mb=mb: p.vmem(f"buffer_store_dwordx4 v[{T+8}:{T+11}], v{13+(mb&1)}, s[32:35], s{52+(mb>>1)} offen {STP}", "st"), 4))
    elif not isV:
        pr = nbs[0] // 2
        for mb in mbs:
            T = 16 + 16 * (st["n"] & 1); st["n"] += 1
            g0 = acc(mb, 2 * pr)[1]
            mul_s(g0, 8, 58)
            for i in range(8): V(f"v_exp_f32 v{g0+i}, v{g0+i}", 8)
            u0 = get(acc(mb, 4 + 2 * pr), T); u1 = get(acc(mb, 5 + 2 * pr), T + 4)
            assert u1 == u0 + 4
            if packed:
                for i in range(0, 8, 2): V(f"v_pk_add_f32 v[{g0+i}:{g0+i+1}], v[{g0+i}:{g0+i+1}], 1.0 op_sel_hi:[1,0]")
            else:
                for i in range(8): V(f"v_add_f32 v{g0+i}, 1.0, v{g0+i}")
            for i in range(8): V(f"v_rcp_f32 v{g0+i}, v{g0+i}", 8)
            if packed:
                for i in range(0, 8, 2): V(f"v_pk_mul_f32 v[{g0+i}:{g0+i+1}], v[{g0+i}:{g0+i+1}], v[{u0+i}:{u0+i+1}]")
            else:
                for i in range(8): V(f"v_mul_f32 v{g0+i}, v{g0+i}, v{u0+i}")
            for i in range(4): V(f"v_cvt_pk_bf16_f32 v{T+8+i}, v{g0+2*i}, v{g0+2*i+1}")
            so = "0" if pr == 0 else "s50"
            ops.append((lambda T=T, mb=mb, so=so: p.vmem(f"buffer_store_dwordx4 v[{T+8}:{T+11}], v12, s[28:31], {so} offen offset:{(mb>>1)*1024 + (mb&1)*256} {STP}", "st"), 4))
    else:
        for j in sorted({mb >> 1 for mb in mbs}):
            for nb in nbs:
                T = 16 + 16 * (st["n"] & 1); st["n"] += 1
                a = get(acc(2 * j, nb), T); b = get(acc(2 * j + 1, nb), T + 4)
                hd = (nb >> 2) * 4 + ((nb & 3) >> 1)
                V(f"s_mov_b32 s51, {hex(hd * 262144 + j * 4096)}")
                V(f"v_cvt_pk_bf16_f32 v{T+8}, v{a}, v{a+1}")
                V(f"v_cvt_pk_bf16_f32 v{T+9}, v{a+2}, v{a+3}")
                V(f"v_cvt_pk_bf16_f32 v{T+10}, v{b}, v{b+1}")
                V(f"v_cvt_pk_bf16_f32 v{T+11}, v{b+2}, v{b+3}")
                ops.append((lambda T=T, nb=nb: p.vmem(f"buffer_store_dwordx4 v[{T+8}:{T+11}], v12, s[28:31], s51 offen offset:{(nb&1)*256} {STP}", "st"), 16))
    return ops

def tail(p, isV, T0=28, NK=32):
    M0, M1 = (0, 1, 2, 3), (4, 5, 6, 7)
    N0, N1, NQ = (0, 1, 4, 5), (2, 3, 6, 7), (8, 9)
    groups = [(M0, N0), (M0, NQ), (M0, N1), (M1, N1), (M1, NQ), (M1, N0)]
    steps = list(range(T0, NK))
    seq = []
    t = T0 - 1
    for mb in range(8):
        for nb in (range(10) if mb % 2 == 0 else range(9, -1, -1)): seq.append((mb, nb, t, -1))
    gend = []
    for gi, (ms, ns) in enumerate(groups):
        for t in steps:
            for a, mb in enumerate(ms):
                for nb in (ns if a % 2 == 0 else ns[::-1]): seq.append((mb, nb, t, gi))
        gend.append(len(seq) - 1)
    uses = {}
    for i, (mb, nb, t, gi) in enumerate(seq):
        uses.setdefault(("A", mb, t), []).append((i, gi))
        uses.setdefault(("B", nb, t), []).append((i, gi))
    inst = []
    for key, u in uses.items():
        cur = None
        for i, gi in u:
            if cur and gi - cur["g"] <= 1:
                cur["last"] = i; cur["g"] = gi
            else:
                cur = dict(key=key, first=i, last=i, g=gi); inst.append(cur)
    st0 = (T0 - 1) & 1
    free_at = {}
    for sl in range(36): free_at[sl] = -1
    where = {}
    for x in inst:
        k, idx, t = x["key"]
        if t == T0 - 1:
            x["slot"] = 18 * st0 + (idx if k == "A" else 8 + idx)
            x["rd"] = None
            free_at[x["slot"]] = x["last"]
    vis = {T0: 1, T0 + 1: 1, T0 + 2: 81, T0 + 3: 81 + 24}
    todo = sorted([x for x in inst if "slot" not in x], key=lambda x: x["first"])
    gap = 2
    for x in todo:
        k, idx, t = x["key"]
        sl = min(free_at, key=lambda s_: free_at[s_])
        g_ = max(gap, free_at[sl], vis[t], x["first"] - 72)
        assert g_ <= x["first"] - 6, (x, g_)
        x["slot"] = sl; x["rd"] = g_
        free_at[sl] = x["last"]
        gap = g_ + (2 if k == "B" else 1)
    reads = {}
    for x in todo:
        k, idx, t = x["key"]
        stage = t & 3; b = 4 * x["slot"]; tag = f"t{k}{idx}_{t}_{x['first']}"
        x["tag"] = tag
        if k == "A":
            reads.setdefault(x["rd"], []).append(lambda b=b, idx=idx, stage=stage, tag=tag: p.lds(f"ds_read_b128 a[{b}:{b+3}], v4 offset:{stage*16384 + idx*1024}", tag))
        else:
            for e in range(2):
                if idx < 8: a = 5 + (idx & 3); off = stage * 4096 + e * 512 + (idx >> 2) * 32768
                else: a = 9 + (idx - 8); off = stage * 4096 + e * 512
                reads.setdefault(x["rd"] + e, []).append(lambda b=b, e=e, a=a, off=off, tag=tag: p.lds(f"ds_read_b64_tr_b16 a[{b+2*e}:{b+2*e+1}], v{a} offset:{off}", tag))
    def find(k, idx, t, i):
        for x in inst:
            if x["key"] == (k, idx, t) and x["first"] <= i <= x["last"]: return x
        raise KeyError
    misc = {}
    def add(k, fn): misc.setdefault(k, []).append(fn)
    add(0, lambda: p.wait(vm=[f"d{T0}", f"d{T0+1}"], force=True)); add(1, lambda: p("s_barrier"))
    dm = dma_ops(p, (T0 + 3) & 3, f"d{T0+3}")
    for i, o in enumerate(dm): add(2 + 2 * i, o)
    add(80, lambda: p.wait(vm=f"d{T0+2}", force=True)); add(81, lambda: p("s_barrier"))
    add(80 + 24, lambda: p.wait(vm=f"d{T0+3}", force=True)); add(81 + 24, lambda: p("s_barrier"))
    stt = {"n": 0}
    epis = [epi_ops_group(p, isV, ms, ns, stt, packed=(gi == len(groups) - 1)) for gi, (ms, ns) in enumerate(groups)]
    DELAY = 4
    tot = sum(c for e in epis[:-1] for _, c in e)
    nm = len(seq) - (gend[0] + DELAY)
    rate = tot / nm
    fifo = []
    credit = 0.0
    for i, (mb, nb, t, gi) in enumerate(seq):
        xa = find("A", mb, t, i); xb = find("B", nb, t, i)
        tags = [x["tag"] for x in (xa, xb) if x.get("tag")]
        if tags: p.wait(lg=tags)
        d = vr(acc(mb, nb), 4)
        ra = f"a[{4*xa['slot']}:{4*xa['slot']+3}]"; rb = f"a[{4*xb['slot']}:{4*xb['slot']+3}]"
        if isV and nb < 8: p(f"v_mfma_f32_16x16x32_bf16 {d}, {ra}, {rb}, {d}")
        else: p(f"v_mfma_f32_16x16x32_bf16 {d}, {rb}, {ra}, {d}")
        for fn in misc.get(i, []): fn()
        for fn in reads.get(i, []): fn()
        for g2, e in enumerate(gend[:-1]):
            if i == e + DELAY: fifo += epis[g2]
        if fifo: credit += rate
        else: credit = 0.0
        while fifo and credit >= fifo[0][1] / 2:
            fn, c = fifo.pop(0); fn(); credit -= c
    if os.environ.get('ST2') != '1': stamp(p, 4)
    for fn, c in fifo: fn()
    if len(fifo) < 8: p("s_nop 7")
    for fn, c in epis[-1]: fn()

def setup_ids(p):
    p("s_and_b32 s3, s2, 7")
    p("s_lshr_b32 s43, s2, 3")
    p("s_lshr_b32 s61, s43, 3")
    p("s_and_b32 s43, s43, 7")
    p("s_mul_i32 s44, s3, 3")
    p("s_add_u32 s44, s44, s61")
    p("s_lshr_b32 s62, s43, 2")
    p("s_xor_b32 s62, s62, s3")
    p("s_and_b32 s62, s62, 1")
    p("s_lshl_b32 s62, s62, 2")
    p("s_lshr_b32 s63, s3, 1")
    p("s_sub_u32 s63, s63, s62")
    p("s_add_u32 s63, s63, 28")
    p("s_cmp_eq_u32 s61, 3")
    p("s_cselect_b32 s44, s63, s44")
    p("s_lshr_b32 s46, s45, 1")
    p("s_and_b32 s47, s45, 1")
    p("s_cmp_ge_u32 s44, 28")
    p("s_cselect_b32 s48, 1, 0")
    csel(p, "s60", 6144, 7168)
    p("s_lshl_b32 s39, s60, 5")
    p("s_lshl_b32 s40, s45, 12")
    p("v_lshlrev_b32 v1, 4, v0")
    p("v_add_u32 v1, s40, v1")
    p("s_lshl_b32 s41, s45, 10")
    p("s_add_u32 s41, s41, 0x10000")
    p("v_lshrrev_b32 v11, 3, v0")
    p("s_lshl_b32 s3, s45, 3")
    p("v_add_u32 v11, s3, v11")
    p("v_bfe_u32 v12, v0, 4, 1")
    p("s_and_b32 s3, s45, 1")
    p("s_lshl_b32 s3, s3, 1")
    p("v_or_b32 v12, s3, v12")
    p("v_lshlrev_b32 v12, 1, v12")
    p("v_and_b32 v13, 7, v0")
    p("v_xor_b32 v12, v12, v13")
    p("v_lshlrev_b32 v12, 4, v12")
    p("v_mul_lo_u32 v2, v11, s60")
    p("v_add_u32 v2, v2, v12")
    p("v_mul_u32_u24 v3, 6144, v11")
    p("v_add_u32 v3, v3, v12")

def setup_srds(p):
    p("s_lshl_b32 s3, s43, 19")
    if XN_OFF: p(f"s_add_u32 s3, s3, {hex(XN_OFF)}")
    srd(p, 12, 4, "s3", 524288)
    p("s_lshl_b32 s61, s44, 8")
    p("s_lshl_b32 s62, s44, 9")
    p(f"s_sub_u32 s62, s62, {28*512 - 4096}")
    p("s_add_u32 s63, s62, 256")
    p("s_cmp_eq_u32 s48, 1")
    p("s_cselect_b32 s64, s62, s61")
    p("s_cselect_b32 s65, s63, s61")
    p("s_cselect_b32 s66, s6, s8")
    p("s_cselect_b32 s67, s7, s9")
    p("s_cselect_b32 s68, s6, s10")
    p("s_cselect_b32 s69, s7, s11")
    csel(p, "s70", D*3*D*2, D*F*2)
    p("s_sub_u32 s71, s70, s64")
    srd(p, 16, 66, "s64", "s71")
    p("s_sub_u32 s71, s70, s65")
    srd(p, 20, 68, "s65", "s71")
    p("s_lshl_b32 s61, s44, 7")
    p(f"s_sub_u32 s71, {hex(D*3*D*2)}, s61")
    srd(p, 24, 6, "s61", "s71")
    p("s_mov_b32 s36, 0")
    p("s_mov_b32 s37, 0")
    p("s_mov_b32 s38, 0")

def setup_addrs(p):
    p("v_lshlrev_b32 v4, 4, v0")
    p("s_lshl_b32 s3, s46, 13")
    p("v_add_u32 v4, s3, v4")
    p("v_lshrrev_b32 v11, 4, v0")
    p("v_bfe_u32 v12, v0, 2, 2")
    p("v_and_b32 v13, 3, v0")
    p("v_lshlrev_b32 v14, 10, v11")
    p("v_lshl_add_u32 v14, v12, 7, v14")
    p("v_lshl_add_u32 v14, v13, 3, v14")
    p("v_lshrrev_b32 v15, 1, v12")
    p("v_and_b32 v16, 1, v11")
    p("v_lshl_or_b32 v15, v16, 1, v15")
    p("s_lshl_b32 s3, s47, 14")
    p("s_add_u32 s3, s3, 0x10000")
    for nb in range(4):
        p(f"v_xor_b32 v16, {nb}, v15")
        p(f"v_lshl_add_u32 v16, v16, 5, v14")
        p(f"v_add_u32 v{5+nb}, s3, v16")
    p("s_lshl_b32 s3, s47, 1")
    for i in range(2):
        p(f"s_add_u32 s61, s3, {i}")
        p(f"v_xor_b32 v16, s61, v15")
        p(f"v_lshl_add_u32 v16, v16, 5, v14")
        p(f"v_add_u32 v{9+i}, 0x20000, v16")
    p("v_and_b32 v16, 15, v0")
    p("v_lshrrev_b32 v17, 1, v11")
    p("v_and_b32 v18, 1, v11")
    p("v_lshlrev_b32 v19, 9, v18")
    p("s_cmp_eq_u32 s48, 1")
    p("s_cselect_b32 s61, 10, 12")
    p("v_lshlrev_b32 v12, s61, v17")
    p("v_add_u32 v12, v12, v19")
    p("v_lshl_add_u32 v12, v16, 4, v12")
    p("v_lshl_add_u32 v19, v17, 10, v19")
    p("v_lshrrev_b32 v17, 3, v16")
    p("v_and_b32 v18, 7, v16")
    p("v_lshl_add_u32 v17, v17, 4, v18")
    p("s_cmp_lt_u32 s44, 16")
    p("s_cselect_b64 vcc, -1, 0")
    csel(p, "s61", 256, 128)
    csel(p, "s62", 2048, 4096)
    p(f"s_cselect_b32 s56, {hex(f2u(32**-0.5 * math.log2(math.e)))}, 1.0")
    p("s_mov_b32 s57, s56")
    csel(p, "s63", QF_OFF, KV_OFF)
    p("s_cselect_b32 s6, 17, 18")
    p("v_cndmask_b32 v17, v17, v16, vcc")
    p("v_lshl_add_u32 v13, v17, 4, v19")
    p("v_add_u32 v14, s61, v13")
    p("s_mov_b32 s52, 0")
    p("s_mov_b32 s53, s62")
    p("s_lshl_b32 s54, s62, 1")
    p("s_add_u32 s55, s54, s62")
    p("s_and_b32 s7, s44, 15")
    p("s_lshl_b32 s7, s7, 1")
    p("s_add_u32 s7, s7, s47")
    p("s_lshl_b32 s7, s7, s6")
    p("s_add_u32 s63, s63, s7")
    p("s_lshl_b32 s7, s43, 3")
    p("s_lshl_b32 s8, s46, 2")
    p("s_add_u32 s7, s7, s8")
    p("s_mul_i32 s8, s7, s62")
    p("s_add_u32 s63, s63, s8")
    p("s_lshl_b32 s9, s62, 2")
    srd(p, 32, 4, "s63", "s9")
    p("s_lshl_b32 s8, s43, 1")
    p("s_add_u32 s8, s8, s46")
    p("s_mul_i32 s8, s8, 917504")
    p("s_lshl_b32 s9, s44, 1")
    p("s_add_u32 s9, s9, s47")
    p("s_lshl_b32 s9, s9, 14")
    p("s_add_u32 s8, s8, s9")
    p(f"s_add_u32 s8, s8, {hex(HF_OFF)}")
    p("s_sub_u32 s9, s44, 28")
    p("s_lshl_b32 s9, s9, 2")
    p("s_add_u32 s9, s9, s47")
    p("s_lshl_b32 s9, s9, 19")
    p("s_lshl_b32 s10, s7, 12")
    p("s_add_u32 s9, s9, s10")
    p(f"s_add_u32 s9, s9, {hex(KV_OFF + 2048)}")
    p("s_cmp_eq_u32 s48, 1")
    p("s_cselect_b32 s8, s9, s8")
    csel(p, "s9", 5*262144 + 4*4096 - 2048, 0x4000)
    srd(p, 28, 4, "s8", "s9")
    p("s_mov_b32 s50, 0x2000")
    p(f"s_mov_b32 s58, {hex(f2u(-math.log2(math.e)))}")
    p("s_mov_b32 s59, s58")

def setup_pf(p, R0):
    if PF:
        p("s_lshl_b32 s3, s2, 2")
        p("s_add_u32 s3, s3, s45")
        p("s_lshl_b32 s3, s3, 6")
        p("v_add_u32 v45, s3, v0")
        p("v_lshlrev_b32 v45, 3, v45")
        srd(p, 68, 74, 0, D * D * 2)
        p("s_mov_b32 s51, 0")
        p("s_mov_b64 s[62:63], s[6:7]"); p("s_mov_b32 s61, 6"); p(f"s_mov_b32 s60, {hex(D*3*D*2)}"); p(f"s_mov_b32 s49, {R0*6144}")
        p("s_cmp_eq_u32 s45, 0")
        p("s_cbranch_scc1 L_k1_pfsel")
        p("s_mov_b64 s[62:63], s[8:9]"); p("s_mov_b32 s61, 7"); p(f"s_mov_b32 s60, {hex(D*F*2)}"); p(f"s_mov_b32 s49, {R0*7168}")
        p("s_cmp_eq_u32 s45, 1")
        p("s_cbranch_scc1 L_k1_pfsel")
        p("s_mov_b64 s[62:63], s[10:11]")
        p("s_cmp_eq_u32 s45, 2")
        p("s_cbranch_scc1 L_k1_pfsel")
        p("s_mov_b64 s[62:63], s[72:73]"); p("s_mov_b32 s61, 10"); p("s_mov_b32 s49, 0")
        p.label("L_k1_pfsel")
        srd(p, 64, 62, 0, "s60")
        p("s_lshl_b32 s72, s61, 15")
        p("s_mul_i32 s3, s2, s61")
        p("v_add_u32 v44, s3, v0")
        p("v_lshlrev_b32 v44, 7, v44")
        p("v_cmp_gt_u32 vcc, s61, v0")
        p("v_bfrev_b32 v17, 1")
        p("s_nop 0")
        p("v_cndmask_b32 v44, v17, v44, vcc")

def gen_k1(name="gemm1_kernel"):
    p = Prog()
    p("s_cmp_ge_u32 s2, 256")
    p("s_cbranch_scc1 L_k1_end")
    stamp(p, 0); stamp_rt(p, 1)
    p(f"s_load_dwordx2 s[4:5], s[0:1], {KA_WS}")
    p(f"s_load_dwordx2 s[6:7], s[0:1], {KA_WQKV}")
    p(f"s_load_dwordx4 s[8:11], s[0:1], {KA_WG}")
    if PF:
        p(f"s_load_dwordx2 s[72:73], s[0:1], {KA_WD}")
        p(f"s_load_dwordx2 s[74:75], s[0:1], {KA_WO}")
    code_prefetch(p, "k1", "L_k1_end", 0, 20, 76, n=2)
    p("v_lshrrev_b32 v11, 6, v0")
    p("v_and_b32 v0, 63, v0")
    p("v_readfirstlane_b32 s45, v11")
    setup_ids(p)
    p("s_waitcnt lgkmcnt(0)")
    stamp(p, 8)
    setup_srds(p)
    def pro_dma(t):
        for i, o in enumerate(dma_ops(p, t, f"d{t}")):
            o()
            if "m0" in p.ins[-1].text and p.ins[-1].text.startswith("s_add"):
                p("s_nop 0")
    pro_dma(0)
    stamp(p, 9)
    pro_dma(1)
    setup_pf(p, int(os.environ.get("K0PF", "192")))
    stamp(p, 7)
    setup_addrs(p)
    stamp(p, 2)
    p.wait(vm="d0")
    p("s_barrier")
    stamp(p, 3)
    for o in read_ops(p, 0, 0, "f0"): o()
    p("s_mov_b32 s42, 6")
    p("s_cmp_eq_u32 s48, 1")
    p.wait(lg="f0")
    p("s_cbranch_scc1 L_k1_v")
    head = p.mark()
    lin_all = []
    out_text = []
    final = Prog()
    final.ins = list(p.ins)
    for isV in (False, True):
        q = Prog(); q.vmq = list(p.vmq); q.lgq = list(p.lgq)
        sfx = "v" if isV else "f"
        marks = []
        iteration(q, 0, isV, dmas=[2, 3], pf="wd")
        iteration(q, 1, isV, dmas=[4, 5], pf="wd")
        for t in range(2, 26):
            if t % 4 == 2: marks.append(q.mark())
            iteration(q, t, isV, loopctl=(f"L_k1_loop_{sfx}" if t % 4 == 1 else None), dmas=[t + 4],
                      pf=("wo" if t % 4 == 0 else "wd"))
        marks.append(q.mark())
        iteration(q, 26, isV, dmas=[30])
        body = unify([q.ins[marks[i]:marks[i+1]] for i in range(6)])
        if STAMP:
            for i in range(5): q(f"v_readlane_b32 s{64+i}, v47, {[5,4,3,1,0][i]}")
        tail(q, isV)
        stamp(q, 5)
        if STAMP: q("s_waitcnt vmcnt(0)")
        stamp(q, 6); stamp_rt(q, 10)
        stamp_out(q, 11, 1, 4, "s45", extra=[64, 65, 66, 67, 68])
        q("s_endpgm")
        lin_all.append([i.text for i in p.ins] + [i.text for i in q.ins])
        if isV:
            final.label("L_k1_v")
        final.ins += q.ins[:marks[0]]
        final.ins.append(Ins(".p2align 6", "dir"))
        final.label(f"L_k1_loop_{sfx}")
        final.ins += body
        final.ins += q.ins[marks[6]:]
    final.label("L_k1_end")
    final("s_endpgm")
    launch = f"; @launch kernel={name} grid=(256,1,1) block=(256,1,1) lds=147456"
    return dict(name=name, prog=final, launch=launch, kd=kd(name, 512, 102, 256), lins=lin_all)
```

```python
from common import *
from gstream import *
from k2_attn import SA, SB, CA, CB, PA, PB, QR, SEL, OA, OB, LA, LB, KB, VB, S_, C_, P_, O_, L_, Kf, Vf, Qf, r16, qk, pv, softmax_valu, f2u
from k3_final import tile_map, silu_pack
import math

HSC = os.environ.get("HSC", "sc1")
def gen_k23(name="attn_kernel", merged=False):
    p = Prog()
    sc = (" " + HSC) if merged else ""
    FLC = 2048 if merged else 0
    SS = lambda fn: (fn, "s")
    def run_ops(ops):
        for o in ops:
            o()
            if "m0," in p.ins[-1].text: p("s_nop 0")
    if not merged:
        p("s_cmp_ge_u32 s2, 256")
        p("s_cbranch_scc1 L_k2_end")
        stamp(p, 0); stamp_rt(p, 1)
        p(f"s_load_dwordx2 s[4:5], s[0:1], {KA_WS}")
    else:
        p.label("L_p2")
    p(f"s_load_dwordx4 s[60:63], s[0:1], {KA_WD}")
    p(f"s_load_dwordx2 s[8:9], s[0:1], {KA_WO}")
    p(f"s_load_dwordx2 s[10:11], s[0:1], {KA_X}")
    if not merged:
        code_prefetch(p, "k2", "L_k2_fallback", 0, 12, 76)
        p("v_lshrrev_b32 v2, 6, v0")
        p("v_and_b32 v0, 63, v0")
        p("v_readfirstlane_b32 s45, v2")
    p("v_lshlrev_b32 v1, 4, v0")
    p("s_and_b32 s44, s2, 7")
    p("s_lshl_b32 s44, s44, 2")
    p("s_lshr_b32 s43, s2, 3")
    p("s_lshr_b32 s3, s43, 3")
    p("s_add_u32 s44, s44, s3")
    p("s_and_b32 s43, s43, 7")
    p("s_lshl_b32 s36, s45, 12")
    p("s_mov_b32 s37, s36")
    p("s_lshl_b32 s52, s44, 18")
    p(f"s_add_u32 s52, s52, {hex(KV_OFF)}")
    p("s_lshl_b32 s3, s44, 17")
    p("s_lshl_b32 s6, s43, 14")
    p("s_add_u32 s3, s3, s6")
    p("s_add_u32 s3, s3, s36")
    p(f"s_add_u32 s53, s3, {hex(QF_OFF)}")
    p("s_waitcnt lgkmcnt(0)")
    srd(p, 16, 4, "s53", 4096)
    srd(p, 12, 4, "s52", 262144)
    def kv_dma(c):
        ops = [lambda: p("s_mov_b32 m0, s37")]
        ops += [lambda i=i: p.vmem(f"buffer_load_dwordx4 v1, s[12:15], s36 offen offset:{1024*i}{sc} lds", f"kv{c}") for i in range(4)]
        ops.append(lambda: p("s_add_u32 s36, s36, 0x4000"))
        ops.append(lambda: p("s_add_u32 s37, s37, 0x4000"))
        ops.append(lambda: p("s_and_b32 s37, s37, 0xffff"))
        return ops
    def first_loads():
        for i in range(4):
            p.vmem(f"buffer_load_dwordx4 v[{QR+4*i}:{QR+4*i+3}], v1, s[16:19], 0 offen offset:{1024*i}{sc}", "q")
        for f in range(2):
            p.vmem(f"buffer_load_dwordx4 {Kf(0,f)}, v1, s[12:15], 0 offen offset:{1024*f}{sc}", "q")
        run_ops(kv_dma(0))
    if not merged: first_loads()
    tile_map(p, "s46", "s47")
    p("s_lshl_b32 s41, s45, 14")
    p("s_add_u32 s41, s41, 0x10000")
    g = GStream(p, acc=72, wfr=200, hbase=128, RH=4, vdma=116, vrd=120, vlin=1, s_h="s39", s_w="s40", srd_h=24, srd_w=28, s_m0="s41", pfx="y")
    g.vrot = 122
    g.hsc = sc
    g.setup_addrs(0, "s41", 6)
    for a in range(4):
        p(f"s_add_u32 s3, s45, {a}")
        p("s_and_b32 s3, s3, 3")
        p("s_lshl_b32 s3, s3, 10")
        p(f"v_add_u32 v{122+a}, s3, v1")
    p("s_mul_i32 s3, s46, 917504")
    p(f"s_mul_i32 s6, s45, {56*4096}")
    p("s_add_u32 s3, s3, s6")
    p(f"s_add_u32 s3, s3, {hex(HF_OFF)}")
    srd(p, 24, 4, "s3", 56 * 4096)
    p(f"s_mul_i32 s3, s45, {896*2048}")
    p("s_lshl_b32 s6, s47, 7")
    p("s_add_u32 s3, s3, s6")
    p(f"s_sub_u32 s7, {896*2048}, s6")
    srd(p, 28, 60, "s3", "s7")
    p("s_mov_b32 s39, 0"); p("s_mov_b32 s40, 0")
    p("s_lshl_b32 s3, s43, 19")
    p("s_lshl_b32 s6, s45, 17")
    p("s_add_u32 s3, s3, s6")
    p("s_lshl_b32 s6, s44, 11")
    p("s_add_u32 s3, s3, s6")
    p(f"s_add_u32 s3, s3, {hex(OF_OFF)}")
    srd(p, 20, 4, "s3", 65536 + 2048)
    p("s_mov_b32 s50, 0x10000")
    p("v_lshrrev_b32 v2, 2, v0")
    p("v_lshrrev_b32 v3, 4, v0")
    p("v_xor_b32 v2, v2, v3")
    p("v_and_b32 v2, 1, v2")
    p("v_and_b32 v3, 3, v0")
    p("v_or_b32 v2, v2, v3")
    p("v_cmp_eq_u32 vcc, 0, v2")
    p("v_mov_b32 v3, 0x3f803f80")
    p("s_nop 0")
    p(f"v_cndmask_b32 v{SEL}, 0, v3, vcc")
    for i in range(1, 4): p(f"v_mov_b32 v{SEL+i}, v{SEL}")
    for i in range(0, 40): p(f"v_accvgpr_write_b32 a{i}, 0")
    p("v_mov_b32 v4, v1")
    p("v_add_u32 v5, 0x4000, v1")
    p("s_mov_b32 s38, 0x4000")
    p("s_mov_b32 s51, 0xffff0000")
    p(f"s_mov_b32 s58, {hex(f2u(-math.log2(math.e)))}")
    p("s_mov_b32 s59, s58")
    p("s_lshl_b32 s6, s47, 7")
    p(f"s_sub_u32 s7, {D*D*2}, s6")
    srd(p, 32, 8, "s6", "s7")
    p("s_lshl_b32 s48, s45, 16")
    p("s_lshl_b32 s49, s45, 12")
    if merged:
        srd(p, 64, 4, FL_OFF, 32768)
        p("s_lshl_b32 s68, s2, 7")
        p("s_lshr_b32 s3, s44, 1")
        p("v_mov_b32 v8, s3")
        p("v_mov_b32 v9, s43")
        p("s_lshr_b32 s6, s44, 3")
        p("s_add_u32 s6, s6, 28")
        p("v_mov_b32 v10, s6")
        p("v_subrev_u32 v11, 36, v0")
        p("v_cmp_gt_u32 vcc, 44, v0")
        p("s_add_u32 s3, s3, 16")
        p("s_lshr_b32 s6, s46, 1")
        p("v_cndmask_b32 v8, v8, v10, vcc")
        p("v_cndmask_b32 v9, v9, v11, vcc")
        p("v_mov_b32 v10, s3")
        p("v_subrev_u32 v11, 28, v0")
        p("v_cmp_gt_u32 vcc, 36, v0")
        p("s_nop 1")
        p("v_cndmask_b32 v8, v8, v10, vcc")
        p("v_cndmask_b32 v9, v9, v11, vcc")
        p("v_mov_b32 v11, s6")
        p("v_cmp_gt_u32 vcc, 28, v0")
        p("s_nop 1")
        p("v_cndmask_b32 v8, v8, v0, vcc")
        p("v_cndmask_b32 v9, v9, v11, vcc")
        p("v_mul_u32_u24 v10, 43, v8")
        p("v_lshrrev_b32 v10, 7, v10")
        p("v_mul_u32_u24 v11, 3, v10")
        p("v_sub_u32 v11, v8, v11")
        p("v_lshl_add_u32 v10, v11, 6, v10")
        p("v_and_b32 v11, 3, v8")
        p("v_lshlrev_b32 v11, 1, v11")
        p("v_lshrrev_b32 v12, 2, v9")
        p("v_bfe_u32 v13, v8, 2, 1")
        p("v_xor_b32 v12, v12, v13")
        p("v_xor_b32 v12, 1, v12")
        p("v_add3_u32 v11, v11, v12, 64")
        p("v_add_u32 v11, 128, v11")
        p("v_cmp_gt_u32 vcc, 24, v8")
        p("s_nop 1")
        p("v_cndmask_b32 v10, v11, v10, vcc")
        p("v_lshl_add_u32 v10, v9, 3, v10")
        p("v_lshlrev_b32 v12, 7, v10")
        p("s_waitcnt vmcnt(0)")
        if os.environ.get("ST2") != "1": stamp(p, 6)
        p("s_barrier")
        p("s_cmp_lg_u32 s45, 0")
        p("s_cbranch_scc1 L_p2_nosig")
        p("v_mov_b32 v6, 2")
        p("v_mov_b32 v7, 0")
        p("s_mov_b64 exec, 1")
        p("buffer_store_dword v6, v7, s[64:67], s68 offen sc1")
        p("s_mov_b64 exec, -1")
        p.label("L_p2_nosig")
        run_ops(g.w_dma(0, 0))
        run_ops(g.w_dma(1, 1))
        p("s_xor_b32 s41, s41, 0x2000")
        if STAMP:
            p("s_memrealtime s[100:101]")
            stamp_out(p, 11, 1, 4, "s45", vt=6)
        p("s_cmp_lg_u32 s45, 0")
        p("s_cbranch_scc1 L_p2_polled")
        p("s_mov_b32 s70, 0x40000")
        p.label("L_p2_poll")
        p("buffer_load_dword v8, v12, s[64:67], 0 offen sc1")
        p("s_sub_u32 s70, s70, 1")
        p("s_waitcnt vmcnt(0)")
        p("v_cmp_gt_u32 vcc, 2, v8")
        p("s_cmp_eq_u32 s70, 0")
        p("s_cbranch_scc1 L_p2_polled")
        p("s_nop 2")
        p("s_cbranch_vccnz L_p2_poll")
        p.label("L_p2_polled")
        p("s_barrier")
        stamp(p, 2)
        first_loads()
        h0 = g.h_loads(0)
        run_ops(h0)
    p.wait(vm="q")
    if not merged: stamp(p, 2)
    for blk in range(2):
        for t, _ in qk(blk, 0, "0"): p(t)
    if not merged: run_ops(g.w_dma(0, 0))
    else: p("s_nop 7")
    p("s_nop 7")
    for blk in range(2):
        S = S_[blk]
        p(f"v_max3_f32 v6, v{S}, v{S+1}, v{S+2}")
        for i in range(3, 15, 2):
            p(f"v_max3_f32 v6, v6, v{S+i}, v{S+i+1}")
        p(f"v_max_f32 v6, v6, v{S+15}")
        p("v_mov_b32 v7, v6")
        p("s_nop 1")
        p("v_permlane32_swap_b32 v6, v7")
        p("s_nop 1")
        p("v_max_f32 v6, v6, v7")
        for i in range(16):
            p(f"v_sub_f32 v{C_[blk]+i}, 0, v6")
        if blk == 0:
            for i in range(16):
                p(f"v_sub_f32 v{S+i}, v{S+i}, v6")
    p("s_mov_b32 s42, 13")
    p.wait(vm="kv0")
    p("s_barrier")
    stamp(p, 3)
    NC = 16; NKS = 56; KOFF = 2
    def wo_dma(i):
        off = i * 16384 if i < 2 else 0x10000 + (i - 2) * 16384
        ops = [lambda: p(f"s_add_u32 m0, s49, {hex(off)}")]
        ops += [lambda n=n: p.vmem(f"buffer_load_dwordx4 v{g.vdma+n}, s[32:35], s48 offen offset:{1024*n} lds", f"wo{i}") for n in range(4)]
        ops.append(lambda: p("s_add_u32 s48, s48, 0x40000"))
        return ops
    XW = [lambda a=a, q=q: p.lds(f"ds_write_b128 v{5+a}, a[{72+32*a+4*q}:{72+32*a+4*q+3}] offset:{1024*q}", "xw") for a in (1, 2, 3) for q in range(8)]
    XT = 128
    XR_ = [lambda s=s, q=q: p.lds(f"ds_read_b128 v[{XT+32*s+4*q}:{XT+32*s+4*q+3}], v9 offset:{s*8192 + 1024*q}", "xr") for s in range(3) for q in range(8)]
    marks = []
    for c in range(NC):
        marks.append(p.mark())
        inloop = 1 <= c <= 13
        for i in range(4):
            j = 4 * c + i
            k = j - KOFF
            gm = [(t, 32) for t in g.mfmas(k, first=(k == 0))] if 0 <= k < NKS else None
            lim = (lambda x, n: True) if inloop else (lambda x, n: x < n)
            a = qk(1, j) + (pv(1, j - 1) if j > 0 else [])
            kaddr, koff = ("v4", (i + 1) * 4096) if i < 3 else ("v5", 0)
            rdV = [lambda f=f: p.lds(f"ds_read_b128 {Vf(j,f)}, v4 offset:{i*4096 + 2048 + 1024*f}", f"v{j}") for f in range(2)]
            rdK = [lambda f=f: p.lds(f"ds_read_b128 {Kf(j+1,f)}, {kaddr} offset:{koff + 1024*f}", f"k{j+1}") for f in range(2)]
            if j == 63: rdK = [None, None]
            va = softmax_valu(0)
            wK = SS(lambda: p.wait(lg=[f"k{j+1}"]))
            ex = {}
            def add(pos, e):
                if e is not None: ex.setdefault(pos, []).append(e)
            if gm and (k + 1) % 4 == 0 and k + 1 < NKS:
                va = [(f"v_xor_b32 v{g.vrd}, 0x2000, v{g.vrd}", 4), (f"v_xor_b32 v{g.vrd+1}, 0x2000, v{g.vrd+1}", 4)] + va
            hl = None
            if gm:
                mf = [a[0], gm[0], a[1], gm[1], a[2], a[3], gm[2], a[4], a[5], gm[3]]
                add(0, SS(lambda: p.wait(vm=f"yh{k}", lg=f"yf{k}n0", force=True))); add(0, rdK[0])
                add(2, SS(lambda: p.wait(lg=f"yf{k}n1", force=True))); add(2, rdK[1])
                add(4, rdV[0]); add(7, rdV[1]); add(9, wK)
                if lim(k + 3, NKS):
                    hl = g.h_loads(k + 3)
                    for n, pos in enumerate([1, 3, 6, 9]): add(pos, hl[n])
            elif j == 0:
                mf = a
                add(0, rdK[0]); add(0, rdK[1]); add(1, rdV[0]); add(1, rdV[1])
                h0 = g.h_loads(1 if merged else 0)
                add(0, h0[0]); add(1, h0[1])
            else:
                mf = a
                add(0, rdK[0]); add(1, rdK[1]); add(2, rdV[0]); add(4, rdV[1])
                if j < 63: add(5, wK)
                if j == 1:
                    h1 = g.h_loads(2 if merged else 1)
                    add(0, h1[0]); add(2, h1[1]); add(3, h1[2]); add(4, h1[3]); add(5, SS(h1[4]))
                if j in (58, 59):
                    x = XW[(j - 58) * 10:(j - 58) * 10 + 5]
                    for n, pos in enumerate([0, 1, 2, 3, 4]): add(pos, x[n])
                if j == 60:
                    x = XW[20:24]
                    for n, pos in enumerate([0, 1, 2, 4]): add(pos, x[n])
                if j == 61:
                    x = XR_[4:14]
                    for n, pos in enumerate([0, 0, 1, 1, 2, 2, 3, 4, 4, 5]): add(pos, x[n])
                if j == 62:
                    add(3, SS(lambda: p("s_barrier")))
                if j == 63:
                    d = wo_dma(3)
                    add(0, d[1]); ex[0].insert(0, SS(d[0])); ex[0].insert(1, SS(lambda: p("s_nop 0")))
                    add(1, d[2]); add(3, d[3]); add(5, d[4]); add(5, SS(d[5]))
            fill(p, mf, va, ex)
            if j == 0:
                p.wait(lg="k1")
            a = (qk(0, j + 1) if j < 63 else []) + pv(0, j)
            va = softmax_valu(1)
            wv = SS(lambda: p.wait(lg=[f"v{j}"]))
            ex = {}
            if gm:
                mf = [a[0], gm[4], a[1], gm[5], a[2], a[3], gm[6], a[4], a[5], gm[7]]
                add(3, wv)
                if hl: add(5, SS(hl[4]))
                d = None
                if k % 2 == 0 and lim(k // 2 + 2, NKS // 2):
                    fg = k // 2 + 2
                    d = g.w_dma(fg, fg & 1)
                    tail = [d[5]]
                    if fg & 1: tail.append(lambda: p("s_xor_b32 s41, s41, 0x2000"))
                if i == 3 and lim(c + 3, NC):
                    d = kv_dma(c + 3)
                    tail = d[5:8]
                if d: add(0, SS(d[0]))
                if k + 1 < NKS:
                    fg1 = (k + 1) // 2
                    wr = g.w_reads(k + 1, (fg1 & 1) * 4096)
                    if (k + 1) % 2 == 0:
                        add(0, SS(lambda: p.wait(vm=f"yw{fg1}", force=True)))
                    for n, pos in enumerate([0, 2, 4, 7]): add(pos, wr[n])
                if d:
                    for n, pos in enumerate([1, 3, 6, 9]): add(pos, d[1 + n])
                    for o in tail: add(9, SS(o))
                if i == 2:
                    ex.setdefault(6, []).insert(0, SS(lambda: p.wait(vm=f"kv{c+1}", force=True)))
                    ex.setdefault(7, []).insert(0, SS(lambda: p("s_barrier")))
                if i == 1 and inloop:
                    add(8, SS(lambda: p("s_sub_u32 s42, s42, 1")))
                if j == 57:
                    add(6, SS(lambda: p.wait(vm=["yw28", "kv16", "kv15"], force=True)))
                    add(7, SS(lambda: p("s_barrier")))
                    pre = []
                    for a_ in (1, 2, 3):
                        add(a_ - 1, SS(lambda a_=a_: p(f"s_add_u32 s{63+a_}, s45, {a_}")))
                        add(a_ - 1, SS(lambda a_=a_: p(f"s_and_b32 s{63+a_}, s{63+a_}, 3")))
                        add(a_ - 1, SS(lambda a_=a_: p(f"s_mul_i32 s{63+a_}, s{63+a_}, {3*8192}")))
                        add(a_ - 1, SS(lambda a_=a_: p(f"s_add_u32 s{63+a_}, s{63+a_}, {hex(0x10000 + (a_-1)*8192)}")))
                    add(4, SS(lambda: p(f"s_mul_i32 s67, s45, {3*8192}")))
                    add(4, SS(lambda: p(f"s_add_u32 s67, s67, 0x10000")))
                    va = va + [(f"v_add_u32 v{5+a_}, s{63+a_}, v1", 4) for a_ in (1, 2, 3)] + [("v_add_u32 v9, s67, v1", 4)]
            else:
                mf = a
                if j < 63: add(1, wv)
                if j == 0:
                    add(0, h0[2]); add(2, h0[3]); add(3, SS(h0[4]))
                    d = kv_dma(1)
                    ex[0].insert(0, SS(d[0]))
                    add(1, d[1]); add(3, d[2]); add(4, d[3]); add(5, d[4])
                    for o in d[5:8]: add(5, SS(o))
                if j == 1:
                    d = kv_dma(2) if merged else g.w_dma(1, 1)
                    add(0, SS(d[0])); add(0, SS(lambda: p.wait(vm="yw0")))
                    wr = g.w_reads(0, 0)
                    add(0, wr[0]); add(1, wr[1]); add(2, wr[2]); add(4, wr[3])
                    add(0, d[1]); add(2, d[2]); add(3, d[3]); add(4, d[4])
                    if merged:
                        for o in d[5:8]: add(5, SS(o))
                    else:
                        add(5, SS(d[5])); add(5, SS(lambda: p("s_xor_b32 s41, s41, 0x2000")))
                if j in (58, 59):
                    x = XW[(j - 58) * 10 + 5:(j - 58) * 10 + 10]
                    for n, pos in enumerate([0, 2, 3, 4, 5]): add(pos, x[n])
                    d = wo_dma(j - 58)
                    ex[0].insert(0, SS(d[0]))
                    add(0, d[1]); add(1, d[2]); add(2, d[3]); add(4, d[4]); add(5, SS(d[5]))
                if j == 60:
                    add(2, SS(lambda: p.wait(lg="xw")))
                    add(3, SS(lambda: p("s_barrier")))
                    x = XR_[0:4]
                    for n, pos in enumerate([4, 4, 5, 5]): add(pos, x[n])
                if j == 61:
                    x = XR_[14:24]
                    for n, pos in enumerate([0, 0, 1, 2, 2, 3, 4, 4, 5, 5]): add(pos, x[n])
                if j == 62:
                    d = wo_dma(2)
                    add(0, SS(d[0])); add(1, d[1]); add(2, d[2]); add(4, d[3]); add(5, d[4]); add(5, SS(d[5]))
                if j == 63:
                    p.wait(lg="v63")
                    d = wo_dma(4)
                    add(0, SS(d[0])); add(0, SS(lambda: p("s_nop 0"))); add(0, d[1]); add(1, d[2]); add(2, d[3]); add(3, d[4]); add(3, SS(d[5]))
            if i == 3 and c < 15:
                va = [("v_mov_b32 v4, v5", 4)] + va
            fill(p, mf, va, ex)
            if j == 61: p.wait(lg="xr")
            if j == 1 and not merged:
                run_ops(g.h_loads(2))
            if j == 2 and not merged:
                run_ops(kv_dma(2))
            if i == 3 and c < 15:
                p("s_add_u32 s38, s38, 0x4000")
                p("s_and_b32 s38, s38, 0xffff")
                if inloop: p("s_cmp_lg_u32 s42, 0")
                p("v_add_u32 v5, s38, v1")
                if inloop: p("s_cbranch_scc1 L_k2_loop")
    marks.append(p.mark())
    body = unify([p.ins[marks[i]:marks[i+1]] for i in range(1, 14)])
    stamp(p, 4)
    p("s_nop 0")
    for t, _ in pv(1, 63): p(t)
    p(f"v_mov_b32 v10, {hex(f2u(2.0**30))}")
    p(f"v_mov_b32 v11, {hex(f2u(2.0**-20))}")
    p("s_nop 11")
    p(f"v_accvgpr_read_b32 v6, a{LA}")
    p(f"v_accvgpr_read_b32 v7, a{LB}")
    p("v_min_f32 v8, v6, v7")
    p("v_cmp_nlt_f32 vcc, v6, v10")
    p("v_cmp_nlt_f32 s[6:7], v7, v10")
    p("v_cmp_ngt_f32 s[64:65], v8, v11")
    p("s_nop 1")
    p("s_or_b64 vcc, vcc, s[6:7]")
    p("s_or_b64 vcc, vcc, s[64:65]")
    p("s_cbranch_vccnz L_k2_fallback")
    p.label("L_k2_out")
    p(f"v_accvgpr_read_b32 v6, a{LA}")
    p(f"v_accvgpr_read_b32 v7, a{LB}")
    p("v_rcp_f32 v6, v6")
    p("v_rcp_f32 v7, v7")
    for blk in range(2):
        T = S_[blk]
        for i in range(16):
            p(f"v_accvgpr_read_b32 v{T+i}, a{O_[blk]+i}")
        for i in range(16):
            p(f"v_mul_f32 v{T+i}, v{T+i}, v{6+blk}")
        for s in range(2):
            P = P_[blk] + 4 * s
            p(f"v_cvt_pk_bf16_f32 v{P}, v{T+4*s}, v{T+4*s+1}")
            p(f"v_cvt_pk_bf16_f32 v{P+1}, v{T+4*s+2}, v{T+4*s+3}")
            p(f"v_cvt_pk_bf16_f32 v{P+2}, v{T+4*s+8}, v{T+4*s+9}")
            p(f"v_cvt_pk_bf16_f32 v{P+3}, v{T+4*s+10}, v{T+4*s+11}")
            so = "0" if blk == 0 else "s50"
            p.vmem(f"buffer_store_dwordx4 v[{P}:{P+3}], v1, s[20:23], {so} offen offset:{1024*s} sc1", "ost")
    stamp(p, 5)
    if merged:
        srd(p, 64, 4, FL_OFF, 32768)
        p("s_lshl_b32 s68, s2, 7")
        p("s_lshr_b32 s69, s46, 1")
        p("s_lshl_b32 s69, s69, 10")
    else:
        srd(p, 64, 4, FL_OFF + FLC, 1024)
        p("s_lshl_b32 s68, s43, 5")
        p("s_add_u32 s68, s68, s44")
        p("s_lshl_b32 s68, s68, 2")
        p("s_lshr_b32 s69, s46, 1")
        p("s_lshl_b32 s69, s69, 7")
    run_ops(wo_dma(5))
    Y = 16
    for i in range(32): p(f"v_accvgpr_read_b32 v{Y+i}, a{72+i}")
    run_ops(wo_dma(6))
    for i in range(0, 32, 2):
        p(f"v_pk_add_f32 v[{Y+i}:{Y+i+1}], v[{Y+i}:{Y+i+1}], v[{XT+i}:{XT+i+1}]")
    p.wait(vm="ost")
    p("s_barrier")
    p("s_cmp_lg_u32 s45, 0")
    p("s_cbranch_scc1 L_k2_nosig")
    p(f"v_mov_b32 v6, {3 if merged else 1}")
    p("v_mov_b32 v7, 0")
    p("s_mov_b64 exec, 1")
    p("buffer_store_dword v6, v7, s[64:67], s68 offen sc1")
    p("s_mov_b64 exec, -1")
    p.label("L_k2_nosig")
    stamp(p, 7)
    run_ops(wo_dma(7))
    p("s_lshl_b32 s3, s46, 18")
    p("s_lshl_b32 s6, s45, 16")
    p("s_add_u32 s3, s3, s6")
    p("s_lshl_b32 s6, s47, 7")
    p("s_add_u32 s3, s3, s6")
    p(f"s_sub_u32 s7, 0x10000, s6")
    srd(p, 20, 10, "s3", "s7")
    srd(p, 24, 62, "s3", "s7")
    p("v_lshrrev_b32 v2, 3, v0")
    p("v_and_b32 v3, 7, v0")
    p("v_lshlrev_b32 v3, 4, v3")
    p("v_lshl_add_u32 v3, v2, 11, v3")
    for i in range(1, 4): p(f"s_mov_b32 s{52+i}, {hex(i*8*2048)}")
    XR = 80
    for i in range(4):
        so = "0" if i == 0 else f"s{52+i}"
        p.vmem(f"buffer_load_dwordx4 v[{XR+4*i}:{XR+4*i+3}], v3, s[20:23], {so} offen", "x")
    for s in (1, 2):
        for i in range(0, 32, 2):
            p(f"v_pk_add_f32 v[{Y+i}:{Y+i+1}], v[{Y+i}:{Y+i+1}], v[{XT+32*s+i}:{XT+32*s+i+1}]")
    YP = 64
    silu_pack(p, Y, 128, YP, "s51", "s[58:59]")
    p("s_lshl_b32 s3, s46, 2")
    p("s_add_u32 s3, s3, s45")
    p("s_lshl_b32 s3, s3, 16")
    p(f"s_add_u32 s3, s3, {hex(OF_OFF)}")
    srd(p, 28, 4, "s3", 65536)
    p(f"v_and_b32 v{g.vrd}, 0xfff, v{g.vrd}")
    p(f"v_and_b32 v{g.vrd+1}, 0xfff, v{g.vrd+1}")
    p("v_and_b32 v10, 31, v0")
    p("v_mul_u32_u24 v10, 144, v10")
    p("v_lshrrev_b32 v11, 5, v0")
    p("v_lshl_add_u32 v10, v11, 3, v10")
    p("s_mul_i32 s3, s45, 4608")
    p("s_add_u32 s3, s3, 0x8000")
    p("v_add_u32 v10, s3, v10")
    p("v_mul_u32_u24 v11, 144, v2")
    p("v_and_b32 v12, 7, v0")
    p("v_lshl_add_u32 v11, v12, 4, v11")
    p("v_add_u32 v11, s3, v11")
    p.wait_all(lg=False)
    stamp(p, 8)
    p("s_cmp_lg_u32 s45, 0")
    p("s_cbranch_scc1 L_k2_polled")
    if merged:
        p("v_and_b32 v6, 7, v0")
        p("v_bfe_u32 v7, v0, 3, 2")
        p("v_lshl_add_u32 v6, v7, 6, v6")
        p("v_lshlrev_b32 v6, 7, v6")
    else:
        p("v_and_b32 v6, 31, v0")
        p("v_lshlrev_b32 v6, 2, v6")
    p("s_mov_b32 s70, 0x40000")
    p.label("L_k2_poll")
    p("buffer_load_dword v7, v6, s[64:67], s69 offen sc1")
    p("s_sub_u32 s70, s70, 1")
    p("s_waitcnt vmcnt(0)")
    p(f"v_cmp_ne_u32 vcc, {3 if merged else 1}, v7")
    p("s_cmp_eq_u32 s70, 0")
    p("s_cbranch_scc1 L_k2_polled")
    p("s_nop 2")
    p("s_cbranch_vccnz L_k2_poll")
    p.label("L_k2_polled")
    p("s_barrier")
    stamp(p, 9)
    DEP = 12
    ACC = 16
    WF = 128
    def oload(k):
        if k % 4 == 0 and k > 0: p("s_add_u32 s39, s39, 0x1000")
        p.vmem(f"buffer_load_dwordx4 a[{4*k}:{4*k+3}], v1, s[28:31], s39 offen offset:{1024*(k%4)} sc1", f"o{k}")
    def wreads(k):
        f = k // 2; s = k & 1
        off = (f * 4096 if f < 8 else ((f - 8) % 16) * 4096)
        if k in (16, 48):
            p(f"v_add_u32 v{g.vrd}, 0x10000, v{g.vrd}")
            p(f"v_add_u32 v{g.vrd+1}, 0x10000, v{g.vrd+1}")
        ops = []
        for nb in range(2):
            for e in range(2):
                b = WF + 8 * (k % 4) + 4 * nb + 2 * e
                ops.append(lambda b=b, nb=nb, e=e: p.lds(f"ds_read_b64_tr_b16 v[{b}:{b+1}], v{g.vrd+nb} offset:{off + e*2048 + s*1024}", f"w{k}"))
        return ops
    p("s_mov_b32 s39, 0")
    for k in range(DEP): oload(k)
    for k in range(2):
        for o in wreads(k): o()
    for k in range(64):
        p.wait(vm=f"o{k}", lg=f"w{k}")
        wr = wreads(k + 2) if k + 2 < 64 else [lambda: None] * 4
        for nb in range(2):
            b = WF + 8 * (k % 4) + 4 * nb
            d = r16(ACC + 16 * nb)
            p(f"v_mfma_f32_32x32x16_bf16 {d}, v[{b}:{b+3}], a[{4*k}:{4*k+3}], {'0' if k == 0 else d}")
            if nb == 0 and k + DEP < 64: oload(k + DEP)
            wr[2 * nb](); wr[2 * nb + 1]()
    stamp(p, 10)
    Sx = ACC; T = 128
    for k in range(16):
        p(f"v_lshlrev_b32 v{T+32+2*k}, 16, v{YP+k}")
        p(f"v_and_b32 v{T+32+2*k+1}, s51, v{YP+k}")
    for k in range(16):
        p(f"v_cvt_pk_bf16_f32 v{T+k}, v{Sx+2*k}, v{Sx+2*k+1}")
    for k in range(16):
        p(f"v_lshlrev_b32 v{Sx+2*k}, 16, v{T+k}")
        p(f"v_and_b32 v{Sx+2*k+1}, s51, v{T+k}")
    for i in range(0, 32, 2):
        p(f"v_pk_mul_f32 v[{Sx+i}:{Sx+i+1}], v[{Sx+i}:{Sx+i+1}], v[{T+32+i}:{T+32+i+1}]")
    for nb in range(2):
        for j in range(4):
            r = T + 8 * nb + 2 * j
            k = 8 * nb + 2 * j
            p(f"v_cvt_pk_bf16_f32 v{T+k}, v{Sx+2*k}, v{Sx+2*k+1}")
            p(f"v_cvt_pk_bf16_f32 v{T+k+1}, v{Sx+2*k+2}, v{Sx+2*k+3}")
            p.lds(f"ds_write_b64 v10, v[{r}:{r+1}] offset:{64*nb + 16*j}", "tw")
    XU = 160
    for k in range(16):
        p(f"v_lshlrev_b32 v{XU+2*k}, 16, v{XR+k}")
        p(f"v_and_b32 v{XU+2*k+1}, s51, v{XR+k}")
    p.wait(lg="tw")
    TR = 96
    for i in range(4):
        p.lds(f"ds_read_b128 v[{TR+4*i}:{TR+4*i+3}], v11 offset:{i*8*144}", f"tr{i}")
    for i in range(4):
        A = 16 + 8 * i
        p.wait(lg=f"tr{i}")
        for k in range(4):
            p(f"v_lshlrev_b32 v{A+2*k}, 16, v{TR+4*i+k}")
            p(f"v_and_b32 v{A+2*k+1}, s51, v{TR+4*i+k}")
        for k in range(0, 8, 2):
            p(f"v_pk_add_f32 v[{A+k}:{A+k+1}], v[{A+k}:{A+k+1}], v[{XU+8*i+k}:{XU+8*i+k+1}]")
        for k in range(4):
            p(f"v_cvt_pk_bf16_f32 v{T+4*i+k}, v{A+2*k}, v{A+2*k+1}")
        so = "0" if i == 0 else f"s{52+i}"
        p.vmem(f"buffer_store_dwordx4 v[{T+4*i}:{T+4*i+3}], v3, s[24:27], {so} offen", "st")
    if STAMP: p("s_waitcnt vmcnt(0)")
    stamp(p, 6)
    if STAMP:
        p("s_memrealtime s[78:79]")
        p("s_waitcnt lgkmcnt(0)")
    stamp_out(p, 11, 2, 4, "s45", extra=[78])
    p("s_endpgm")
    fb = Prog()
    fb.label("L_k2_fallback")
    fb("s_waitcnt vmcnt(0) lgkmcnt(0)")
    fb("v_mov_b32 v12, 0xff800000")
    fb("v_mov_b32 v13, 0xff800000")
    fb("s_mov_b32 s36, 0")
    fb.label("L_k2_fb1")
    for f in range(2):
        fb(f"buffer_load_dwordx4 {Kf(0,f)}, v1, s[12:15], s36 offen offset:{1024*f}{sc}")
    fb("s_waitcnt vmcnt(0)")
    for blk in range(2):
        for t, _ in qk(blk, 0, "0"): fb(t)
    fb("s_nop 15")
    for blk in range(2):
        S = S_[blk]
        for i in range(0, 16, 2):
            fb(f"v_max3_f32 v{12+blk}, v{12+blk}, v{S+i}, v{S+i+1}")
    fb("s_add_u32 s36, s36, 0x1000")
    fb("s_cmp_lt_u32 s36, 0x40000")
    fb("s_cbranch_scc1 L_k2_fb1")
    for blk in range(2):
        fb(f"v_mov_b32 v7, v{12+blk}")
        fb("s_nop 1")
        fb(f"v_permlane32_swap_b32 v{12+blk}, v7")
        fb("s_nop 1")
        fb(f"v_max_f32 v6, v{12+blk}, v7")
        for i in range(16):
            fb(f"v_sub_f32 v{C_[blk]+i}, 0, v6")
    for i in range(0, 40): fb(f"v_accvgpr_write_b32 a{i}, 0")
    fb("s_mov_b32 s36, 0")
    fb.label("L_k2_fb2")
    for f in range(2):
        fb(f"buffer_load_dwordx4 {Kf(0,f)}, v1, s[12:15], s36 offen offset:{1024*f}{sc}")
        fb(f"buffer_load_dwordx4 {Vf(0,f)}, v1, s[12:15], s36 offen offset:{2048+1024*f}{sc}")
    fb("s_waitcnt vmcnt(0)")
    for blk in range(2):
        for t, _ in qk(blk, 0): fb(t)
    fb("s_nop 15")
    for blk in range(2):
        for t, _ in softmax_valu(blk): fb(t)
    fb("s_nop 1")
    for blk in range(2):
        for t, _ in pv(blk, 0): fb(t)
    fb("s_add_u32 s36, s36, 0x1000")
    fb("s_cmp_lt_u32 s36, 0x40000")
    fb("s_nop 15")
    fb("s_cbranch_scc1 L_k2_fb2")
    fb("s_branch L_k2_out")
    final = Prog()
    final.ins = p.ins[:marks[1]] + [Ins(".p2align 6", "dir"), Ins("L_k2_loop:", "label")] + body + p.ins[marks[14]:] + fb.ins
    final.label("L_k2_end")
    final("s_endpgm")
    lins = [[x.text for x in p.ins], [x.text for x in fb.ins] + [x.text for x in fb.ins]]
    launch = f"; @launch kernel={name} grid=(256,1,1) block=(256,1,1) lds=163840"
    return dict(name=name, prog=final, launch=launch, kd=kd(name, 512, 102, 256), lins=lins)
```

```python
from common import *
import k1_gemm1 as K1
from k23 import gen_k23

def ln_compute(p, R, X, T, vw, vr, lds0, smask, mid=None):
    for k in range(16):
        p(f"v_lshlrev_b32 v{X+2*k}, 16, v{R+k}")
        p(f"v_and_b32 v{X+2*k+1}, {smask}, v{R+k}")
    def pk(op, d, a, b, extra=""):
        p(f"v_pk_{op}_f32 v[{d}:{d+1}], v[{a}:{a+1}], v[{b}:{b+1}]{extra}")
    def cross(off, dst):
        pk("add", T, T, T + 2); pk("add", T + 4, T + 4, T + 6); pk("add", T, T, T + 4)
        p(f"v_add_f32 v{T}, v{T}, v{T+1}")
        p("s_nop 1")
        p(f"v_add_f32_dpp v{T}, v{T}, v{T} row_ror:8 row_mask:0xf bank_mask:0xf")
        p.lds(f"ds_write_b32 v{vw}, v{T} offset:{off}", "lw")
        p.wait(lg="lw")
        p("s_barrier")
        for j in range(4):
            p.lds(f"ds_read_b128 v[{T+8+4*j}:{T+11+4*j}], v{vr} offset:{off+16*j}", "lr")
        p.wait(lg="lr")
        for j in range(4): pk("add", T + 8 + 2 * j, T + 8 + 2 * j, T + 16 + 2 * j)
        pk("add", T + 8, T + 8, T + 12); pk("add", T + 10, T + 10, T + 14); pk("add", T + 8, T + 8, T + 10)
        p(f"v_add_f32 v{dst}, v{T+8}, v{T+9}")
        p(f"v_mul_f32 v{dst}, 0x3a800000, v{dst}")
    for a in range(4): pk("add", T + 2 * a, X + 2 * a, X + 8 + 2 * a)
    for k in range(8, 16): pk("add", T + 2 * (k % 4), T + 2 * (k % 4), X + 2 * k)
    M = T + 24; Vv = T + 26; Dd = T + 28
    cross(0, M)
    NEG = " op_sel_hi:[1,0] neg_lo:[0,1] neg_hi:[0,1]"
    for k in range(16):
        d = Dd + 2 * (k % 8)
        pk("add", d, X + 2 * k, M, NEG)
        if k >= 3:
            kk = k - 3; dd = Dd + 2 * (kk % 8); a = T + 2 * (kk % 4)
            if kk < 4: pk("mul", a, dd, dd)
            else: p(f"v_pk_fma_f32 v[{a}:{a+1}], v[{dd}:{dd+1}], v[{dd}:{dd+1}], v[{a}:{a+1}]")
    for kk in range(13, 16):
        dd = Dd + 2 * (kk % 8); a = T + 2 * (kk % 4)
        p(f"v_pk_fma_f32 v[{a}:{a+1}], v[{dd}:{dd+1}], v[{dd}:{dd+1}], v[{a}:{a+1}]")
    p(f"v_cvt_pk_bf16_f32 v{Dd}, v{M}, v{M}")
    p(f"v_and_b32 v{M}, {smask}, v{Dd}")
    if mid: mid()
    cross(1024, Vv)
    p(f"v_cvt_pk_bf16_f32 v{Dd}, v{Vv}, v{Vv}")
    p(f"v_and_b32 v{Vv}, {smask}, v{Dd}")
    p(f"v_add_f32 v{Vv}, 0x3727c5ac, v{Vv}")
    p(f"v_cvt_pk_bf16_f32 v{Dd}, v{Vv}, v{Vv}")
    p(f"v_and_b32 v{Vv}, {smask}, v{Dd}")
    p(f"v_sqrt_f32 v{Vv}, v{Vv}")
    pk("add", X, X, M, NEG)
    p(f"v_cvt_pk_bf16_f32 v{Dd}, v{Vv}, v{Vv}")
    p(f"v_and_b32 v{Vv}, {smask}, v{Dd}")
    p(f"v_rcp_f32 v{Vv}, v{Vv}")
    for k in range(1, 16): pk("add", X + 2 * k, X + 2 * k, M, NEG)
    for k in range(16): p(f"v_cvt_pk_bf16_f32 v{R+k}, v{X+2*k}, v{X+2*k+1}")
    for k in range(16):
        p(f"v_lshlrev_b32 v{X+2*k}, 16, v{R+k}")
        p(f"v_and_b32 v{X+2*k+1}, {smask}, v{R+k}")
    for k in range(16): pk("mul", X + 2 * k, X + 2 * k, Vv, " op_sel_hi:[1,0]")

def gen_mega(name):
    K1.MERGED[0] = True
    p = Prog()
    def run_ops(ops):
        for o in ops:
            o()
            if "m0," in p.ins[-1].text: p("s_nop 0")
    p("s_cmp_ge_u32 s2, 256")
    p("s_cbranch_scc1 L_k2_end")
    stamp(p, 0); stamp_rt(p, 1)
    p(f"s_load_dwordx2 s[30:31], s[0:1], {KA_X}")
    p(f"s_load_dwordx4 s[76:79], s[0:1], {KA_DBG}")
    if CPF:
        p("s_getpc_b64 s[62:63]")
        p.label("L_p0_pc")
        p("s_lshr_b32 s3, s2, 3")
        p("s_and_b32 s3, s3, 3")
        p("s_lshl_b32 s3, s3, 14")
        p("v_lshlrev_b32 v20, 7, v0")
        p("v_add_u32 v21, s3, v20")
        p("v_subrev_u32 v21, 0x2000, v21")
        p("v_lshrrev_b32 v20, 1, v20")
        p("v_cmp_gt_u32 vcc, 128, v0")
        p("s_nop 1")
        p("v_cndmask_b32 v20, v21, v20, vcc")
        p("v_min_u32 v20, L_k2_fallback-L_p0_pc, v20")
        p.vmem("global_load_dword v46, v20, s[62:63]", "cpf")
    p(f"s_load_dwordx2 s[6:7], s[0:1], {KA_WQKV}")
    p(f"s_load_dwordx4 s[8:11], s[0:1], {KA_WG}")
    p(f"s_load_dwordx2 s[72:73], s[0:1], {KA_WD}")
    p(f"s_load_dwordx2 s[74:75], s[0:1], {KA_WO}")
    R, X, T = 56, 72, 104
    VIN, VOUT, VW, VR = 48, 49, 50, 51
    LDS0 = 147456
    p("v_and_b32 v20, 7, v0")
    p("v_lshrrev_b32 v21, 3, v0")
    p(f"v_lshlrev_b32 v{VIN}, 11, v20")
    p(f"v_lshl_add_u32 v{VIN}, v21, 4, v{VIN}")
    p("v_lshrrev_b32 v11, 6, v0")
    p("s_lshl_b32 s33, s2, 14")
    p("v_readfirstlane_b32 s45, v11")
    p("s_waitcnt lgkmcnt(0)")
    p("s_mov_b64 s[4:5], s[78:79]")
    p("s_or_b32 s3, s2, s45")
    p("s_cmp_lg_u32 s3, 0")
    p("s_cbranch_scc1 L_p0_nozero")
    srd(p, 56, 4, FL_OFF, 32768)
    p("v_lshlrev_b32 v24, 7, v0")
    p("v_mov_b32 v25, 0")
    for i in range(4):
        p(f"s_movk_i32 s3, {hex(8192*i)}")
        p(f"buffer_store_dword v25, v24, s[56:59], s3 offen sc1")
    p.label("L_p0_nozero")
    nz = len(p.vmq)
    p("s_mov_b32 s28, s30"); p("s_and_b32 s29, s31, 0xffff"); p(f"s_mov_b32 s30, {hex(S*D*2)}"); p("s_mov_b32 s31, 0x20000")
    for i in range(4):
        p.vmem(f"buffer_load_dwordx4 v[{R+4*i}:{R+4*i+3}], v{VIN}, s[28:31], s33 offen offset:{512*i}", "x")
    stamp(p, 8)
    p(f"v_lshrrev_b32 v{VOUT}, 2, v21")
    p(f"v_lshlrev_b32 v{VOUT}, 14, v{VOUT}")
    p("v_and_b32 v22, 3, v21")
    p(f"v_lshl_add_u32 v{VOUT}, v22, 8, v{VOUT}")
    p(f"v_lshl_add_u32 v{VOUT}, v20, 4, v{VOUT}")
    p(f"v_mul_u32_u24 v{VR}, 80, v20")
    p(f"v_add_u32 v{VR}, {LDS0}, v{VR}")
    p("v_lshrrev_b32 v22, 4, v0")
    p(f"v_lshl_add_u32 v{VW}, v22, 2, v{VR}")
    p("v_and_b32 v0, 63, v0")
    K1.setup_ids(p)
    K1.setup_srds(p)
    run_ops(K1.dma_ops(p, 0, "d0", "B"))
    K1.setup_pf(p, 64)
    run_ops(K1.dma_ops(p, 1, "d1", "B"))
    p("s_or_b32 s3, s2, s45")
    p("s_cmp_lg_u32 s3, 0")
    p("s_cbranch_scc1 L_p0_nogo")
    p("v_mov_b32 v20, 1")
    p("v_mov_b32 v21, 0")
    p(f"s_waitcnt vmcnt({len(p.vmq) - nz})")
    p("s_mov_b64 exec, 1")
    p("global_store_dword v21, v20, s[76:77] sc1")
    p("s_mov_b64 exec, -1")
    p.label("L_p0_nogo")
    for i in range(4):
        p.vmem("buffer_load_dword v46, v44, s[64:67], s49 offen", "pf")
        p("s_add_u32 s49, s49, s72")
    p("s_lshr_b32 s3, s2, 5")
    p("s_lshl_b32 s3, s3, 19")
    p("s_lshl_b32 s73, s2, 9")
    p("s_and_b32 s73, s73, 0x3c00")
    p("s_add_u32 s3, s3, s73")
    p("s_and_b32 s73, s2, 1")
    p("s_lshl_b32 s73, s73, 7")
    p("s_add_u32 s3, s3, s73")
    if XN_OFF: p(f"s_add_u32 s3, s3, {hex(XN_OFF)}")
    srd(p, 60, 4, "s3", 524288 - 16384 + 1024)
    p("s_mov_b32 s73, 0xffff0000")
    stamp(p, 7)
    p.wait(vm="x")
    stamp(p, 2)
    ln_compute(p, R, X, T, VW, VR, LDS0, "s73", mid=lambda: (p("v_mov_b32 v21, 0"), p.vmem("global_load_dword v23, v21, s[76:77] sc1", "go")))
    for i in range(4):
        for k in range(4):
            kk = 4 * i + k
            p(f"v_cvt_pk_bf16_f32 v{R+kk}, v{X+2*kk}, v{X+2*kk+1}")
        p.vmem(f"buffer_store_dwordx4 v[{R+4*i}:{R+4*i+3}], v{VOUT}, s[60:63], 0 offen sc1", "xs")
        if i < 3: p(f"v_add_u32 v{VOUT}, 0x20000, v{VOUT}")
    if os.environ.get("ST2") == "1": stamp(p, 4)
    K1.setup_addrs(p)
    p("s_mov_b64 s[74:75], s[76:77]")
    srd(p, 76, 4, FL_OFF, 32768)
    p("s_lshl_b32 s73, s2, 7")
    p("s_lshl_b32 s60, s43, 12")
    p("v_and_b32 v20, 31, v0")
    p("v_lshlrev_b32 v20, 7, v20")
    p("v_mov_b32 v22, 1")
    if os.environ.get("ST2") == "1": stamp(p, 5)
    p.wait(vm="xs")
    p("s_barrier")
    if os.environ.get("ST2") == "1": stamp(p, 6)
    p("s_cmp_lg_u32 s45, 0")
    p("s_cbranch_scc1 L_p0_polled")
    p("s_mov_b32 s61, 0x40000")
    p.label("L_p0_go")
    p("v_cmp_ne_u32 vcc, 1, v23")
    p("s_sub_u32 s61, s61, 1")
    p("s_cmp_eq_u32 s61, 0")
    p("s_cbranch_scc1 L_p0_gone")
    p("s_nop 1")
    p("s_cbranch_vccz L_p0_gone")
    p("global_load_dword v23, v21, s[74:75] sc1")
    p("s_waitcnt vmcnt(0)")
    p("s_branch L_p0_go")
    p.label("L_p0_gone")
    p("s_mov_b64 exec, 1")
    p("buffer_store_dword v22, v21, s[76:79], s73 offen sc1")
    p("s_mov_b64 exec, -1")
    p("s_mov_b32 s61, 0x40000")
    p.label("L_p0_poll")
    p("buffer_load_dword v23, v20, s[76:79], s60 offen sc1")
    p("s_sub_u32 s61, s61, 1")
    p("s_waitcnt vmcnt(0)")
    p("v_cmp_gt_u32 vcc, 1, v23")
    p("s_cmp_eq_u32 s61, 0")
    p("s_cbranch_scc1 L_p0_polled")
    p("s_nop 2")
    p("s_cbranch_vccnz L_p0_poll")
    p.label("L_p0_polled")
    p("s_barrier")
    stamp(p, 3)
    run_ops(K1.dma_ops(p, 0, "d0", "A"))
    run_ops(K1.dma_ops(p, 1, "d1", "A"))
    p.wait(vm="d0")
    p("s_barrier")
    for o in K1.read_ops(p, 0, 0, "f0"): o()
    p("s_mov_b32 s42, 6")
    p("s_cmp_eq_u32 s48, 1")
    p.wait(lg="f0")
    stamp(p, 9)
    p("s_cbranch_scc1 L_k1_v")
    k2 = gen_k23(merged=True)
    lin_all = []
    final = Prog()
    final.ins = list(p.ins)
    for isV in (False, True):
        q = Prog(); q.vmq = list(p.vmq); q.lgq = list(p.lgq)
        sfx = "v" if isV else "f"
        marks = []
        K1.iteration(q, 0, isV, dmas=[2, 3], pf="wd")
        K1.iteration(q, 1, isV, dmas=[4, 5], pf="wd")
        for t in range(2, 26):
            if t % 4 == 2: marks.append(q.mark())
            K1.iteration(q, t, isV, loopctl=(f"L_k1_loop_{sfx}" if t % 4 == 1 else None), dmas=[t + 4],
                         pf=("wo" if t % 4 == 0 else "wd"))
        marks.append(q.mark())
        K1.iteration(q, 26, isV, dmas=[30])
        body = unify([q.ins[marks[i]:marks[i+1]] for i in range(6)])
        K1.tail(q, isV)
        if os.environ.get('ST2') != '1': stamp(q, 5)
        if not isV: q("s_branch L_p2")
        lin_all.append([i.text for i in p.ins] + [i.text for i in q.ins] + k2["lins"][0][:200])
        if isV: final.label("L_k1_v")
        final.ins += q.ins[:marks[0]]
        final.ins.append(Ins(".p2align 6", "dir"))
        final.label(f"L_k1_loop_{sfx}")
        final.ins += body
        final.ins += q.ins[marks[6]:]
    final.ins += k2["prog"].ins
    launch = f"; @launch grid=(256,1,1) block=(256,1,1) lds=163840"
    return dict(name=name, prog=final, launch=launch, kd=kd(name, 512, 102, 256), lins=lin_all + k2["lins"])
```

```python
import os, sys
from build import *
from mega import gen_mega
NAME = "recurrent_scan__softmax_full_mha__glu_gated_glu__prompt_kernel"
k = gen_mega(NAME)
if os.environ.get("ASLIST", "1") == "1":
    k["launch"] = k["launch"].replace("@launch grid", f"@launch kernel={NAME} grid")
assemble([k], sys.argv[1] if len(sys.argv) > 1 else "m.s")
```

```python
from common import *
import k1_gemm1 as K1
from k23 import gen_k23

def ln_compute(p, R, X, T, vw, vr, lds0, smask, mid=None):
    for k in range(16):
        p(f"v_lshlrev_b32 v{X+2*k}, 16, v{R+k}")
        p(f"v_and_b32 v{X+2*k+1}, {smask}, v{R+k}")
    def pk(op, d, a, b, extra=""):
        p(f"v_pk_{op}_f32 v[{d}:{d+1}], v[{a}:{a+1}], v[{b}:{b+1}]{extra}")
    def cross(off, dst):
        pk("add", T, T, T + 2); pk("add", T + 4, T + 4, T + 6); pk("add", T, T, T + 4)
        p(f"v_add_f32 v{T}, v{T}, v{T+1}")
        p("s_nop 1")
        p(f"v_add_f32_dpp v{T}, v{T}, v{T} row_ror:8 row_mask:0xf bank_mask:0xf")
        p.lds(f"ds_write_b32 v{vw}, v{T} offset:{off}", "lw")
        p.wait(lg="lw")
        p("s_barrier")
        for j in range(4):
            p.lds(f"ds_read_b128 v[{T+8+4*j}:{T+11+4*j}], v{vr} offset:{off+16*j}", "lr")
        p.wait(lg="lr")
        for j in range(4): pk("add", T + 8 + 2 * j, T + 8 + 2 * j, T + 16 + 2 * j)
        pk("add", T + 8, T + 8, T + 12); pk("add", T + 10, T + 10, T + 14); pk("add", T + 8, T + 8, T + 10)
        p(f"v_add_f32 v{dst}, v{T+8}, v{T+9}")
        p(f"v_mul_f32 v{dst}, 0x3a800000, v{dst}")
    for a in range(4): pk("add", T + 2 * a, X + 2 * a, X + 8 + 2 * a)
    for k in range(8, 16): pk("add", T + 2 * (k % 4), T + 2 * (k % 4), X + 2 * k)
    M = T + 24; Vv = T + 26; Dd = T + 28
    cross(0, M)
    NEG = " op_sel_hi:[1,0] neg_lo:[0,1] neg_hi:[0,1]"
    for k in range(16):
        d = Dd + 2 * (k % 8)
        pk("add", d, X + 2 * k, M, NEG)
        if k >= 3:
            kk = k - 3; dd = Dd + 2 * (kk % 8); a = T + 2 * (kk % 4)
            if kk < 4: pk("mul", a, dd, dd)
            else: p(f"v_pk_fma_f32 v[{a}:{a+1}], v[{dd}:{dd+1}], v[{dd}:{dd+1}], v[{a}:{a+1}]")
    for kk in range(13, 16):
        dd = Dd + 2 * (kk % 8); a = T + 2 * (kk % 4)
        p(f"v_pk_fma_f32 v[{a}:{a+1}], v[{dd}:{dd+1}], v[{dd}:{dd+1}], v[{a}:{a+1}]")
    p(f"v_cvt_pk_bf16_f32 v{Dd}, v{M}, v{M}")
    p(f"v_and_b32 v{M}, {smask}, v{Dd}")
    if mid: mid()
    cross(1024, Vv)
    p(f"v_cvt_pk_bf16_f32 v{Dd}, v{Vv}, v{Vv}")
    p(f"v_and_b32 v{Vv}, {smask}, v{Dd}")
    p(f"v_add_f32 v{Vv}, 0x3727c5ac, v{Vv}")
    p(f"v_cvt_pk_bf16_f32 v{Dd}, v{Vv}, v{Vv}")
    p(f"v_and_b32 v{Vv}, {smask}, v{Dd}")
    p(f"v_sqrt_f32 v{Vv}, v{Vv}")
    pk("add", X, X, M, NEG)
    p(f"v_cvt_pk_bf16_f32 v{Dd}, v{Vv}, v{Vv}")
    p(f"v_and_b32 v{Vv}, {smask}, v{Dd}")
    p(f"v_rcp_f32 v{Vv}, v{Vv}")
    for k in range(1, 16): pk("add", X + 2 * k, X + 2 * k, M, NEG)
    for k in range(16): p(f"v_cvt_pk_bf16_f32 v{R+k}, v{X+2*k}, v{X+2*k+1}")
    for k in range(16):
        p(f"v_lshlrev_b32 v{X+2*k}, 16, v{R+k}")
        p(f"v_and_b32 v{X+2*k+1}, {smask}, v{R+k}")
    for k in range(16): pk("mul", X + 2 * k, X + 2 * k, Vv, " op_sel_hi:[1,0]")

def gen_mega(name):
    K1.MERGED[0] = True
    p = Prog()
    def run_ops(ops):
        for o in ops:
            o()
            if "m0," in p.ins[-1].text: p("s_nop 0")
    p("s_cmp_ge_u32 s2, 256")
    p("s_cbranch_scc1 L_k2_end")
    stamp(p, 0); stamp_rt(p, 1)
    p(f"s_load_dwordx2 s[30:31], s[0:1], {KA_X}")
    p(f"s_load_dwordx4 s[76:79], s[0:1], {KA_DBG}")
    if CPF:
        p("s_getpc_b64 s[62:63]")
        p.label("L_p0_pc")
        p("s_lshr_b32 s3, s2, 3")
        p("s_and_b32 s3, s3, 3")
        p("s_lshl_b32 s3, s3, 14")
        p("v_lshlrev_b32 v20, 7, v0")
        p("v_add_u32 v21, s3, v20")
        p("v_subrev_u32 v21, 0x2000, v21")
        p("v_lshrrev_b32 v20, 1, v20")
        p("v_cmp_gt_u32 vcc, 128, v0")
        p("s_nop 1")
        p("v_cndmask_b32 v20, v21, v20, vcc")
        p("v_min_u32 v20, L_k2_fallback-L_p0_pc, v20")
        p.vmem("global_load_dword v46, v20, s[62:63]", "cpf")
    p(f"s_load_dwordx2 s[6:7], s[0:1], {KA_WQKV}")
    p(f"s_load_dwordx4 s[8:11], s[0:1], {KA_WG}")
    p(f"s_load_dwordx2 s[72:73], s[0:1], {KA_WD}")
    p(f"s_load_dwordx2 s[74:75], s[0:1], {KA_WO}")
    R, X, T = 56, 72, 104
    VIN, VOUT, VW, VR = 48, 49, 50, 51
    LDS0 = 147456
    p("v_and_b32 v20, 7, v0")
    p("v_lshrrev_b32 v21, 3, v0")
    p(f"v_lshlrev_b32 v{VIN}, 11, v20")
    p(f"v_lshl_add_u32 v{VIN}, v21, 4, v{VIN}")
    p("v_lshrrev_b32 v11, 6, v0")
    p("s_lshl_b32 s33, s2, 14")
    p("v_readfirstlane_b32 s45, v11")
    p("s_waitcnt lgkmcnt(0)")
    p("s_mov_b64 s[4:5], s[78:79]")
    p("s_or_b32 s3, s2, s45")
    p("s_cmp_lg_u32 s3, 0")
    p("s_cbranch_scc1 L_p0_nozero")
    srd(p, 56, 4, FL_OFF, 32768)
    p("v_lshlrev_b32 v24, 7, v0")
    p("v_mov_b32 v25, 0")
    for i in range(4):
        p(f"s_movk_i32 s3, {hex(8192*i)}")
        p(f"buffer_store_dword v25, v24, s[56:59], s3 offen sc1")
    p.label("L_p0_nozero")
    nz = len(p.vmq)
    p("s_mov_b32 s28, s30"); p("s_and_b32 s29, s31, 0xffff"); p(f"s_mov_b32 s30, {hex(S*D*2)}"); p("s_mov_b32 s31, 0x20000")
    for i in range(4):
        p.vmem(f"buffer_load_dwordx4 v[{R+4*i}:{R+4*i+3}], v{VIN}, s[28:31], s33 offen offset:{512*i} {os.environ.get('XPOL', '')}", "x")
    stamp(p, 8)
    p(f"v_lshrrev_b32 v{VOUT}, 2, v21")
    p(f"v_lshlrev_b32 v{VOUT}, 14, v{VOUT}")
    p("v_and_b32 v22, 3, v21")
    p(f"v_lshl_add_u32 v{VOUT}, v22, 8, v{VOUT}")
    p(f"v_lshl_add_u32 v{VOUT}, v20, 4, v{VOUT}")
    p(f"v_mul_u32_u24 v{VR}, 80, v20")
    p(f"v_add_u32 v{VR}, {LDS0}, v{VR}")
    p("v_lshrrev_b32 v22, 4, v0")
    p(f"v_lshl_add_u32 v{VW}, v22, 2, v{VR}")
    p("v_and_b32 v0, 63, v0")
    K1.setup_ids(p)
    K1.setup_srds(p)
    BE = int(os.environ.get("BE", "2"))
    if BE >= 1: run_ops(K1.dma_ops(p, 0, "d0", "B"))
    K1.setup_pf(p, 192 if os.environ.get("PFE") == "n" else 64)
    if BE >= 2: run_ops(K1.dma_ops(p, 1, "d1", "B"))
    p("s_or_b32 s3, s2, s45")
    p("s_cmp_lg_u32 s3, 0")
    p("s_cbranch_scc1 L_p0_nogo")
    p("v_mov_b32 v20, 1")
    p("v_mov_b32 v21, 0")
    p(f"s_waitcnt vmcnt({len(p.vmq) - nz})")
    p("s_mov_b64 exec, 1")
    p("global_store_dword v21, v20, s[76:77] sc1")
    p("s_mov_b64 exec, -1")
    p.label("L_p0_nogo")
    PFE = os.environ.get("PFE", "1") == "1"
    PFN = os.environ.get("PFE", "1") == "n"
    if PFE:
        for i in range(4):
            p.vmem("buffer_load_dword v46, v44, s[64:67], s49 offen", "pf")
            p("s_add_u32 s49, s49, s72")
    p("s_lshr_b32 s3, s2, 5")
    p("s_lshl_b32 s3, s3, 19")
    p("s_lshl_b32 s73, s2, 9")
    p("s_and_b32 s73, s73, 0x3c00")
    p("s_add_u32 s3, s3, s73")
    p("s_and_b32 s73, s2, 1")
    p("s_lshl_b32 s73, s73, 7")
    p("s_add_u32 s3, s3, s73")
    if XN_OFF: p(f"s_add_u32 s3, s3, {hex(XN_OFF)}")
    srd(p, 60, 4, "s3", 524288 - 16384 + 1024)
    p("s_mov_b32 s73, 0xffff0000")
    stamp(p, 7)
    p.wait(vm="x")
    stamp(p, 2)
    ln_compute(p, R, X, T, VW, VR, LDS0, "s73", mid=lambda: (p("v_mov_b32 v21, 0"), p.vmem("global_load_dword v23, v21, s[76:77] sc1", "go")))
    for i in range(4):
        for k in range(4):
            kk = 4 * i + k
            p(f"v_cvt_pk_bf16_f32 v{R+kk}, v{X+2*kk}, v{X+2*kk+1}")
        p.vmem(f"buffer_store_dwordx4 v[{R+4*i}:{R+4*i+3}], v{VOUT}, s[60:63], 0 offen sc1", "xs")
        if i < 3: p(f"v_add_u32 v{VOUT}, 0x20000, v{VOUT}")
    if os.environ.get("ST2") == "1": stamp(p, 4)
    K1.setup_addrs(p)
    p("s_mov_b64 s[74:75], s[76:77]")
    srd(p, 76, 4, FL_OFF, 32768)
    p("s_lshl_b32 s73, s2, 7")
    p("s_lshl_b32 s60, s43, 12")
    p("v_and_b32 v20, 31, v0")
    p("v_lshlrev_b32 v20, 7, v20")
    p("v_mov_b32 v22, 1")
    if os.environ.get("ST2") == "1": stamp(p, 5)
    p.wait(vm="xs")
    p("s_barrier")
    if os.environ.get("ST2") == "1": stamp(p, 6)
    p("s_cmp_eq_u32 s45, 3")
    p("s_cbranch_scc1 L_p0_sig")
    for i in range(0 if (PFE or PFN) else 4):
        p("buffer_load_dword v46, v44, s[64:67], s49 offen")
        p("s_add_u32 s49, s49, s72")
    p("s_branch L_p0_polled")
    p.label("L_p0_sig")
    p("s_mov_b32 s61, 0x40000")
    p.label("L_p0_go")
    p("v_cmp_ne_u32 vcc, 1, v23")
    p("s_sub_u32 s61, s61, 1")
    p("s_cmp_eq_u32 s61, 0")
    p("s_cbranch_scc1 L_p0_gone")
    p("s_nop 1")
    p("s_cbranch_vccz L_p0_gone")
    p("global_load_dword v23, v21, s[74:75] sc1")
    p("s_waitcnt vmcnt(0)")
    p("s_branch L_p0_go")
    p.label("L_p0_gone")
    p("s_mov_b64 exec, 1")
    p("buffer_store_dword v22, v21, s[76:79], s73 offen sc1")
    p("s_mov_b64 exec, -1")
    p("s_mov_b32 s61, 0x40000")
    p.label("L_p0_poll")
    p("buffer_load_dword v23, v20, s[76:79], s60 offen sc1")
    p("s_sub_u32 s61, s61, 1")
    p("s_waitcnt vmcnt(0)")
    p("v_cmp_gt_u32 vcc, 1, v23")
    p("s_cmp_eq_u32 s61, 0")
    p("s_cbranch_scc1 L_p0_polled")
    p("s_nop 2")
    p("s_cbranch_vccnz L_p0_poll")
    p.label("L_p0_polled")
    p("s_barrier")
    stamp(p, 3)
    run_ops(K1.dma_ops(p, 0, "d0", "A" if BE >= 1 else "AB"))
    run_ops(K1.dma_ops(p, 1, "d1", "A" if BE >= 2 else "AB"))
    p.wait(vm="d0")
    p("s_barrier")
    for o in K1.read_ops(p, 0, 0, "f0"): o()
    p("s_mov_b32 s42, 6")
    p("s_cmp_eq_u32 s48, 1")
    p.wait(lg="f0")
    stamp(p, 9)
    p("s_cbranch_scc1 L_k1_v")
    k2 = gen_k23(merged=True)
    lin_all = []
    final = Prog()
    final.ins = list(p.ins)
    for isV in (False, True):
        q = Prog(); q.vmq = list(p.vmq); q.lgq = list(p.lgq)
        sfx = "v" if isV else "f"
        marks = []
        K1.iteration(q, 0, isV, dmas=[2, 3], pf="wd")
        K1.iteration(q, 1, isV, dmas=[4, 5], pf="wd")
        for t in range(2, 26):
            if t % 4 == 2: marks.append(q.mark())
            K1.iteration(q, t, isV, loopctl=(f"L_k1_loop_{sfx}" if t % 4 == 1 else None), dmas=[t + 4],
                         pf=("wo" if t % 4 == 0 else "wd"))
        marks.append(q.mark())
        K1.iteration(q, 26, isV, dmas=[30])
        body = unify([q.ins[marks[i]:marks[i+1]] for i in range(6)])
        K1.tail(q, isV)
        if os.environ.get('ST2') != '1': stamp(q, 5)
        if not isV: q("s_branch L_p2")
        lin_all.append([i.text for i in p.ins] + [i.text for i in q.ins] + k2["lins"][0][:200])
        if isV: final.label("L_k1_v")
        final.ins += q.ins[:marks[0]]
        final.ins.append(Ins(".p2align 6", "dir"))
        final.label(f"L_k1_loop_{sfx}")
        final.ins += body
        final.ins += q.ins[marks[6]:]
    final.ins += k2["prog"].ins
    launch = f"; @launch grid=(256,1,1) block=(256,1,1) lds=163840"
    return dict(name=name, prog=final, launch=launch, kd=kd(name, 512, 102, 256), lins=lin_all + k2["lins"])
```

```python
from common import *
from gstream import *
from k2_attn import SA, SB, CA, CB, PA, PB, QR, SEL, OA, OB, LA, LB, KB, VB, S_, C_, P_, O_, L_, Kf, Vf, Qf, r16, qk, pv, softmax_valu, f2u
from k3_final import tile_map, silu_pack
import math

HSC = os.environ.get("HSC", "sc1")
def gen_k23(name="attn_kernel", merged=False):
    p = Prog()
    sc = (" " + HSC) if merged else ""
    FLC = 2048 if merged else 0
    SS = lambda fn: (fn, "s")
    def run_ops(ops):
        for o in ops:
            o()
            if "m0," in p.ins[-1].text: p("s_nop 0")
    if not merged:
        p("s_cmp_ge_u32 s2, 256")
        p("s_cbranch_scc1 L_k2_end")
        stamp(p, 0); stamp_rt(p, 1)
        p(f"s_load_dwordx2 s[4:5], s[0:1], {KA_WS}")
    else:
        p.label("L_p2")
    p(f"s_load_dwordx4 s[60:63], s[0:1], {KA_WD}")
    p(f"s_load_dwordx2 s[8:9], s[0:1], {KA_WO}")
    p(f"s_load_dwordx2 s[10:11], s[0:1], {KA_X}")
    if not merged:
        code_prefetch(p, "k2", "L_k2_fallback", 0, 12, 76)
        p("v_lshrrev_b32 v2, 6, v0")
        p("v_and_b32 v0, 63, v0")
        p("v_readfirstlane_b32 s45, v2")
    p("v_lshlrev_b32 v1, 4, v0")
    p("s_and_b32 s44, s2, 7")
    p("s_lshl_b32 s44, s44, 2")
    p("s_lshr_b32 s43, s2, 3")
    p("s_lshr_b32 s3, s43, 3")
    p("s_add_u32 s44, s44, s3")
    p("s_and_b32 s43, s43, 7")
    p("s_lshl_b32 s36, s45, 12")
    p("s_mov_b32 s37, s36")
    p("s_lshl_b32 s52, s44, 18")
    p(f"s_add_u32 s52, s52, {hex(KV_OFF)}")
    p("s_lshl_b32 s3, s44, 17")
    p("s_lshl_b32 s6, s43, 14")
    p("s_add_u32 s3, s3, s6")
    p("s_add_u32 s3, s3, s36")
    p(f"s_add_u32 s53, s3, {hex(QF_OFF)}")
    p("s_waitcnt lgkmcnt(0)")
    srd(p, 16, 4, "s53", 4096)
    srd(p, 12, 4, "s52", 262144)
    def kv_dma(c):
        ops = [lambda: p("s_mov_b32 m0, s37")]
        ops += [lambda i=i: p.vmem(f"buffer_load_dwordx4 v1, s[12:15], s36 offen offset:{1024*i}{sc} lds", f"kv{c}") for i in range(4)]
        ops.append(lambda: p("s_add_u32 s36, s36, 0x4000"))
        ops.append(lambda: p("s_add_u32 s37, s37, 0x4000"))
        ops.append(lambda: p("s_and_b32 s37, s37, 0xffff"))
        return ops
    def first_loads():
        for i in range(4):
            p.vmem(f"buffer_load_dwordx4 v[{QR+4*i}:{QR+4*i+3}], v1, s[16:19], 0 offen offset:{1024*i}{sc}", "q")
        for f in range(2):
            p.vmem(f"buffer_load_dwordx4 {Kf(0,f)}, v1, s[12:15], 0 offen offset:{1024*f}{sc}", "q")
        run_ops(kv_dma(0))
    if not merged: first_loads()
    tile_map(p, "s46", "s47")
    p("s_lshl_b32 s41, s45, 14")
    p("s_add_u32 s41, s41, 0x10000")
    g = GStream(p, acc=72, wfr=200, hbase=128, RH=4, vdma=116, vrd=120, vlin=1, s_h="s39", s_w="s40", srd_h=24, srd_w=28, s_m0="s41", pfx="y")
    g.vrot = 122
    g.hsc = sc
    g.setup_addrs(0, "s41", 6)
    for a in range(4):
        p(f"s_add_u32 s3, s45, {a}")
        p("s_and_b32 s3, s3, 3")
        p("s_lshl_b32 s3, s3, 10")
        p(f"v_add_u32 v{122+a}, s3, v1")
    p("s_mul_i32 s3, s46, 917504")
    p(f"s_mul_i32 s6, s45, {56*4096}")
    p("s_add_u32 s3, s3, s6")
    p(f"s_add_u32 s3, s3, {hex(HF_OFF)}")
    srd(p, 24, 4, "s3", 56 * 4096)
    p(f"s_mul_i32 s3, s45, {896*2048}")
    p("s_lshl_b32 s6, s47, 7")
    p("s_add_u32 s3, s3, s6")
    p(f"s_sub_u32 s7, {896*2048}, s6")
    srd(p, 28, 60, "s3", "s7")
    p("s_mov_b32 s39, 0"); p("s_mov_b32 s40, 0")
    p("s_lshl_b32 s3, s43, 19")
    p("s_lshl_b32 s6, s45, 17")
    p("s_add_u32 s3, s3, s6")
    p("s_lshl_b32 s6, s44, 11")
    p("s_add_u32 s3, s3, s6")
    p(f"s_add_u32 s3, s3, {hex(OF_OFF)}")
    srd(p, 20, 4, "s3", 65536 + 2048)
    p("s_mov_b32 s50, 0x10000")
    p("v_lshrrev_b32 v2, 2, v0")
    p("v_lshrrev_b32 v3, 4, v0")
    p("v_xor_b32 v2, v2, v3")
    p("v_and_b32 v2, 1, v2")
    p("v_and_b32 v3, 3, v0")
    p("v_or_b32 v2, v2, v3")
    p("v_cmp_eq_u32 vcc, 0, v2")
    p("v_mov_b32 v3, 0x3f803f80")
    p("s_nop 0")
    p(f"v_cndmask_b32 v{SEL}, 0, v3, vcc")
    for i in range(1, 4): p(f"v_mov_b32 v{SEL+i}, v{SEL}")
    for i in range(0, 40): p(f"v_accvgpr_write_b32 a{i}, 0")
    p("v_mov_b32 v4, v1")
    p("v_add_u32 v5, 0x4000, v1")
    p("s_mov_b32 s38, 0x4000")
    p("s_mov_b32 s51, 0xffff0000")
    p(f"s_mov_b32 s58, {hex(f2u(-math.log2(math.e)))}")
    p("s_mov_b32 s59, s58")
    p("s_lshl_b32 s6, s47, 7")
    p(f"s_sub_u32 s7, {D*D*2}, s6")
    srd(p, 32, 8, "s6", "s7")
    p("s_lshl_b32 s48, s45, 16")
    p("s_lshl_b32 s49, s45, 12")
    if merged:
        srd(p, 64, 4, FL_OFF, 32768)
        p("s_lshl_b32 s68, s2, 7")
        p("s_lshr_b32 s3, s44, 1")
        p("v_mov_b32 v8, s3")
        p("v_mov_b32 v9, s43")
        p("s_lshr_b32 s6, s44, 3")
        p("s_add_u32 s6, s6, 28")
        p("v_mov_b32 v10, s6")
        p("v_subrev_u32 v11, 36, v0")
        p("v_cmp_gt_u32 vcc, 44, v0")
        p("s_add_u32 s3, s3, 16")
        p("s_lshr_b32 s6, s46, 1")
        p("v_cndmask_b32 v8, v8, v10, vcc")
        p("v_cndmask_b32 v9, v9, v11, vcc")
        p("v_mov_b32 v10, s3")
        p("v_subrev_u32 v11, 28, v0")
        p("v_cmp_gt_u32 vcc, 36, v0")
        p("s_nop 1")
        p("v_cndmask_b32 v8, v8, v10, vcc")
        p("v_cndmask_b32 v9, v9, v11, vcc")
        p("v_mov_b32 v11, s6")
        p("v_cmp_gt_u32 vcc, 28, v0")
        p("s_nop 1")
        p("v_cndmask_b32 v8, v8, v0, vcc")
        p("v_cndmask_b32 v9, v9, v11, vcc")
        p("v_mul_u32_u24 v10, 43, v8")
        p("v_lshrrev_b32 v10, 7, v10")
        p("v_mul_u32_u24 v11, 3, v10")
        p("v_sub_u32 v11, v8, v11")
        p("v_lshl_add_u32 v10, v11, 6, v10")
        p("v_and_b32 v11, 3, v8")
        p("v_lshlrev_b32 v11, 1, v11")
        p("v_lshrrev_b32 v12, 2, v9")
        p("v_bfe_u32 v13, v8, 2, 1")
        p("v_xor_b32 v12, v12, v13")
        p("v_xor_b32 v12, 1, v12")
        p("v_add3_u32 v11, v11, v12, 64")
        p("v_add_u32 v11, 128, v11")
        p("v_cmp_gt_u32 vcc, 24, v8")
        p("s_nop 1")
        p("v_cndmask_b32 v10, v11, v10, vcc")
        p("v_lshl_add_u32 v10, v9, 3, v10")
        p("v_lshlrev_b32 v12, 7, v10")
        p("s_waitcnt vmcnt(0)")
        if os.environ.get("ST2") != "1": stamp(p, 6)
        p("s_barrier")
        p("s_cmp_lg_u32 s45, 0")
        p("s_cbranch_scc1 L_p2_nosig")
        p("v_mov_b32 v6, 2")
        p("v_mov_b32 v7, 0")
        p("s_mov_b64 exec, 1")
        p("buffer_store_dword v6, v7, s[64:67], s68 offen sc1")
        p("s_mov_b64 exec, -1")
        p.label("L_p2_nosig")
        run_ops(g.w_dma(0, 0))
        run_ops(g.w_dma(1, 1))
        p("s_xor_b32 s41, s41, 0x2000")
        if STAMP:
            p("s_memrealtime s[100:101]")
            stamp_out(p, 11, 1, 4, "s45", vt=6)
        p("s_cmp_lg_u32 s45, 0")
        p("s_cbranch_scc1 L_p2_polled")
        p("s_mov_b32 s70, 0x40000")
        p.label("L_p2_poll")
        p("buffer_load_dword v8, v12, s[64:67], 0 offen sc1")
        p("s_sub_u32 s70, s70, 1")
        p("s_waitcnt vmcnt(0)")
        p("v_cmp_gt_u32 vcc, 2, v8")
        p("s_cmp_eq_u32 s70, 0")
        p("s_cbranch_scc1 L_p2_polled")
        p("s_nop 2")
        p("s_cbranch_vccnz L_p2_poll")
        p.label("L_p2_polled")
        p("s_barrier")
        stamp(p, 2)
        first_loads()
        p("v_and_b32 v12, 7, v0")
        p("v_bfe_u32 v13, v0, 3, 2")
        p("v_lshl_add_u32 v12, v13, 6, v12")
        p("v_lshlrev_b32 v12, 7, v12")
        h0 = g.h_loads(0)
        run_ops(h0)
    p.wait(vm="q")
    if not merged: stamp(p, 2)
    for blk in range(2):
        for t, _ in qk(blk, 0, "0"): p(t)
    if not merged: run_ops(g.w_dma(0, 0))
    else: p("s_nop 7")
    p("s_nop 7")
    for blk in range(2):
        S = S_[blk]
        p(f"v_max3_f32 v6, v{S}, v{S+1}, v{S+2}")
        for i in range(3, 15, 2):
            p(f"v_max3_f32 v6, v6, v{S+i}, v{S+i+1}")
        p(f"v_max_f32 v6, v6, v{S+15}")
        p("v_mov_b32 v7, v6")
        p("s_nop 1")
        p("v_permlane32_swap_b32 v6, v7")
        p("s_nop 1")
        p("v_max_f32 v6, v6, v7")
        for i in range(16):
            p(f"v_sub_f32 v{C_[blk]+i}, 0, v6")
        if blk == 0:
            for i in range(16):
                p(f"v_sub_f32 v{S+i}, v{S+i}, v6")
    p("s_mov_b32 s42, 13")
    p.wait(vm="kv0")
    p("s_barrier")
    stamp(p, 3)
    NC = 16; NKS = 56; KOFF = 2
    DYN = os.environ.get("P3DYN", "0") == "1"
    ROT = os.environ.get("P3ROT", "0") == "1"
    def wo_dma(i):
        off = i * 16384 if i < 2 else 0x10000 + (i - 2) * 16384
        ops = [lambda: p(f"s_add_u32 m0, s49, {hex(off)}")]
        ops += [lambda n=n: p.vmem(f"buffer_load_dwordx4 v{g.vdma+n}, s[32:35], s48 offen offset:{1024*n} lds", f"wo{i}") for n in range(4)]
        ops.append(lambda: p("s_add_u32 s48, s48, 0x40000"))
        return ops
    XW = [lambda a=a, q=q: p.lds(f"ds_write_b128 v{5+a}, a[{72+32*a+4*q}:{72+32*a+4*q+3}] offset:{1024*q}", "xw") for a in (1, 2, 3) for q in range(8)]
    XT = 128
    XR_ = [lambda s=s, q=q: p.lds(f"ds_read_b128 v[{XT+32*s+4*q}:{XT+32*s+4*q+3}], v9 offset:{s*8192 + 1024*q}", "xr") for s in range(3) for q in range(8)]
    def endgame(j, ph, add, ex):
        def dma(i, pos):
            d = wo_dma(i)
            ex.setdefault(pos[0], []).insert(0, SS(d[0]))
            if len(ex[pos[0]]) == 1: ex[pos[0]].append(SS(lambda: p("s_nop 0")))
            for n in range(4): add(pos[n], d[1 + n])
            add(pos[3], SS(d[5]))
        key = (j, ph)
        xw = {(58, "A"): (6, 11), (58, "B"): (11, 17), (59, "A"): (17, 22), (59, "B"): (22, 24)}
        if key in xw:
            a0, a1 = xw[key]
            pos = {5: [0, 1, 2, 3, 4], 6: [0, 1, 2, 3, 4, 5], 2: [0, 1]}[a1 - a0]
            for n in range(a1 - a0): add(pos[n], XW[a0 + n])
        if key == (58, "B"): dma(0, [0, 2, 4, 5])
        if key == (59, "B"):
            dma(1, [0, 2, 4, 5])
            ex.setdefault(4, []).insert(0, SS(lambda: p.wait(lg="xw")))
            ex.setdefault(5, []).insert(0, SS(lambda: p("s_barrier")))
        if key == (60, "A"):
            for n, pos in enumerate([0, 0, 1, 1, 2, 2, 3, 3, 4, 4, 5, 5]): add(pos, XR_[n])
        if key == (60, "B"):
            for n, pos in enumerate([0, 0, 0, 1, 1, 2, 2, 2, 3, 4, 4, 4]): add(pos, XR_[12 + n])
        if key == (61, "A"):
            ex.setdefault(0, []).insert(0, SS(lambda: p.wait(lg="xr")))
            ex.setdefault(1, []).insert(0, SS(lambda: p("s_barrier")))
            dma(2, [2, 3, 4, 5])
        if key == (61, "B"): dma(3, [0, 2, 4, 5])
        if key == (62, "A"): dma(4, [0, 2, 3, 5])
        if key == (62, "B"): dma(5, [0, 2, 4, 5])
        if key == (63, "A"): dma(6, [0, 1, 3, 5])
        if key == (62, "B"):
            for t_ in (f"s_add_u32 s64, s4, {hex(FL_OFF)}", "s_addc_u32 s65, s5, 0"): add(3, SS(lambda t_=t_: p(t_)))
        if key == (63, "A"):
            for t_ in ("s_and_b32 s65, s65, 0xffff", "s_mov_b32 s66, 0x8000"): add(2, SS(lambda t_=t_: p(t_)))
            for t_ in ("s_mov_b32 s67, 0x20000", "s_lshr_b32 s69, s46, 1"): add(4, SS(lambda t_=t_: p(t_)))
        if key == (63, "B"):
            dma(7, [0, 1, 2, 2])
            add(1, SS(lambda: p("s_lshl_b32 s69, s69, 10")))
            if DYN: add(3, lambda: p.vmem("buffer_load_dword v13, v12, s[64:67], s69 offen sc1", "poll1"))
    marks = []
    for c in range(NC):
        marks.append(p.mark())
        inloop = 1 <= c <= 13
        for i in range(4):
            j = 4 * c + i
            k = j - KOFF
            gm = [(t, 32) for t in g.mfmas(k, first=(k == 0))] if 0 <= k < NKS else None
            lim = (lambda x, n: True) if inloop else (lambda x, n: x < n)
            a = qk(1, j) + (pv(1, j - 1) if j > 0 else [])
            kaddr, koff = ("v4", (i + 1) * 4096) if i < 3 else ("v5", 0)
            rdV = [lambda f=f: p.lds(f"ds_read_b128 {Vf(j,f)}, v4 offset:{i*4096 + 2048 + 1024*f}", f"v{j}") for f in range(2)]
            rdK = [lambda f=f: p.lds(f"ds_read_b128 {Kf(j+1,f)}, {kaddr} offset:{koff + 1024*f}", f"k{j+1}") for f in range(2)]
            if j == 63: rdK = [None, None]
            va = softmax_valu(0)
            wK = SS(lambda: p.wait(lg=[f"k{j+1}"]))
            ex = {}
            def add(pos, e):
                if e is not None: ex.setdefault(pos, []).append(e)
            if gm and (k + 1) % 4 == 0 and k + 1 < NKS:
                va = [(f"v_xor_b32 v{g.vrd}, 0x2000, v{g.vrd}", 4), (f"v_xor_b32 v{g.vrd+1}, 0x2000, v{g.vrd+1}", 4)] + va
            hl = None
            if gm:
                mf = [a[0], gm[0], a[1], gm[1], a[2], a[3], gm[2], a[4], a[5], gm[3]]
                add(0, SS(lambda: p.wait(vm=f"yh{k}", lg=f"yf{k}n0", force=True))); add(0, rdK[0])
                add(2, SS(lambda: p.wait(lg=f"yf{k}n1", force=True))); add(2, rdK[1])
                add(4, rdV[0]); add(7, rdV[1]); add(9, wK)
                if j == 57:
                    add(3, SS(lambda: p.wait(vm=["yw28", "kv16", "kv15"], force=True)))
                    add(5, SS(lambda: p("s_barrier")))
                if lim(k + 3, NKS):
                    hl = g.h_loads(k + 3)
                    for n, pos in enumerate([1, 3, 6, 9]): add(pos, hl[n])
            elif j == 0:
                mf = a
                add(0, rdK[0]); add(0, rdK[1]); add(1, rdV[0]); add(1, rdV[1])
                h0 = g.h_loads(1 if merged else 0)
                add(0, h0[0]); add(1, h0[1])
            else:
                mf = a
                add(0, rdK[0]); add(1, rdK[1]); add(2, rdV[0]); add(4, rdV[1])
                if j < 63: add(5, wK)
                if j == 1:
                    h1 = g.h_loads(2 if merged else 1)
                    add(0, h1[0]); add(2, h1[1]); add(3, h1[2]); add(4, h1[3]); add(5, SS(h1[4]))
                endgame(j, "A", add, ex)
            fill(p, mf, va, ex)
            if j == 0:
                p.wait(lg="k1")
            a = (qk(0, j + 1) if j < 63 else []) + pv(0, j)
            va = softmax_valu(1)
            wv = SS(lambda: p.wait(lg=[f"v{j}"]))
            ex = {}
            if gm:
                mf = [a[0], gm[4], a[1], gm[5], a[2], a[3], gm[6], a[4], a[5], gm[7]]
                add(3, wv)
                if hl: add(5, SS(hl[4]))
                d = None
                if k % 2 == 0 and lim(k // 2 + 2, NKS // 2):
                    fg = k // 2 + 2
                    d = g.w_dma(fg, fg & 1)
                    tail = [d[5]]
                    if fg & 1: tail.append(lambda: p("s_xor_b32 s41, s41, 0x2000"))
                if i == 3 and lim(c + 3, NC):
                    d = kv_dma(c + 3)
                    tail = d[5:8]
                if d: add(0, SS(d[0]))
                if k + 1 < NKS:
                    fg1 = (k + 1) // 2
                    wr = g.w_reads(k + 1, (fg1 & 1) * 4096)
                    if (k + 1) % 2 == 0:
                        add(0, SS(lambda: p.wait(vm=f"yw{fg1}", force=True)))
                    for n, pos in enumerate([0, 2, 4, 7]): add(pos, wr[n])
                if d:
                    for n, pos in enumerate([1, 3, 6, 9]): add(pos, d[1 + n])
                    for o in tail: add(9, SS(o))
                if i == 2:
                    ex.setdefault(6, []).insert(0, SS(lambda: p.wait(vm=f"kv{c+1}", force=True)))
                    ex.setdefault(7, []).insert(0, SS(lambda: p("s_barrier")))
                if i == 1 and inloop:
                    add(8, SS(lambda: p("s_sub_u32 s42, s42, 1")))
                if j == 56:
                    for a_ in (1, 2, 3):
                        add(2 * a_ - 1, SS(lambda a_=a_: p(f"s_add_u32 s{63+a_}, s45, {a_}")))
                        add(2 * a_ - 1, SS(lambda a_=a_: p(f"s_and_b32 s{63+a_}, s{63+a_}, 3")))
                        add(2 * a_, SS(lambda a_=a_: p(f"s_mul_i32 s{63+a_}, s{63+a_}, {3*8192}")))
                        add(2 * a_, SS(lambda a_=a_: p(f"s_add_u32 s{63+a_}, s{63+a_}, {hex(0x10000 + (a_-1)*8192)}")))
                    add(7, SS(lambda: p(f"s_mul_i32 s67, s45, {3*8192}")))
                    add(8, SS(lambda: p(f"s_add_u32 s67, s67, 0x10000")))
                    va = va + [(f"v_add_u32 v{5+a_}, s{63+a_}, v1", 4) for a_ in (1, 2, 3)] + [("v_add_u32 v9, s67, v1", 4)]
                if j == 57:
                    for n, pos in enumerate([3, 4, 6, 7, 9, 9]): add(pos, XW[n])
            else:
                mf = a
                if j < 63: add(1, wv)
                if j == 0:
                    add(0, h0[2]); add(2, h0[3]); add(3, SS(h0[4]))
                    d = kv_dma(1)
                    ex[0].insert(0, SS(d[0]))
                    add(1, d[1]); add(3, d[2]); add(4, d[3]); add(5, d[4])
                    for o in d[5:8]: add(5, SS(o))
                if j == 1:
                    d = kv_dma(2) if merged else g.w_dma(1, 1)
                    add(0, SS(d[0])); add(0, SS(lambda: p.wait(vm="yw0")))
                    wr = g.w_reads(0, 0)
                    add(0, wr[0]); add(1, wr[1]); add(2, wr[2]); add(4, wr[3])
                    add(0, d[1]); add(2, d[2]); add(3, d[3]); add(4, d[4])
                    if merged:
                        for o in d[5:8]: add(5, SS(o))
                    else:
                        add(5, SS(d[5])); add(5, SS(lambda: p("s_xor_b32 s41, s41, 0x2000")))
                if j == 63: p.wait(lg="v63")
                endgame(j, "B", add, ex)
            if i == 3 and c < 15:
                va = [("v_mov_b32 v4, v5", 4)] + va
            fill(p, mf, va, ex)
            if j == 1 and not merged:
                run_ops(g.h_loads(2))
            if j == 2 and not merged:
                run_ops(kv_dma(2))
            if i == 3 and c < 15:
                p("s_add_u32 s38, s38, 0x4000")
                p("s_and_b32 s38, s38, 0xffff")
                if inloop: p("s_cmp_lg_u32 s42, 0")
                p("v_add_u32 v5, s38, v1")
                if inloop: p("s_cbranch_scc1 L_k2_loop")
    marks.append(p.mark())
    body = unify([p.ins[marks[i]:marks[i+1]] for i in range(1, 14)])
    stamp(p, 4)
    p("s_mov_b32 s71, 0")
    for t, _ in pv(1, 63): p(t)
    p.label("L_k2_out")
    def norm(blk):
        T = S_[blk]
        p(f"v_accvgpr_read_b32 v{6+blk}, a{L_[blk]}")
        for i in range(16):
            p(f"v_accvgpr_read_b32 v{T+i}, a{O_[blk]+i}")
            if i == 0: p(f"v_rcp_f32 v8, v{6+blk}")
        for i in range(16):
            p(f"v_mul_f32 v{T+i}, v{T+i}, v8")
        for s_ in range(2):
            P = P_[blk] + 4 * s_
            p(f"v_cvt_pk_bf16_f32 v{P}, v{T+4*s_}, v{T+4*s_+1}")
            p(f"v_cvt_pk_bf16_f32 v{P+1}, v{T+4*s_+2}, v{T+4*s_+3}")
            p(f"v_cvt_pk_bf16_f32 v{P+2}, v{T+4*s_+8}, v{T+4*s_+9}")
            p(f"v_cvt_pk_bf16_f32 v{P+3}, v{T+4*s_+10}, v{T+4*s_+11}")
    def ostore(blk):
        for s_ in range(2):
            P = P_[blk] + 4 * s_
            so = "0" if blk == 0 else "s50"
            p.vmem(f"buffer_store_dwordx4 v[{P}:{P+3}], v1, s[20:23], {so} offen offset:{1024*s_} sc1", "ost")
    norm(0)
    p(f"v_accvgpr_read_b32 v7, a{LB}")
    p(f"v_mov_b32 v10, {hex(f2u(2.0**30))}")
    p(f"v_mov_b32 v11, {hex(f2u(2.0**-20))}")
    p("v_min_f32 v9, v6, v7")
    p("v_cmp_nlt_f32 vcc, v6, v10")
    p("v_cmp_nlt_f32 s[6:7], v7, v10")
    p("v_cmp_ngt_f32 s[72:73], v9, v11")
    p("s_cmp_lg_u32 s71, 0")
    p("s_cbranch_scc1 L_k2_safe")
    p("s_or_b64 vcc, vcc, s[6:7]")
    p("s_or_b64 vcc, vcc, s[72:73]")
    p("s_cbranch_vccnz L_k2_fallback")
    p.label("L_k2_safe")
    ostore(0)
    norm(1)
    ostore(1)
    stamp(p, 5)
    p("s_lshl_b32 s68, s2, 7")
    p("s_lshl_b32 s3, s46, 2")
    p("s_add_u32 s3, s3, s45")
    p("s_lshl_b32 s3, s3, 16")
    p(f"s_add_u32 s3, s3, {hex(OF_OFF)}")
    srd(p, 28, 4, "s3", 65536)
    p(f"v_and_b32 v14, 0xfff, v{g.vrd}")
    p(f"v_and_b32 v15, 0xfff, v{g.vrd+1}")
    p("s_movk_i32 s36, 0xff")
    p("s_and_b32 s38, s47, 7" if ROT else "s_mov_b32 s38, 0")
    DEP = 12; ACC = 16; WF = 48; OB = 104; Y = 224
    SO = [40, 41, 42, 43]; SW = [52, 53, 54, 55]
    def ready_from(vreg):
        p(f"v_cmp_eq_u32 vcc, 3, v{vreg}")
        p("s_nop 1")
        p("s_lshr_b32 s3, vcc_lo, 16")
        p("s_and_b32 s3, s3, vcc_lo")
        p("s_lshr_b32 s37, s3, 8")
        p("s_and_b32 s37, s37, s3")
        p("s_and_b32 s37, s37, s36")
    npick = [0]
    def pick(i, may_block):
        n = npick[0]; npick[0] += 1
        if not DYN:
            p(f"s_lshl_b32 s{SO[i%4]}, s38, 13")
            p(f"s_lshl_b32 s{SW[i%4]}, s38, 14")
            p("s_cmp_ge_u32 s38, 2")
            p("s_cselect_b32 s3, 0x8000, 0")
            p(f"s_add_u32 s{SW[i%4]}, s{SW[i%4]}, s3")
            p("s_add_u32 s38, s38, 1")
            p("s_and_b32 s38, s38, 7")
            return
        if may_block:
            p("s_cmp_lg_u32 s37, 0")
            p(f"s_cbranch_scc1 L_p3_pk{n}")
            p("s_mov_b32 s70, 0x40000")
            p.label(f"L_p3_sp{n}")
            p("buffer_load_dword v13, v12, s[64:67], s69 offen sc1")
            p("s_waitcnt vmcnt(0)")
            ready_from(13)
            p(f"s_cbranch_scc1 L_p3_pk{n}")
            p("s_sub_u32 s70, s70, 1")
            p("s_cmp_lg_u32 s70, 0")
            p(f"s_cbranch_scc1 L_p3_sp{n}")
            p("s_mov_b32 s37, s36")
            p.label(f"L_p3_pk{n}")
        p("s_lshl_b32 s3, s37, 8")
        p("s_or_b32 s3, s3, s37")
        p("s_lshr_b32 s3, s3, s38")
        p("s_ff1_i32_b32 s3, s3")
        p("s_add_u32 s3, s3, s38")
        p("s_and_b32 s3, s3, 7")
        p(f"s_bitset0_b32 s36, s3")
        p(f"s_bitset0_b32 s37, s3")
        p(f"s_lshl_b32 s{SO[i%4]}, s3, 13")
        p(f"s_lshl_b32 s{SW[i%4]}, s3, 14")
        p("s_cmp_ge_u32 s3, 2")
        p("s_cselect_b32 s3, 0x8000, 0")
        p(f"s_add_u32 s{SW[i%4]}, s{SW[i%4]}, s3")
    def oload(k, track=True):
        i = k // 8
        if k % 8 == 4: p(f"s_add_u32 s{SO[i%4]}, s{SO[i%4]}, 0x1000")
        r = OB + 4 * (k % 32)
        t_ = f"buffer_load_dwordx4 a[{r}:{r+3}], v1, s[28:31], s{SO[i%4]} offen offset:{1024*(k%4)} sc1"
        if track: p.vmem(t_, f"o{k}")
        else: p(t_)
    def signal(tag):
        p("s_barrier")
        p("s_cmp_lg_u32 s45, 0")
        p(f"s_cbranch_scc1 L_p3_ns{tag}")
        p("v_mov_b32 v6, 3")
        p("v_mov_b32 v7, 0")
        p("s_mov_b64 exec, 1")
        p("buffer_store_dword v6, v7, s[64:67], s68 offen sc1")
        p("s_mov_b64 exec, -1")
        p.label(f"L_p3_ns{tag}")
    if DYN:
        p.wait(vm="poll1")
        ready_from(13)
        p("s_bcnt1_i32_b32 s39, s37")
        p("s_cmp_lt_u32 s39, 2")
        p("s_cbranch_scc1 L_p3_noearly")
        pick(0, False)
        for k in range(8): oload(k)
        pick(1, False)
        for k in range(8, DEP): oload(k)
        p.label("L_p3_noearly")
    for t_ in ["s_lshl_b32 s3, s46, 18", "s_lshl_b32 s6, s45, 16", "s_add_u32 s3, s3, s6", "s_lshl_b32 s6, s47, 7", "s_add_u32 s3, s3, s6", "s_sub_u32 s7, 0x10000, s6"]: p(t_)
    srd(p, 20, 10, "s3", "s7")
    srd(p, 24, 62, "s3", "s7")
    p("s_mul_i32 s6, s45, 4608")
    p("s_add_u32 s6, s6, 0x8000")
    for t_ in ["v_lshrrev_b32 v2, 3, v0", "v_and_b32 v4, 7, v0", "v_lshlrev_b32 v3, 4, v4", "v_lshl_add_u32 v3, v2, 11, v3",
               "v_and_b32 v10, 31, v0", "v_mul_u32_u24 v10, 144, v10", "v_lshrrev_b32 v11, 5, v0", "v_lshl_add_u32 v10, v11, 3, v10", "v_add_u32 v10, s6, v10",
               "v_mul_u32_u24 v11, 144, v2", "v_lshl_add_u32 v11, v4, 4, v11", "v_add_u32 v11, s6, v11"]: p(t_)
    for i in range(1, 4): p(f"s_mov_b32 s{60+i}, {hex(i*8*2048)}")
    if not DYN:
        for i in range(4):
            so = "0" if i == 0 else f"s{60+i}"
            p.vmem(f"buffer_load_dwordx4 v[{96+4*i}:{96+4*i+3}], v3, s[20:23], {so} offen", "x")
    G = 128
    for i in range(32): p(f"v_accvgpr_read_b32 v{Y+i}, a{72+i}")
    for s_ in range(3):
        for i in range(0, 32, 2): p(f"v_pk_add_f32 v[{Y+i}:{Y+i+1}], v[{Y+i}:{Y+i+1}], v[{XT+32*s_+i}:{XT+32*s_+i+1}]")
    for i in range(0, 32, 2): p(f"v_pk_mul_f32 v[{G+i}:{G+i+1}], v[{Y+i}:{Y+i+1}], s[58:59]")
    for i in range(32): p(f"v_exp_f32 v{G+i}, v{G+i}")
    if not DYN:
        p.wait(vm="ost")
        signal("a")
        stamp(p, 7)
    for i in range(0, 32, 2): p(f"v_pk_add_f32 v[{G+i}:{G+i+1}], v[{G+i}:{G+i+1}], 1.0 op_sel_hi:[1,0]")
    for i in range(32): p(f"v_rcp_f32 v{G+i}, v{G+i}")
    for i in range(0, 32, 2): p(f"v_pk_mul_f32 v[{G+i}:{G+i+1}], v[{G+i}:{G+i+1}], v[{Y+i}:{Y+i+1}]")
    stamp(p, 8)
    if DYN:
        p("s_cmp_ge_u32 s39, 2")
        p("s_cbranch_scc1 L_p3_w12")
        p("s_waitcnt vmcnt(0)")
        p.label("L_p3_w12")
        p.wait(vm="ost")
        signal("a")
        p("s_cmp_ge_u32 s39, 2")
        p("s_cbranch_scc1 L_p3_go")
        pick(0, True)
        for k in range(8): oload(k, False)
        pick(1, True)
        for k in range(8, DEP): oload(k, False)
        p.label("L_p3_go")
        stamp(p, 7)
    else:
        pick(0, False); pick(1, False)
        XR = 96; XD = 80; XU = 160
        p.wait(vm="x")
        for i in range(4): p.lds(f"ds_write_b128 v11, v[{XR+4*i}:{XR+4*i+3}] offset:{i*8*144}", "xs")
        p.wait(lg="xs")
        for q in range(8): p.lds(f"ds_read_b64 v[{XD+2*q}:{XD+2*q+1}], v10 offset:{64*(q>>2) + 16*(q&3)}", "xd")
        p("s_cmp_lg_u32 s45, 0")
        p("s_cbranch_scc1 L_p3_polled")
        p("s_mov_b32 s70, 0x40000")
        p.label("L_p3_poll")
        p("buffer_load_dword v13, v12, s[64:67], s69 offen sc1")
        p("s_sub_u32 s70, s70, 1")
        p("s_waitcnt vmcnt(0)")
        p("v_cmp_ne_u32 vcc, 3, v13")
        p("s_cmp_eq_u32 s70, 0")
        p("s_cbranch_scc1 L_p3_polled")
        p("s_nop 2")
        p("s_cbranch_vccnz L_p3_poll")
        p.label("L_p3_polled")
        p("s_barrier")
        stamp(p, 9)
        for k in range(DEP): oload(k)
    def wreads(k):
        i = k // 8; f = (k % 8) // 2; s_ = k & 1
        ops = []
        if k % 8 == 0:
            ops.append(lambda: (p(f"v_add_u32 v{g.vrd}, s{SW[i%4]}, v14"), p(f"v_add_u32 v{g.vrd+1}, s{SW[i%4]}, v15")))
        else:
            ops.append(lambda: None)
        for nb in range(2):
            for e in range(2):
                b_ = WF + 8 * (k % 4) + 4 * nb + 2 * e
                ops.append(lambda b_=b_, nb=nb, e=e: p.lds(f"ds_read_b64_tr_b16 v[{b_}:{b_+1}], v{g.vrd+nb} offset:{f*4096 + e*2048 + s_*1024}", f"w{k}"))
        return ops
    for k in range(2):
        for o in wreads(k): o()
    fl = []
    def F(t_, c=4): fl.append((lambda t_=t_: p(t_), c))
    XR = 96; XD = 80; XU = 160
    nx = len(fl)
    for k in range(16):
        F(f"v_lshlrev_b32 v{XU+2*k}, 16, v{XD+k}")
        F(f"v_and_b32 v{XU+2*k+1}, s51, v{XD+k}")
    if not DYN:
        p.wait(lg="xd")
        for fn, c in fl: fn()
        fl = []
    tot = sum(c for _, c in fl)
    rate = tot / (2 * 12)
    credit = 0.0; fi = 0
    for k in range(64):
        p.wait(vm=f"o{k}", lg=f"w{k}")
        kn = k + DEP
        wr = wreads(k + 2) if k + 2 < 64 else [lambda: None] * 5
        for nb in range(2):
            b_ = WF + 8 * (k % 4) + 4 * nb
            d = r16(ACC + 16 * nb)
            r = OB + 4 * (k % 32)
            p(f"v_mfma_f32_32x32x16_bf16 {d}, v[{b_}:{b_+3}], a[{r}:{r+3}], {'0' if k == 0 else d}")
            if nb == 0 and kn < 64:
                if kn % 8 == 0:
                    i = kn // 8
                    if DYN and i in (5, 7):
                        ready_from(13)
                    pick(i, DYN)
                    if DYN and i in (3, 5):
                        p.vmem("buffer_load_dword v13, v12, s[64:67], s69 offen sc1", "rp")
                oload(kn)
            if nb == 0: wr[0]()
            wr[1 + 2 * nb](); wr[2 + 2 * nb]()
            if DYN and nb == 1 and 2 <= k < 10 and k % 2 == 0:
                i = (k - 2) // 2
                so = "0" if i == 0 else f"s{60+i}"
                p.vmem(f"buffer_load_dwordx4 v[{XR+4*i}:{XR+4*i+3}], v3, s[20:23], {so} offen", "x")
            if DYN and nb == 1 and 30 <= k < 34:
                i = k - 30
                if i == 0: p.wait(vm="x")
                p.lds(f"ds_write_b128 v11, v[{XR+4*i}:{XR+4*i+3}] offset:{i*8*144}", "xs")
            if DYN and nb == 1 and 38 <= k < 46:
                q = k - 38
                if q == 0: p.wait(lg="xs")
                p.lds(f"ds_read_b64 v[{XD+2*q}:{XD+2*q+1}], v10 offset:{64*(q>>2) + 16*(q&3)}", "xd")
            if k >= 50: credit += rate
            while fi < len(fl) and credit >= fl[fi][1] / 2:
                if fi == nx:
                    assert k >= 48, k
                    p.wait(lg="xd")
                fl[fi][0](); credit -= fl[fi][1]; fi += 1
    while fi < len(fl): fl[fi][0](); fi += 1
    stamp(p, 10)
    p("s_nop 11")
    T = 192
    for nb in range(2):
        Sx = ACC + 16 * nb
        if nb == 1: p("s_nop 0")
        for i in range(0, 16, 2):
            p(f"v_pk_fma_f32 v[{Sx+i}:{Sx+i+1}], v[{Sx+i}:{Sx+i+1}], v[{G+16*nb+i}:{G+16*nb+i+1}], v[{XU+16*nb+i}:{XU+16*nb+i+1}]")
        for j in range(4):
            r = T + 8 * nb + 2 * j
            p(f"v_cvt_pk_bf16_f32 v{r}, v{Sx+4*j}, v{Sx+4*j+1}")
            p(f"v_cvt_pk_bf16_f32 v{r+1}, v{Sx+4*j+2}, v{Sx+4*j+3}")
            p.lds(f"ds_write_b64 v10, v[{r}:{r+1}] offset:{64*nb + 16*j}", "tw")
    p.wait(lg="tw")
    TR = 96
    for i in range(4):
        p.lds(f"ds_read_b128 v[{TR+4*i}:{TR+4*i+3}], v11 offset:{i*8*144}", f"tr{i}")
    for i in range(4):
        p.wait(lg=f"tr{i}")
        so = "0" if i == 0 else f"s{60+i}"
        p.vmem(f"buffer_store_dwordx4 v[{TR+4*i}:{TR+4*i+3}], v3, s[24:27], {so} offen", "st")
    if STAMP: p("s_waitcnt vmcnt(0)")
    stamp(p, 6)
    if STAMP:
        p("s_memrealtime s[78:79]")
        p("s_waitcnt lgkmcnt(0)")
    stamp_out(p, 11, 2, 4, "s45", extra=[78])
    p("s_endpgm")
    fb = Prog()
    fb.label("L_k2_fallback")
    fb("s_waitcnt vmcnt(0) lgkmcnt(0)")
    fb("v_mov_b32 v10, 0xff800000")
    fb("v_mov_b32 v11, 0xff800000")
    fb("s_mov_b32 s36, 0")
    fb.label("L_k2_fb1")
    for f in range(2):
        fb(f"buffer_load_dwordx4 {Kf(0,f)}, v1, s[12:15], s36 offen offset:{1024*f}{sc}")
    fb("s_waitcnt vmcnt(0)")
    for blk in range(2):
        for t, _ in qk(blk, 0, "0"): fb(t)
    fb("s_nop 15")
    for blk in range(2):
        S = S_[blk]
        for i in range(0, 16, 2):
            fb(f"v_max3_f32 v{10+blk}, v{10+blk}, v{S+i}, v{S+i+1}")
    fb("s_add_u32 s36, s36, 0x1000")
    fb("s_cmp_lt_u32 s36, 0x40000")
    fb("s_cbranch_scc1 L_k2_fb1")
    for blk in range(2):
        fb(f"v_mov_b32 v7, v{10+blk}")
        fb("s_nop 1")
        fb(f"v_permlane32_swap_b32 v{10+blk}, v7")
        fb("s_nop 1")
        fb(f"v_max_f32 v6, v{10+blk}, v7")
        for i in range(16):
            fb(f"v_sub_f32 v{C_[blk]+i}, 0, v6")
    for i in range(0, 40): fb(f"v_accvgpr_write_b32 a{i}, 0")
    fb("s_mov_b32 s36, 0")
    fb.label("L_k2_fb2")
    for f in range(2):
        fb(f"buffer_load_dwordx4 {Kf(0,f)}, v1, s[12:15], s36 offen offset:{1024*f}{sc}")
        fb(f"buffer_load_dwordx4 {Vf(0,f)}, v1, s[12:15], s36 offen offset:{2048+1024*f}{sc}")
    fb("s_waitcnt vmcnt(0)")
    for blk in range(2):
        for t, _ in qk(blk, 0): fb(t)
    fb("s_nop 15")
    for blk in range(2):
        for t, _ in softmax_valu(blk): fb(t)
    fb("s_nop 1")
    for blk in range(2):
        for t, _ in pv(blk, 0): fb(t)
    fb("s_add_u32 s36, s36, 0x1000")
    fb("s_cmp_lt_u32 s36, 0x40000")
    fb("s_nop 15")
    fb("s_cbranch_scc1 L_k2_fb2")
    fb("s_mov_b32 s71, 1")
    fb("s_branch L_k2_out")
    final = Prog()
    final.ins = p.ins[:marks[1]] + [Ins(".p2align 6", "dir"), Ins("L_k2_loop:", "label")] + body + p.ins[marks[14]:] + fb.ins
    final.label("L_k2_end")
    final("s_endpgm")
    lins = [[x.text for x in p.ins], [x.text for x in fb.ins] + [x.text for x in fb.ins]]
    launch = f"; @launch kernel={name} grid=(256,1,1) block=(256,1,1) lds=163840"
    return dict(name=name, prog=final, launch=launch, kd=kd(name, 512, 102, 256), lins=lins)
```

```python
from common import *
from gstream import *
from k2_attn import SA, SB, CA, CB, PA, PB, QR, SEL, OA, OB, LA, LB, KB, VB, S_, C_, P_, O_, L_, Kf, Vf, Qf, r16, qk, pv, softmax_valu, f2u
from k3_final import tile_map, silu_pack
import math

HSC = os.environ.get("HSC", "sc1")
def gen_k23(name="attn_kernel", merged=False):
    p = Prog()
    sc = (" " + HSC) if merged else ""
    FLC = 2048 if merged else 0
    SS = lambda fn: (fn, "s")
    def run_ops(ops):
        for o in ops:
            o()
            if "m0," in p.ins[-1].text: p("s_nop 0")
    if not merged:
        p("s_cmp_ge_u32 s2, 256")
        p("s_cbranch_scc1 L_k2_end")
        stamp(p, 0); stamp_rt(p, 1)
        p(f"s_load_dwordx2 s[4:5], s[0:1], {KA_WS}")
    else:
        p.label("L_p2")
    p(f"s_load_dwordx4 s[60:63], s[0:1], {KA_WD}")
    p(f"s_load_dwordx2 s[8:9], s[0:1], {KA_WO}")
    p(f"s_load_dwordx2 s[10:11], s[0:1], {KA_X}")
    if not merged:
        code_prefetch(p, "k2", "L_k2_fallback", 0, 12, 76)
        p("v_lshrrev_b32 v2, 6, v0")
        p("v_and_b32 v0, 63, v0")
        p("v_readfirstlane_b32 s45, v2")
    p("v_lshlrev_b32 v1, 4, v0")
    p("s_and_b32 s44, s2, 7")
    p("s_lshl_b32 s44, s44, 2")
    p("s_lshr_b32 s43, s2, 3")
    p("s_lshr_b32 s3, s43, 3")
    p("s_add_u32 s44, s44, s3")
    p("s_and_b32 s43, s43, 7")
    p("s_lshl_b32 s36, s45, 12")
    p("s_mov_b32 s37, s36")
    p("s_lshl_b32 s52, s44, 18")
    p(f"s_add_u32 s52, s52, {hex(KV_OFF)}")
    p("s_lshl_b32 s3, s44, 17")
    p("s_lshl_b32 s6, s43, 14")
    p("s_add_u32 s3, s3, s6")
    p("s_add_u32 s3, s3, s36")
    p(f"s_add_u32 s53, s3, {hex(QF_OFF)}")
    p("s_waitcnt lgkmcnt(0)")
    srd(p, 16, 4, "s53", 4096)
    srd(p, 12, 4, "s52", 262144)
    def kv_dma(c):
        ops = [lambda: p("s_mov_b32 m0, s37")]
        ops += [lambda i=i: p.vmem(f"buffer_load_dwordx4 v1, s[12:15], s36 offen offset:{1024*i}{sc} lds", f"kv{c}") for i in range(4)]
        ops.append(lambda: p("s_add_u32 s36, s36, 0x4000"))
        ops.append(lambda: p("s_add_u32 s37, s37, 0x4000"))
        ops.append(lambda: p("s_and_b32 s37, s37, 0xffff"))
        return ops
    def first_loads():
        for i in range(4):
            p.vmem(f"buffer_load_dwordx4 v[{QR+4*i}:{QR+4*i+3}], v1, s[16:19], 0 offen offset:{1024*i}{sc}", "q")
        for f in range(2):
            p.vmem(f"buffer_load_dwordx4 {Kf(0,f)}, v1, s[12:15], 0 offen offset:{1024*f}{sc}", "q")
        run_ops(kv_dma(0))
    if not merged: first_loads()
    tile_map(p, "s46", "s47")
    p("s_lshl_b32 s41, s45, 14")
    p("s_add_u32 s41, s41, 0x10000")
    g = GStream(p, acc=72, wfr=200, hbase=128, RH=4, vdma=116, vrd=120, vlin=1, s_h="s39", s_w="s40", srd_h=24, srd_w=28, s_m0="s41", pfx="y")
    g.vrot = 122
    g.hsc = sc
    g.setup_addrs(0, "s41", 6)
    for a in range(4):
        p(f"s_add_u32 s3, s45, {a}")
        p("s_and_b32 s3, s3, 3")
        p("s_lshl_b32 s3, s3, 10")
        p(f"v_add_u32 v{122+a}, s3, v1")
    p("s_mul_i32 s3, s46, 917504")
    p(f"s_mul_i32 s6, s45, {56*4096}")
    p("s_add_u32 s3, s3, s6")
    p(f"s_add_u32 s3, s3, {hex(HF_OFF)}")
    srd(p, 24, 4, "s3", 56 * 4096)
    p(f"s_mul_i32 s3, s45, {896*2048}")
    p("s_lshl_b32 s6, s47, 7")
    p("s_add_u32 s3, s3, s6")
    p(f"s_sub_u32 s7, {896*2048}, s6")
    srd(p, 28, 60, "s3", "s7")
    p("s_mov_b32 s39, 0"); p("s_mov_b32 s40, 0")
    p("s_lshl_b32 s3, s43, 19")
    p("s_lshl_b32 s6, s45, 17")
    p("s_add_u32 s3, s3, s6")
    p("s_lshl_b32 s6, s44, 11")
    p("s_add_u32 s3, s3, s6")
    p(f"s_add_u32 s3, s3, {hex(OF_OFF)}")
    srd(p, 20, 4, "s3", 65536 + 2048)
    p("s_mov_b32 s50, 0x10000")
    p("v_lshrrev_b32 v2, 2, v0")
    p("v_lshrrev_b32 v3, 4, v0")
    p("v_xor_b32 v2, v2, v3")
    p("v_and_b32 v2, 1, v2")
    p("v_and_b32 v3, 3, v0")
    p("v_or_b32 v2, v2, v3")
    p("v_cmp_eq_u32 vcc, 0, v2")
    p("v_mov_b32 v3, 0x3f803f80")
    p("s_nop 0")
    p(f"v_cndmask_b32 v{SEL}, 0, v3, vcc")
    for i in range(1, 4): p(f"v_mov_b32 v{SEL+i}, v{SEL}")
    for i in range(0, 40): p(f"v_accvgpr_write_b32 a{i}, 0")
    p("v_mov_b32 v4, v1")
    p("v_add_u32 v5, 0x4000, v1")
    p("s_mov_b32 s38, 0x4000")
    p("s_mov_b32 s51, 0xffff0000")
    p(f"s_mov_b32 s58, {hex(f2u(-math.log2(math.e)))}")
    p("s_mov_b32 s59, s58")
    p("s_lshl_b32 s6, s47, 7")
    p(f"s_sub_u32 s7, {D*D*2}, s6")
    srd(p, 32, 8, "s6", "s7")
    p("s_lshl_b32 s48, s45, 16")
    p("s_lshl_b32 s49, s45, 12")
    if merged:
        srd(p, 64, 4, FL_OFF, 32768)
        p("s_lshl_b32 s68, s2, 7")
        p("s_lshr_b32 s3, s44, 1")
        p("v_mov_b32 v8, s3")
        p("v_mov_b32 v9, s43")
        p("s_lshr_b32 s6, s44, 3")
        p("s_add_u32 s6, s6, 28")
        p("v_mov_b32 v10, s6")
        p("v_subrev_u32 v11, 36, v0")
        p("v_cmp_gt_u32 vcc, 44, v0")
        p("s_add_u32 s3, s3, 16")
        p("s_lshr_b32 s6, s46, 1")
        p("v_cndmask_b32 v8, v8, v10, vcc")
        p("v_cndmask_b32 v9, v9, v11, vcc")
        p("v_mov_b32 v10, s3")
        p("v_subrev_u32 v11, 28, v0")
        p("v_cmp_gt_u32 vcc, 36, v0")
        p("s_nop 1")
        p("v_cndmask_b32 v8, v8, v10, vcc")
        p("v_cndmask_b32 v9, v9, v11, vcc")
        p("v_mov_b32 v11, s6")
        p("v_cmp_gt_u32 vcc, 28, v0")
        p("s_nop 1")
        p("v_cndmask_b32 v8, v8, v0, vcc")
        p("v_cndmask_b32 v9, v9, v11, vcc")
        p("v_mul_u32_u24 v10, 43, v8")
        p("v_lshrrev_b32 v10, 7, v10")
        p("v_mul_u32_u24 v11, 3, v10")
        p("v_sub_u32 v11, v8, v11")
        p("v_lshl_add_u32 v10, v11, 6, v10")
        p("v_and_b32 v11, 3, v8")
        p("v_lshlrev_b32 v11, 1, v11")
        p("v_lshrrev_b32 v12, 2, v9")
        p("v_bfe_u32 v13, v8, 2, 1")
        p("v_xor_b32 v12, v12, v13")
        p("v_xor_b32 v12, 1, v12")
        p("v_add3_u32 v11, v11, v12, 64")
        p("v_add_u32 v11, 128, v11")
        p("v_cmp_gt_u32 vcc, 24, v8")
        p("s_nop 1")
        p("v_cndmask_b32 v10, v11, v10, vcc")
        p("v_lshl_add_u32 v10, v9, 3, v10")
        p("v_lshlrev_b32 v12, 7, v10")
        p("s_waitcnt vmcnt(0)")
        if os.environ.get("ST2") != "1": stamp(p, 6)
        p("s_barrier")
        p("s_cmp_lg_u32 s45, 0")
        p("s_cbranch_scc1 L_p2_nosig")
        p("v_mov_b32 v6, 2")
        p("v_mov_b32 v7, 0")
        p("s_mov_b64 exec, 1")
        p("buffer_store_dword v6, v7, s[64:67], s68 offen sc1")
        p("s_mov_b64 exec, -1")
        p.label("L_p2_nosig")
        run_ops(g.w_dma(0, 0))
        run_ops(g.w_dma(1, 1))
        p("s_xor_b32 s41, s41, 0x2000")
        if STAMP:
            p("s_memrealtime s[100:101]")
            stamp_out(p, 11, 1, 4, "s45", vt=6)
        p("s_cmp_lg_u32 s45, 0")
        p("s_cbranch_scc1 L_p2_polled")
        p("s_mov_b32 s70, 0x40000")
        p.label("L_p2_poll")
        p("buffer_load_dword v8, v12, s[64:67], 0 offen sc1")
        p("s_sub_u32 s70, s70, 1")
        p("s_waitcnt vmcnt(0)")
        p("v_cmp_gt_u32 vcc, 2, v8")
        p("s_cmp_eq_u32 s70, 0")
        p("s_cbranch_scc1 L_p2_polled")
        p("s_nop 2")
        p("s_cbranch_vccnz L_p2_poll")
        p.label("L_p2_polled")
        p("s_barrier")
        stamp(p, 2)
        first_loads()
        p("v_and_b32 v12, 7, v0")
        p("v_bfe_u32 v13, v0, 3, 2")
        p("v_lshl_add_u32 v12, v13, 6, v12")
        p("v_lshlrev_b32 v12, 7, v12")
        h0 = g.h_loads(0)
        run_ops(h0)
    p.wait(vm="q")
    if not merged: stamp(p, 2)
    for blk in range(2):
        for t, _ in qk(blk, 0, "0"): p(t)
    if not merged: run_ops(g.w_dma(0, 0))
    else: p("s_nop 7")
    p("s_nop 7")
    for blk in range(2):
        S = S_[blk]
        p(f"v_max3_f32 v6, v{S}, v{S+1}, v{S+2}")
        for i in range(3, 15, 2):
            p(f"v_max3_f32 v6, v6, v{S+i}, v{S+i+1}")
        p(f"v_max_f32 v6, v6, v{S+15}")
        p("v_mov_b32 v7, v6")
        p("s_nop 1")
        p("v_permlane32_swap_b32 v6, v7")
        p("s_nop 1")
        p("v_max_f32 v6, v6, v7")
        for i in range(16):
            p(f"v_sub_f32 v{C_[blk]+i}, 0, v6")
        if blk == 0:
            for i in range(16):
                p(f"v_sub_f32 v{S+i}, v{S+i}, v6")
    p("s_mov_b32 s42, 13")
    p.wait(vm="kv0")
    p("s_barrier")
    stamp(p, 3)
    NC = 16; NKS = 56; KOFF = 2
    DYN = os.environ.get("P3DYN", "0") == "1"
    RELAX = os.environ.get("RELAX", "1") == "1" and not DYN
    ROT = os.environ.get("P3ROT", "0") == "1"
    def wo_dma(i):
        off = i * 16384 if i < 2 else 0x10000 + (i - 2) * 16384
        ops = [lambda: p(f"s_add_u32 m0, s49, {hex(off)}")]
        ops += [lambda n=n: p.vmem(f"buffer_load_dwordx4 v{g.vdma+n}, s[32:35], s48 offen offset:{1024*n} lds", f"wo{i}") for n in range(4)]
        ops.append(lambda: p("s_add_u32 s48, s48, 0x40000"))
        return ops
    XW = [lambda a=a, q=q: p.lds(f"ds_write_b128 v{5+a}, a[{72+32*a+4*q}:{72+32*a+4*q+3}] offset:{1024*q}", "xw") for a in (1, 2, 3) for q in range(8)]
    XT = 128
    XR_ = [lambda s=s, q=q: p.lds(f"ds_read_b128 v[{XT+32*s+4*q}:{XT+32*s+4*q+3}], v9 offset:{s*8192 + 1024*q}", "xr") for s in range(3) for q in range(8)]
    def endgame(j, ph, add, ex):
        def dma(i, pos):
            d = wo_dma(i)
            ex.setdefault(pos[0], []).insert(0, SS(d[0]))
            if len(ex[pos[0]]) == 1: ex[pos[0]].append(SS(lambda: p("s_nop 0")))
            for n in range(4): add(pos[n], d[1 + n])
            add(pos[3], SS(d[5]))
        key = (j, ph)
        if RELAX:
            xw = {(58, "A"): (6, 10), (58, "B"): (10, 14), (59, "A"): (14, 18), (59, "B"): (18, 22), (60, "A"): (22, 24)}
            if key in xw:
                a0, a1 = xw[key]
                pos = {4: [0, 1, 2, 4] if ph == "B" else [0, 1, 3, 4], 2: [0, 1]}[a1 - a0]
                for n in range(a1 - a0): add(pos[n], XW[a0 + n])
            if key == (60, "A"):
                ex.setdefault(4, []).insert(0, SS(lambda: p.wait(lg="xw")))
                ex.setdefault(5, []).append(SS(lambda: p("s_barrier")))
            xr = {(60, "B"): (0, 6), (61, "A"): (6, 10), (61, "B"): (10, 16), (62, "A"): (16, 20), (62, "B"): (20, 24)}
            if key in xr:
                a0, a1 = xr[key]
                pos = {6: [0, 1, 2, 3, 4, 5], 4: [0, 1, 3, 5] if ph == "A" else [0, 1, 2, 3]}[a1 - a0]
                for n in range(a1 - a0): add(pos[n], XR_[a0 + n])
            if key == (63, "A"):
                ex.setdefault(0, []).insert(0, SS(lambda: p.wait(lg="xr")))
                ex.setdefault(1, []).insert(0, SS(lambda: p("s_barrier")))
            if key == (61, "B"): dma(0, [0, 2, 4, 5])
            if key == (62, "B"): dma(1, [0, 2, 4, 5])
        else:
            xw = {(58, "A"): (6, 11), (58, "B"): (11, 17), (59, "A"): (17, 22), (59, "B"): (22, 24)}
            if key in xw:
                a0, a1 = xw[key]
                pos = {5: [0, 1, 2, 3, 4], 6: [0, 1, 2, 3, 4, 5], 2: [0, 1]}[a1 - a0]
                for n in range(a1 - a0): add(pos[n], XW[a0 + n])
            if key == (58, "B"): dma(0, [0, 2, 4, 5])
            if key == (59, "B"):
                dma(1, [0, 2, 4, 5])
                ex.setdefault(4, []).insert(0, SS(lambda: p.wait(lg="xw")))
                ex.setdefault(5, []).insert(0, SS(lambda: p("s_barrier")))
            if key == (60, "A"):
                for n, pos in enumerate([0, 0, 1, 1, 2, 2, 3, 3, 4, 4, 5, 5]): add(pos, XR_[n])
            if key == (60, "B"):
                for n, pos in enumerate([0, 0, 0, 1, 1, 2, 2, 2, 3, 4, 4, 4]): add(pos, XR_[12 + n])
            if key == (61, "A"):
                ex.setdefault(0, []).insert(0, SS(lambda: p.wait(lg="xr")))
                ex.setdefault(1, []).insert(0, SS(lambda: p("s_barrier")))
                dma(2, [2, 3, 4, 5])
            if key == (61, "B"): dma(3, [0, 2, 4, 5])
            if key == (62, "A"): dma(4, [0, 2, 3, 5])
            if key == (62, "B"): dma(5, [0, 2, 4, 5])
            if key == (63, "A"): dma(6, [0, 1, 3, 5])
        if key == (62, "B"):
            for t_ in (f"s_add_u32 s64, s4, {hex(FL_OFF)}", "s_addc_u32 s65, s5, 0"): add(3, SS(lambda t_=t_: p(t_)))
        if key == (63, "A"):
            for t_ in ("s_and_b32 s65, s65, 0xffff", "s_mov_b32 s66, 0x8000"): add(2, SS(lambda t_=t_: p(t_)))
            for t_ in ("s_mov_b32 s67, 0x20000", "s_lshr_b32 s69, s46, 1"): add(4, SS(lambda t_=t_: p(t_)))
        if key == (63, "B"):
            dma(2 if RELAX else 7, [0, 1, 2, 2])
            add(1, SS(lambda: p("s_lshl_b32 s69, s69, 10")))
            if DYN: add(3, lambda: p.vmem("buffer_load_dword v13, v12, s[64:67], s69 offen sc1", "poll1"))
    marks = []
    for c in range(NC):
        marks.append(p.mark())
        inloop = 1 <= c <= 13
        for i in range(4):
            j = 4 * c + i
            k = j - KOFF
            if os.environ.get("ST3") == "1" and j in (56, 58, 60, 62): stamp(p, {56: 5, 58: 7, 60: 8, 62: 9}[j])
            if os.environ.get("ST3") == "1" and j == 4 - 1: pass
            gm = [(t, 32) for t in g.mfmas(k, first=(k == 0))] if 0 <= k < NKS else None
            lim = (lambda x, n: True) if inloop else (lambda x, n: x < n)
            a = qk(1, j) + (pv(1, j - 1) if j > 0 else [])
            kaddr, koff = ("v4", (i + 1) * 4096) if i < 3 else ("v5", 0)
            rdV = [lambda f=f: p.lds(f"ds_read_b128 {Vf(j,f)}, v4 offset:{i*4096 + 2048 + 1024*f}", f"v{j}") for f in range(2)]
            rdK = [lambda f=f: p.lds(f"ds_read_b128 {Kf(j+1,f)}, {kaddr} offset:{koff + 1024*f}", f"k{j+1}") for f in range(2)]
            if j == 63: rdK = [None, None]
            va = softmax_valu(0)
            wK = SS(lambda: p.wait(lg=[f"k{j+1}"]))
            ex = {}
            def add(pos, e):
                if e is not None: ex.setdefault(pos, []).append(e)
            if gm and (k + 1) % 4 == 0 and k + 1 < NKS:
                va = [(f"v_xor_b32 v{g.vrd}, 0x2000, v{g.vrd}", 4), (f"v_xor_b32 v{g.vrd+1}, 0x2000, v{g.vrd+1}", 4)] + va
            hl = None
            if gm:
                mf = [a[0], gm[0], a[1], gm[1], a[2], a[3], gm[2], a[4], a[5], gm[3]]
                add(0, SS(lambda: p.wait(vm=f"yh{k}", lg=f"yf{k}n0", force=True))); add(0, rdK[0])
                add(2, SS(lambda: p.wait(lg=f"yf{k}n1", force=True))); add(2, rdK[1])
                add(4, rdV[0]); add(7, rdV[1]); add(9, wK)
                if j == 57:
                    add(3, SS(lambda: p.wait(vm=["yw28", "kv16", "kv15"], force=True)))
                    add(5, SS(lambda: p("s_barrier")))
                if lim(k + 3, NKS):
                    hl = g.h_loads(k + 3)
                    for n, pos in enumerate([1, 3, 6, 9]): add(pos, hl[n])
            elif j == 0:
                mf = a
                add(0, rdK[0]); add(0, rdK[1]); add(1, rdV[0]); add(1, rdV[1])
                h0 = g.h_loads(1 if merged else 0)
                add(0, h0[0]); add(1, h0[1])
            else:
                mf = a
                add(0, rdK[0]); add(1, rdK[1]); add(2, rdV[0]); add(4, rdV[1])
                if j < 63: add(5, wK)
                if j == 1:
                    h1 = g.h_loads(2 if merged else 1)
                    add(0, h1[0]); add(2, h1[1]); add(3, h1[2]); add(4, h1[3]); add(5, SS(h1[4]))
                endgame(j, "A", add, ex)
            fill(p, mf, va, ex)
            if j == 0:
                p.wait(lg="k1")
            a = (qk(0, j + 1) if j < 63 else []) + pv(0, j)
            va = softmax_valu(1)
            wv = SS(lambda: p.wait(lg=[f"v{j}"]))
            ex = {}
            if gm:
                mf = [a[0], gm[4], a[1], gm[5], a[2], a[3], gm[6], a[4], a[5], gm[7]]
                add(3, wv)
                if hl: add(5, SS(hl[4]))
                d = None
                if k % 2 == 0 and lim(k // 2 + 2, NKS // 2):
                    fg = k // 2 + 2
                    d = g.w_dma(fg, fg & 1)
                    tail = [d[5]]
                    if fg & 1: tail.append(lambda: p("s_xor_b32 s41, s41, 0x2000"))
                if i == 3 and lim(c + 3, NC):
                    d = kv_dma(c + 3)
                    tail = d[5:8]
                if d: add(0, SS(d[0]))
                if k + 1 < NKS:
                    fg1 = (k + 1) // 2
                    wr = g.w_reads(k + 1, (fg1 & 1) * 4096)
                    if (k + 1) % 2 == 0:
                        add(0, SS(lambda: p.wait(vm=f"yw{fg1}", force=True)))
                    for n, pos in enumerate([0, 2, 4, 7]): add(pos, wr[n])
                if d:
                    for n, pos in enumerate([1, 3, 6, 9]): add(pos, d[1 + n])
                    for o in tail: add(9, SS(o))
                if i == 2:
                    ex.setdefault(6, []).insert(0, SS(lambda: p.wait(vm=f"kv{c+1}", force=True)))
                    ex.setdefault(7, []).insert(0, SS(lambda: p("s_barrier")))
                if i == 1 and inloop:
                    add(8, SS(lambda: p("s_sub_u32 s42, s42, 1")))
                if j == 56:
                    for a_ in (1, 2, 3):
                        add(2 * a_ - 1, SS(lambda a_=a_: p(f"s_add_u32 s{63+a_}, s45, {a_}")))
                        add(2 * a_ - 1, SS(lambda a_=a_: p(f"s_and_b32 s{63+a_}, s{63+a_}, 3")))
                        add(2 * a_, SS(lambda a_=a_: p(f"s_mul_i32 s{63+a_}, s{63+a_}, {3*8192}")))
                        add(2 * a_, SS(lambda a_=a_: p(f"s_add_u32 s{63+a_}, s{63+a_}, {hex(0x10000 + (a_-1)*8192)}")))
                    add(7, SS(lambda: p(f"s_mul_i32 s67, s45, {3*8192}")))
                    add(8, SS(lambda: p(f"s_add_u32 s67, s67, 0x10000")))
                    va = va + [(f"v_add_u32 v{5+a_}, s{63+a_}, v1", 4) for a_ in (1, 2, 3)] + [("v_add_u32 v9, s67, v1", 4)]
                if j == 57:
                    for n, pos in enumerate([3, 4, 6, 7, 9, 9]): add(pos, XW[n])
            else:
                mf = a
                if j < 63: add(1, wv)
                if j == 0:
                    add(0, h0[2]); add(2, h0[3]); add(3, SS(h0[4]))
                    d = kv_dma(1)
                    ex[0].insert(0, SS(d[0]))
                    add(1, d[1]); add(3, d[2]); add(4, d[3]); add(5, d[4])
                    for o in d[5:8]: add(5, SS(o))
                if j == 1:
                    d = kv_dma(2) if merged else g.w_dma(1, 1)
                    add(0, SS(d[0])); add(0, SS(lambda: p.wait(vm="yw0")))
                    wr = g.w_reads(0, 0)
                    add(0, wr[0]); add(1, wr[1]); add(2, wr[2]); add(4, wr[3])
                    add(0, d[1]); add(2, d[2]); add(3, d[3]); add(4, d[4])
                    if merged:
                        for o in d[5:8]: add(5, SS(o))
                    else:
                        add(5, SS(d[5])); add(5, SS(lambda: p("s_xor_b32 s41, s41, 0x2000")))
                if j == 63: p.wait(lg="v63")
                endgame(j, "B", add, ex)
            if i == 3 and c < 15:
                va = [("v_mov_b32 v4, v5", 4)] + va
            fill(p, mf, va, ex)
            if j == 1 and not merged:
                run_ops(g.h_loads(2))
            if j == 2 and not merged:
                run_ops(kv_dma(2))
            if i == 3 and c < 15:
                p("s_add_u32 s38, s38, 0x4000")
                p("s_and_b32 s38, s38, 0xffff")
                if inloop: p("s_cmp_lg_u32 s42, 0")
                p("v_add_u32 v5, s38, v1")
                if inloop: p("s_cbranch_scc1 L_k2_loop")
    marks.append(p.mark())
    body = unify([p.ins[marks[i]:marks[i+1]] for i in range(1, 14)])
    stamp(p, 4)
    p("s_mov_b32 s71, 0")
    for t, _ in pv(1, 63): p(t)
    p.label("L_k2_out")
    def norm(blk):
        T = S_[blk]
        p(f"v_accvgpr_read_b32 v{6+blk}, a{L_[blk]}")
        for i in range(16):
            p(f"v_accvgpr_read_b32 v{T+i}, a{O_[blk]+i}")
            if i == 0: p(f"v_rcp_f32 v8, v{6+blk}")
        for i in range(16):
            p(f"v_mul_f32 v{T+i}, v{T+i}, v8")
        for s_ in range(2):
            P = P_[blk] + 4 * s_
            p(f"v_cvt_pk_bf16_f32 v{P}, v{T+4*s_}, v{T+4*s_+1}")
            p(f"v_cvt_pk_bf16_f32 v{P+1}, v{T+4*s_+2}, v{T+4*s_+3}")
            p(f"v_cvt_pk_bf16_f32 v{P+2}, v{T+4*s_+8}, v{T+4*s_+9}")
            p(f"v_cvt_pk_bf16_f32 v{P+3}, v{T+4*s_+10}, v{T+4*s_+11}")
    def ostore(blk):
        for s_ in range(2):
            P = P_[blk] + 4 * s_
            so = "0" if blk == 0 else "s50"
            p.vmem(f"buffer_store_dwordx4 v[{P}:{P+3}], v1, s[20:23], {so} offen offset:{1024*s_} sc1", "ost")
    norm(0)
    p(f"v_accvgpr_read_b32 v7, a{LB}")
    p(f"v_mov_b32 v10, {hex(f2u(2.0**30))}")
    p(f"v_mov_b32 v11, {hex(f2u(2.0**-20))}")
    p("v_min_f32 v9, v6, v7")
    p("v_cmp_nlt_f32 vcc, v6, v10")
    p("v_cmp_nlt_f32 s[6:7], v7, v10")
    p("v_cmp_ngt_f32 s[72:73], v9, v11")
    p("s_cmp_lg_u32 s71, 0")
    p("s_cbranch_scc1 L_k2_safe")
    p("s_or_b64 vcc, vcc, s[6:7]")
    p("s_or_b64 vcc, vcc, s[72:73]")
    p("s_cbranch_vccnz L_k2_fallback")
    p.label("L_k2_safe")
    ostore(0)
    norm(1)
    ostore(1)
    if os.environ.get('ST3') != '1': stamp(p, 5)
    p("s_lshl_b32 s68, s2, 7")
    p("s_lshl_b32 s3, s46, 2")
    p("s_add_u32 s3, s3, s45")
    p("s_lshl_b32 s3, s3, 16")
    p(f"s_add_u32 s3, s3, {hex(OF_OFF)}")
    srd(p, 28, 4, "s3", 65536)
    p(f"v_and_b32 v14, 0xfff, v{g.vrd}")
    p(f"v_and_b32 v15, 0xfff, v{g.vrd+1}")
    p("s_movk_i32 s36, 0xff")
    p("s_and_b32 s38, s47, 7" if ROT else "s_mov_b32 s38, 0")
    DEP = 12; ACC = 16; WF = 48; OB = 104; Y = 224
    SO = [40, 41, 42, 43]; SW = [52, 53, 54, 55]
    def ready_from(vreg):
        p(f"v_cmp_eq_u32 vcc, 3, v{vreg}")
        p("s_nop 1")
        p("s_lshr_b32 s3, vcc_lo, 16")
        p("s_and_b32 s3, s3, vcc_lo")
        p("s_lshr_b32 s37, s3, 8")
        p("s_and_b32 s37, s37, s3")
        p("s_and_b32 s37, s37, s36")
    npick = [0]
    def pick(i, may_block):
        n = npick[0]; npick[0] += 1
        if not DYN:
            p(f"s_lshl_b32 s{SO[i%4]}, s38, 13")
            p(f"s_lshl_b32 s{SW[i%4]}, s38, 14")
            p("s_cmp_ge_u32 s38, 2")
            p("s_cselect_b32 s3, 0x8000, 0")
            p(f"s_add_u32 s{SW[i%4]}, s{SW[i%4]}, s3")
            p("s_add_u32 s38, s38, 1")
            p("s_and_b32 s38, s38, 7")
            return
        if may_block:
            p("s_cmp_lg_u32 s37, 0")
            p(f"s_cbranch_scc1 L_p3_pk{n}")
            p("s_mov_b32 s70, 0x40000")
            p.label(f"L_p3_sp{n}")
            p("buffer_load_dword v13, v12, s[64:67], s69 offen sc1")
            p("s_waitcnt vmcnt(0)")
            ready_from(13)
            p(f"s_cbranch_scc1 L_p3_pk{n}")
            p("s_sub_u32 s70, s70, 1")
            p("s_cmp_lg_u32 s70, 0")
            p(f"s_cbranch_scc1 L_p3_sp{n}")
            p("s_mov_b32 s37, s36")
            p.label(f"L_p3_pk{n}")
        p("s_lshl_b32 s3, s37, 8")
        p("s_or_b32 s3, s3, s37")
        p("s_lshr_b32 s3, s3, s38")
        p("s_ff1_i32_b32 s3, s3")
        p("s_add_u32 s3, s3, s38")
        p("s_and_b32 s3, s3, 7")
        p(f"s_bitset0_b32 s36, s3")
        p(f"s_bitset0_b32 s37, s3")
        p(f"s_lshl_b32 s{SO[i%4]}, s3, 13")
        p(f"s_lshl_b32 s{SW[i%4]}, s3, 14")
        p("s_cmp_ge_u32 s3, 2")
        p("s_cselect_b32 s3, 0x8000, 0")
        p(f"s_add_u32 s{SW[i%4]}, s{SW[i%4]}, s3")
    def oload(k, track=True):
        i = k // 8
        if k % 8 == 4: p(f"s_add_u32 s{SO[i%4]}, s{SO[i%4]}, 0x1000")
        r = OB + 4 * (k % 32)
        t_ = f"buffer_load_dwordx4 a[{r}:{r+3}], v1, s[28:31], s{SO[i%4]} offen offset:{1024*(k%4)} sc1"
        if track: p.vmem(t_, f"o{k}")
        else: p(t_)
    def signal(tag):
        p("s_barrier")
        p("s_cmp_lg_u32 s45, 0")
        p(f"s_cbranch_scc1 L_p3_ns{tag}")
        p("v_mov_b32 v6, 3")
        p("v_mov_b32 v7, 0")
        p("s_mov_b64 exec, 1")
        p("buffer_store_dword v6, v7, s[64:67], s68 offen sc1")
        p("s_mov_b64 exec, -1")
        p.label(f"L_p3_ns{tag}")
    if DYN:
        p.wait(vm="poll1")
        ready_from(13)
        p("s_bcnt1_i32_b32 s39, s37")
        p("s_cmp_lt_u32 s39, 2")
        p("s_cbranch_scc1 L_p3_noearly")
        pick(0, False)
        for k in range(8): oload(k)
        pick(1, False)
        for k in range(8, DEP): oload(k)
        p.label("L_p3_noearly")
    for t_ in ["s_lshl_b32 s3, s46, 18", "s_lshl_b32 s6, s45, 16", "s_add_u32 s3, s3, s6", "s_lshl_b32 s6, s47, 7", "s_add_u32 s3, s3, s6", "s_sub_u32 s7, 0x10000, s6"]: p(t_)
    srd(p, 20, 10, "s3", "s7")
    srd(p, 24, 62, "s3", "s7")
    p("s_mul_i32 s6, s45, 4608")
    p("s_add_u32 s6, s6, 0x8000")
    for t_ in ["v_lshrrev_b32 v2, 3, v0", "v_and_b32 v4, 7, v0", "v_lshlrev_b32 v3, 4, v4", "v_lshl_add_u32 v3, v2, 11, v3",
               "v_and_b32 v10, 31, v0", "v_mul_u32_u24 v10, 144, v10", "v_lshrrev_b32 v11, 5, v0", "v_lshl_add_u32 v10, v11, 3, v10", "v_add_u32 v10, s6, v10",
               "v_mul_u32_u24 v11, 144, v2", "v_lshl_add_u32 v11, v4, 4, v11", "v_add_u32 v11, s6, v11"]: p(t_)
    for i in range(1, 4): p(f"s_mov_b32 s{60+i}, {hex(i*8*2048)}")
    if not DYN:
        for i in range(4):
            so = "0" if i == 0 else f"s{60+i}"
            p.vmem(f"buffer_load_dwordx4 v[{96+4*i}:{96+4*i+3}], v3, s[20:23], {so} offen", "x")
    G = 128
    rest = []
    if RELAX:
        for i in range(3, 8): rest += wo_dma(i)
    va_ = [f"v_accvgpr_read_b32 v{Y+i}, a{72+i}" for i in range(32)]
    for s_ in range(3):
        va_ += [f"v_pk_add_f32 v[{Y+i}:{Y+i+1}], v[{Y+i}:{Y+i+1}], v[{XT+32*s_+i}:{XT+32*s_+i+1}]" for i in range(0, 32, 2)]
    va_ += [f"v_pk_mul_f32 v[{G+i}:{G+i+1}], v[{Y+i}:{Y+i+1}], s[58:59]" for i in range(0, 32, 2)]
    va_ += [f"v_exp_f32 v{G+i}, v{G+i}" for i in range(32)]
    for n, t_ in enumerate(va_):
        p(t_)
        if n % 4 == 3 and rest: rest.pop(0)()
    assert not rest
    if not DYN:
        p.wait(vm="ost")
        signal("a")
        if os.environ.get('ST3') != '1': stamp(p, 7)
    for i in range(0, 32, 2): p(f"v_pk_add_f32 v[{G+i}:{G+i+1}], v[{G+i}:{G+i+1}], 1.0 op_sel_hi:[1,0]")
    for i in range(32): p(f"v_rcp_f32 v{G+i}, v{G+i}")
    for i in range(0, 32, 2): p(f"v_pk_mul_f32 v[{G+i}:{G+i+1}], v[{G+i}:{G+i+1}], v[{Y+i}:{Y+i+1}]")
    if os.environ.get('ST3') != '1': stamp(p, 8)
    if DYN:
        p("s_cmp_ge_u32 s39, 2")
        p("s_cbranch_scc1 L_p3_w12")
        p("s_waitcnt vmcnt(0)")
        p.label("L_p3_w12")
        p.wait(vm="ost")
        signal("a")
        p("s_cmp_ge_u32 s39, 2")
        p("s_cbranch_scc1 L_p3_go")
        pick(0, True)
        for k in range(8): oload(k, False)
        pick(1, True)
        for k in range(8, DEP): oload(k, False)
        p.label("L_p3_go")
        if os.environ.get('ST3') != '1': stamp(p, 7)
    else:
        pick(0, False); pick(1, False)
        XR = 96; XD = 80; XU = 160
        p.wait(vm="x")
        for i in range(4): p.lds(f"ds_write_b128 v11, v[{XR+4*i}:{XR+4*i+3}] offset:{i*8*144}", "xs")
        p.wait(lg="xs")
        for q in range(8): p.lds(f"ds_read_b64 v[{XD+2*q}:{XD+2*q+1}], v10 offset:{64*(q>>2) + 16*(q&3)}", "xd")
        p("s_cmp_lg_u32 s45, 0")
        p("s_cbranch_scc1 L_p3_polled")
        p("s_mov_b32 s70, 0x40000")
        p.label("L_p3_poll")
        p("buffer_load_dword v13, v12, s[64:67], s69 offen sc1")
        p("s_sub_u32 s70, s70, 1")
        p("s_waitcnt vmcnt(0)")
        p("v_cmp_ne_u32 vcc, 3, v13")
        p("s_cmp_eq_u32 s70, 0")
        p("s_cbranch_scc1 L_p3_polled")
        p("s_nop 2")
        p("s_cbranch_vccnz L_p3_poll")
        p.label("L_p3_polled")
        p.wait(vm=["wo7"])
        p("s_barrier")
        if os.environ.get('ST3') != '1': stamp(p, 9)
        for k in range(DEP): oload(k)
    def wreads(k):
        i = k // 8; f = (k % 8) // 2; s_ = k & 1
        ops = []
        if k % 8 == 0:
            ops.append(lambda: (p(f"v_add_u32 v{g.vrd}, s{SW[i%4]}, v14"), p(f"v_add_u32 v{g.vrd+1}, s{SW[i%4]}, v15")))
        else:
            ops.append(lambda: None)
        for nb in range(2):
            for e in range(2):
                b_ = WF + 8 * (k % 4) + 4 * nb + 2 * e
                ops.append(lambda b_=b_, nb=nb, e=e: p.lds(f"ds_read_b64_tr_b16 v[{b_}:{b_+1}], v{g.vrd+nb} offset:{f*4096 + e*2048 + s_*1024}", f"w{k}"))
        return ops
    for k in range(2):
        for o in wreads(k): o()
    fl = []
    def F(t_, c=4): fl.append((lambda t_=t_: p(t_), c))
    XR = 96; XD = 80; XU = 160
    nx = len(fl)
    for k in range(16):
        F(f"v_lshlrev_b32 v{XU+2*k}, 16, v{XD+k}")
        F(f"v_and_b32 v{XU+2*k+1}, s51, v{XD+k}")
    if not DYN:
        p.wait(lg="xd")
        for fn, c in fl: fn()
        fl = []
    tot = sum(c for _, c in fl)
    rate = tot / (2 * 12)
    credit = 0.0; fi = 0
    for k in range(64):
        p.wait(vm=f"o{k}", lg=f"w{k}")
        kn = k + DEP
        wr = wreads(k + 2) if k + 2 < 64 else [lambda: None] * 5
        for nb in range(2):
            b_ = WF + 8 * (k % 4) + 4 * nb
            d = r16(ACC + 16 * nb)
            r = OB + 4 * (k % 32)
            p(f"v_mfma_f32_32x32x16_bf16 {d}, v[{b_}:{b_+3}], a[{r}:{r+3}], {'0' if k == 0 else d}")
            if nb == 0 and kn < 64:
                if kn % 8 == 0:
                    i = kn // 8
                    if DYN and i in (5, 7):
                        ready_from(13)
                    pick(i, DYN)
                    if DYN and i in (3, 5):
                        p.vmem("buffer_load_dword v13, v12, s[64:67], s69 offen sc1", "rp")
                oload(kn)
            if nb == 0: wr[0]()
            wr[1 + 2 * nb](); wr[2 + 2 * nb]()
            if DYN and nb == 1 and 2 <= k < 10 and k % 2 == 0:
                i = (k - 2) // 2
                so = "0" if i == 0 else f"s{60+i}"
                p.vmem(f"buffer_load_dwordx4 v[{XR+4*i}:{XR+4*i+3}], v3, s[20:23], {so} offen", "x")
            if DYN and nb == 1 and 30 <= k < 34:
                i = k - 30
                if i == 0: p.wait(vm="x")
                p.lds(f"ds_write_b128 v11, v[{XR+4*i}:{XR+4*i+3}] offset:{i*8*144}", "xs")
            if DYN and nb == 1 and 38 <= k < 46:
                q = k - 38
                if q == 0: p.wait(lg="xs")
                p.lds(f"ds_read_b64 v[{XD+2*q}:{XD+2*q+1}], v10 offset:{64*(q>>2) + 16*(q&3)}", "xd")
            if k >= 50: credit += rate
            while fi < len(fl) and credit >= fl[fi][1] / 2:
                if fi == nx:
                    assert k >= 48, k
                    p.wait(lg="xd")
                fl[fi][0](); credit -= fl[fi][1]; fi += 1
    while fi < len(fl): fl[fi][0](); fi += 1
    stamp(p, 10)
    p("s_nop 11")
    T = 192
    for nb in range(2):
        Sx = ACC + 16 * nb
        if nb == 1: p("s_nop 0")
        for i in range(0, 16, 2):
            p(f"v_pk_fma_f32 v[{Sx+i}:{Sx+i+1}], v[{Sx+i}:{Sx+i+1}], v[{G+16*nb+i}:{G+16*nb+i+1}], v[{XU+16*nb+i}:{XU+16*nb+i+1}]")
        for j in range(4):
            r = T + 8 * nb + 2 * j
            p(f"v_cvt_pk_bf16_f32 v{r}, v{Sx+4*j}, v{Sx+4*j+1}")
            p(f"v_cvt_pk_bf16_f32 v{r+1}, v{Sx+4*j+2}, v{Sx+4*j+3}")
            p.lds(f"ds_write_b64 v10, v[{r}:{r+1}] offset:{64*nb + 16*j}", "tw")
    p.wait(lg="tw")
    TR = 96
    for i in range(4):
        p.lds(f"ds_read_b128 v[{TR+4*i}:{TR+4*i+3}], v11 offset:{i*8*144}", f"tr{i}")
    for i in range(4):
        p.wait(lg=f"tr{i}")
        so = "0" if i == 0 else f"s{60+i}"
        p.vmem(f"buffer_store_dwordx4 v[{TR+4*i}:{TR+4*i+3}], v3, s[24:27], {so} offen {os.environ.get('OPOL', '')}", "st")
    if STAMP: p("s_waitcnt vmcnt(0)")
    stamp(p, 6)
    if STAMP:
        p("s_memrealtime s[78:79]")
        p("s_waitcnt lgkmcnt(0)")
    stamp_out(p, 11, 2, 4, "s45", extra=[78])
    p("s_endpgm")
    fb = Prog()
    fb.label("L_k2_fallback")
    fb("s_waitcnt vmcnt(0) lgkmcnt(0)")
    fb("v_mov_b32 v10, 0xff800000")
    fb("v_mov_b32 v11, 0xff800000")
    fb("s_mov_b32 s36, 0")
    fb.label("L_k2_fb1")
    for f in range(2):
        fb(f"buffer_load_dwordx4 {Kf(0,f)}, v1, s[12:15], s36 offen offset:{1024*f}{sc}")
    fb("s_waitcnt vmcnt(0)")
    for blk in range(2):
        for t, _ in qk(blk, 0, "0"): fb(t)
    fb("s_nop 15")
    for blk in range(2):
        S = S_[blk]
        for i in range(0, 16, 2):
            fb(f"v_max3_f32 v{10+blk}, v{10+blk}, v{S+i}, v{S+i+1}")
    fb("s_add_u32 s36, s36, 0x1000")
    fb("s_cmp_lt_u32 s36, 0x40000")
    fb("s_cbranch_scc1 L_k2_fb1")
    for blk in range(2):
        fb(f"v_mov_b32 v7, v{10+blk}")
        fb("s_nop 1")
        fb(f"v_permlane32_swap_b32 v{10+blk}, v7")
        fb("s_nop 1")
        fb(f"v_max_f32 v6, v{10+blk}, v7")
        for i in range(16):
            fb(f"v_sub_f32 v{C_[blk]+i}, 0, v6")
    for i in range(0, 40): fb(f"v_accvgpr_write_b32 a{i}, 0")
    fb("s_mov_b32 s36, 0")
    fb.label("L_k2_fb2")
    for f in range(2):
        fb(f"buffer_load_dwordx4 {Kf(0,f)}, v1, s[12:15], s36 offen offset:{1024*f}{sc}")
        fb(f"buffer_load_dwordx4 {Vf(0,f)}, v1, s[12:15], s36 offen offset:{2048+1024*f}{sc}")
    fb("s_waitcnt vmcnt(0)")
    for blk in range(2):
        for t, _ in qk(blk, 0): fb(t)
    fb("s_nop 15")
    for blk in range(2):
        for t, _ in softmax_valu(blk): fb(t)
    fb("s_nop 1")
    for blk in range(2):
        for t, _ in pv(blk, 0): fb(t)
    fb("s_add_u32 s36, s36, 0x1000")
    fb("s_cmp_lt_u32 s36, 0x40000")
    fb("s_nop 15")
    fb("s_cbranch_scc1 L_k2_fb2")
    fb("s_mov_b32 s71, 1")
    fb("s_branch L_k2_out")
    final = Prog()
    final.ins = p.ins[:marks[1]] + [Ins(".p2align 6", "dir"), Ins("L_k2_loop:", "label")] + body + p.ins[marks[14]:] + fb.ins
    final.label("L_k2_end")
    final("s_endpgm")
    lins = [[x.text for x in p.ins], [x.text for x in fb.ins] + [x.text for x in fb.ins]]
    launch = f"; @launch kernel={name} grid=(256,1,1) block=(256,1,1) lds=163840"
    return dict(name=name, prog=final, launch=launch, kd=kd(name, 512, 102, 256), lins=lins)
```

```python
from common import *
import math, struct

def f2u(x):
    return struct.unpack("<I", struct.pack("<f", x))[0]

def acc(mb, nb):
    if nb < 4:
        return ("v", 48 + 4 * (mb * 4 + nb))
    if nb < 8:
        if mb < 5:
            return ("v", 48 + 128 + 4 * (mb * 4 + nb - 4))
        return ("a", 144 + 4 * ((mb - 5) * 4 + nb - 4))
    return ("a", 144 + 48 + 4 * (mb * 2 + nb - 8))

def fragA(st, mb): return ("a", 72 * st + 4 * mb)
def fragB(st, nb): return ("a", 72 * st + 32 + 4 * nb)

HSC = os.environ.get("HSC", "sc1")
MERGED = [False]
M16 = [False]
def dma_ops(p, stage, tag, parts="AB"):
    ops = []
    sc = (" " + HSC) if MERGED[0] else ""
    if "A" in parts:
        ops.append(lambda: p(f"s_add_u32 m0, s40, {stage*16384}"))
        for i in range(4):
            ops.append(lambda i=i: p.vmem(f"buffer_load_dwordx4 v1, s[12:15], s36 offen offset:{1024*i}{sc} lds", tag))
    if "B" in parts:
        for u in range(5):
            srdn = [16, 16, 20, 20, 24][u]
            voff = "v2" if u < 4 else "v3"
            soff = "s37" if u < 4 else "s38"
            io = 128 if u in (1, 3) else 0
            ops.append(lambda u=u, io=io: p(f"s_add_u32 m0, s41, {u*16384 + stage*4096 - io}"))
            ops.append(lambda srdn=srdn, voff=voff, soff=soff, io=io: p.vmem(
                f"buffer_load_dwordx4 {voff}, s[{srdn}:{srdn+3}], {soff} offen offset:{io} lds", tag))
    k_ = 0
    if "A" in parts:
        for i in range(1, 5): ops[i].ld = True
        k_ = 5
    if "B" in parts:
        for u in range(5): ops[k_ + 2 * u + 1].ld = True
    if "A" in parts:
        ops.append(lambda: p("s_add_u32 s36, s36, 0x4000"))
    if "B" in parts:
        ops.append(lambda: p("s_add_u32 s37, s37, s39"))
        ops.append(lambda: p(f"s_add_u32 s38, s38, {32*6144}"))
    return ops

def read_ops(p, stage, st, tag):
    ops = []
    ra = [lambda mb=mb: p.lds(f"ds_read_b128 {vr(fragA(st, mb), 4)}, v4 offset:{stage*16384 + mb*1024}", tag) for mb in range(8)]
    rb = []
    for nb in range(10):
        for e in range(2):
            f, b = fragB(st, nb)
            if nb < 8:
                a = 5 + (nb & 3); off = stage * 4096 + e * 512 + (nb >> 2) * 32768
            else:
                a = 9 + (nb - 8); off = stage * 4096 + e * 512
            rb.append(lambda b=b, e=e, a=a, off=off: p.lds(f"ds_read_b64_tr_b16 a[{b+2*e}:{b+2*e+1}], v{a} offset:{off}", tag))
    out = []
    ia = ib = 0
    while ia < len(ra) or ib < len(rb):
        if ia < len(ra): out.append(ra[ia]); ia += 1
        for _ in range(3 if ia > 4 else 2):
            if ib < len(rb): out.append(rb[ib]); ib += 1
    return out

def merge_ops(a, b):
    out = []
    na, nb = len(a), len(b)
    ia = ib = 0
    while ia < na or ib < nb:
        if ib >= nb or (ia < na and ia * nb <= ib * na):
            out.append(a[ia]); ia += 1
        else:
            out.append(b[ib]); ib += 1
    return out

PF = os.environ.get('K1PF', '1') == '1'
def iteration(p, t, isV, NK=32, loopctl=None, dmas=None, pf=None):
    st = t & 1
    slots = {}
    def add(k, fn): slots.setdefault(k, []).append(fn)
    if t + 1 < NK:
        add(0, lambda: p.wait(vm=f"d{t+1}", force=True))
        add(1, lambda: p("s_barrier"))
        rd = read_ops(p, (t + 1) & 3, 1 - st, f"f{t+1}")
        dm = []
        for d in dmas:
            d, parts = d if isinstance(d, tuple) else (d, "AB")
            dm += dma_ops(p, d & 3, f"d{d}", parts)
        if os.environ.get("K1SCHED", "1") == "1":
            isld = [getattr(o, "ld", False) for o in dm]
            nld = sum(isld) + (1 if pf else 0) + (1 if pf == "wo" else 0)
            per = 77.0 / max(nld, 1)
            ldg = [int(3 + n * per) for n in range(nld)]
            n = 0
            for i, o in enumerate(dm):
                if isld[i]:
                    add(ldg[n], o); n += 1
                elif i + 1 < len(dm) and isld[i + 1]:
                    slots.setdefault(ldg[n] - 1, []).insert(0, o)
                else:
                    extra_s = getattr(iteration, "_c", 0); iteration._c = (extra_s + 1) % 2
                    slots.setdefault(ldg[n - 1] + 1 + (i - max(j for j in range(i) if isld[j]) - 1), []).insert(0, o)
            pfg = ldg[n:]
            free = [k_ for k_ in range(2, 70) if k_ not in ldg]
            for i, o in enumerate(rd):
                add(free[(i * len(free)) // len(rd)], o)
        else:
            pfg = [77, 40]
            k0, k1 = 2, 66
            for i, o in enumerate(rd):
                add(k0 + (i * (k1 - k0)) // max(len(rd), 1), o)
            k0, k1 = 3, 76
            for i, o in enumerate(dm):
                add(k0 + (i * (k1 - k0)) // max(len(dm), 1), o)
    if PF and pf in ("wd", "wo"):
        add(pfg[0], lambda: p.vmem("buffer_load_dword v46, v44, s[64:67], s49 offen", "pf"))
        add(pfg[0] + 1, lambda: p("s_add_u32 s49, s49, s72"))
    if PF and pf == "wo":
        add(pfg[1], lambda: p.vmem("buffer_load_dword v46, v45, s[68:71], s51 offen", "pf"))
        add(pfg[1] + 1, lambda: p("s_add_u32 s51, s51, 0x80000"))
    if loopctl:
        add(76, lambda: p("s_sub_u32 s42, s42, 1"))
        add(79, lambda: p("s_cmp_lg_u32 s42, 0"))
    k = 0
    for mb in range(8):
        order = range(10) if mb % 2 == 0 else range(9, -1, -1)
        for nb in order:
            d = vr(acc(mb, nb), 4)
            c = "0" if t == 0 else d
            xa = vr(fragA(st, mb), 4); wb = vr(fragB(st, nb), 4)
            if isV and nb < 8:
                p(f"v_mfma_f32_16x16x32_bf16 {d}, {xa}, {wb}, {c}")
            else:
                p(f"v_mfma_f32_16x16x32_bf16 {d}, {wb}, {xa}, {c}")
            for fn in slots.get(k, []): fn()
            k += 1
    LST = STAMP and os.environ.get("ST4") == "1"
    if LST and loopctl: p("s_memtime s[74:75]")
    if t + 1 < NK:
        p.wait(lg=f"f{t+1}")
    if LST and loopctl:
        p("s_waitcnt lgkmcnt(0)")
        p("s_mov_b32 m0, s42")
        p("s_nop 1")
        p("v_writelane_b32 v47, s74, m0")
    if loopctl:
        p(f"s_cbranch_scc1 {loopctl}")

def get4(p, tile, tmp):
    f, b = tile
    if f == "v": return b
    for i in range(4):
        p(f"v_accvgpr_read_b32 v{tmp+i}, a{b+i}")
    return tmp

STP = os.environ.get('K1ST', 'sc1')
def epi_qk(p):
    for mb in range(8):
        T = 16 + 16 * (mb & 1)
        a = get4(p, acc(mb, 8), T)
        b = get4(p, acc(mb, 9), T + 4)
        for i in range(0, 8, 2):
            p(f"v_pk_mul_f32 v[{T+i}:{T+i+1}], v[{T+i}:{T+i+1}], s[56:57]")
        for i in range(4):
            p(f"v_cvt_pk_bf16_f32 v{T+8+i}, v{T+2*i}, v{T+2*i+1}")
        p.vmem(f"buffer_store_dwordx4 v[{T+8}:{T+11}], v{13+(mb&1)}, s[32:35], s{52+(mb>>1)} offen {STP}", "st")

def epi_f(p):
    n = 0
    for mb in range(8):
        for pr in range(2):
            T = 16 + 16 * (n & 1); n += 1
            g0 = acc(mb, 2 * pr)[1]; g1 = acc(mb, 2 * pr + 1)[1]
            assert g1 == g0 + 4
            for i in range(0, 8, 2):
                p(f"v_pk_mul_f32 v[{g0+i}:{g0+i+1}], v[{g0+i}:{g0+i+1}], s[58:59]")
            u0 = get4(p, acc(mb, 4 + 2 * pr), T)
            u1 = get4(p, acc(mb, 5 + 2 * pr), T + 4)
            assert u1 == u0 + 4
            for i in range(8):
                p(f"v_exp_f32 v{g0+i}, v{g0+i}")
            for i in range(0, 8, 2):
                p(f"v_pk_add_f32 v[{g0+i}:{g0+i+1}], v[{g0+i}:{g0+i+1}], 1.0 op_sel_hi:[1,0]")
            for i in range(8):
                p(f"v_rcp_f32 v{g0+i}, v{g0+i}")
            for i in range(0, 8, 2):
                p(f"v_pk_mul_f32 v[{g0+i}:{g0+i+1}], v[{g0+i}:{g0+i+1}], v[{u0+i}:{u0+i+1}]")
            for i in range(4):
                p(f"v_cvt_pk_bf16_f32 v{T+8+i}, v{g0+2*i}, v{g0+2*i+1}")
            so = "0" if pr == 0 else "s50"
            p.vmem(f"buffer_store_dwordx4 v[{T+8}:{T+11}], v12, s[28:31], {so} offen offset:{(mb>>1)*1024 + (mb&1)*256} {STP}", "st")

def epi_v(p):
    n = 0
    for j in range(4):
        for nb in range(8):
            T = 16 + 16 * (n & 1); n += 1
            a = get4(p, acc(2 * j, nb), T)
            b = get4(p, acc(2 * j + 1, nb), T + 4)
            hd = (nb >> 2) * 4 + ((nb & 3) >> 1)
            p(f"s_mov_b32 s51, {hex(hd * 262144 + j * 4096)}")
            p(f"v_cvt_pk_bf16_f32 v{T+8}, v{a}, v{a+1}")
            p(f"v_cvt_pk_bf16_f32 v{T+9}, v{a+2}, v{a+3}")
            p(f"v_cvt_pk_bf16_f32 v{T+10}, v{b}, v{b+1}")
            p(f"v_cvt_pk_bf16_f32 v{T+11}, v{b+2}, v{b+3}")
            p.vmem(f"buffer_store_dwordx4 v[{T+8}:{T+11}], v12, s[28:31], s51 offen offset:{(nb&1)*256} {STP}", "st")
            if len(p.vmq) > 40:
                p.vmq = p.vmq[-20:]


def epi_ops_group(p, isV, mbs, nbs, st, packed):
    ops = []
    def V(text, cost=4): ops.append((lambda text=text: p(text), cost))
    def get(tile, tmp):
        f, b = tile
        if f == "v": return b
        for i in range(4): V(f"v_accvgpr_read_b32 v{tmp+i}, a{b+i}")
        return tmp
    def mul_s(base, n, sreg):
        if packed:
            for i in range(0, n, 2): V(f"v_pk_mul_f32 v[{base+i}:{base+i+1}], v[{base+i}:{base+i+1}], s[{sreg}:{sreg+1}]")
        else:
            for i in range(n): V(f"v_mul_f32 v{base+i}, s{sreg}, v{base+i}")
    if nbs == (8, 9):
        for mb in mbs:
            T = 16 + 16 * (st["n"] & 1); st["n"] += 1
            get(acc(mb, 8), T); get(acc(mb, 9), T + 4)
            mul_s(T, 8, 56)
            for i in range(4): V(f"v_cvt_pk_bf16_f32 v{T+8+i}, v{T+2*i}, v{T+2*i+1}")
            ops.append((lambda T=T, mb=mb: p.vmem(f"buffer_store_dwordx4 v[{T+8}:{T+11}], v{13+(mb&1)}, s[32:35], s{52+(mb>>1)} offen {STP}", "stq"), 4))
    elif not isV:
        pr = nbs[0] // 2
        for mb in mbs:
            T = 16 + 16 * (st["n"] & 1); st["n"] += 1
            g0 = acc(mb, 2 * pr)[1]
            mul_s(g0, 8, 58)
            for i in range(8): V(f"v_exp_f32 v{g0+i}, v{g0+i}", 8)
            u0 = get(acc(mb, 4 + 2 * pr), T); u1 = get(acc(mb, 5 + 2 * pr), T + 4)
            assert u1 == u0 + 4
            if packed:
                for i in range(0, 8, 2): V(f"v_pk_add_f32 v[{g0+i}:{g0+i+1}], v[{g0+i}:{g0+i+1}], 1.0 op_sel_hi:[1,0]")
            else:
                for i in range(8): V(f"v_add_f32 v{g0+i}, 1.0, v{g0+i}")
            for i in range(8): V(f"v_rcp_f32 v{g0+i}, v{g0+i}", 8)
            if packed:
                for i in range(0, 8, 2): V(f"v_pk_mul_f32 v[{g0+i}:{g0+i+1}], v[{g0+i}:{g0+i+1}], v[{u0+i}:{u0+i+1}]")
            else:
                for i in range(8): V(f"v_mul_f32 v{g0+i}, v{g0+i}, v{u0+i}")
            for i in range(4): V(f"v_cvt_pk_bf16_f32 v{T+8+i}, v{g0+2*i}, v{g0+2*i+1}")
            if M16[0]:
                ops.insert(len(ops) - 2, (lambda pr=pr, mb=mb: p(f"s_movk_i32 s51, {hex(pr * 8192 + (mb >> 2) * 4096)}"), 4))
                ops.append((lambda T=T, mb=mb: p.vmem(f"buffer_store_dwordx4 v[{T+8}:{T+11}], v12, s[28:31], s51 offen offset:{(mb&3)*1024} {STP}", "st"), 4))
                continue
            so = "0" if pr == 0 else "s50"
            ops.append((lambda T=T, mb=mb, so=so: p.vmem(f"buffer_store_dwordx4 v[{T+8}:{T+11}], v12, s[28:31], {so} offen offset:{(mb>>1)*1024 + (mb&1)*256} {STP}", "st"), 4))
    else:
        for j in sorted({mb >> 1 for mb in mbs}):
            for nb in nbs:
                T = 16 + 16 * (st["n"] & 1); st["n"] += 1
                a = get(acc(2 * j, nb), T); b = get(acc(2 * j + 1, nb), T + 4)
                hd = (nb >> 2) * 4 + ((nb & 3) >> 1)
                V(f"s_mov_b32 s51, {hex(hd * 262144 + j * 4096)}")
                V(f"v_cvt_pk_bf16_f32 v{T+8}, v{a}, v{a+1}")
                V(f"v_cvt_pk_bf16_f32 v{T+9}, v{a+2}, v{a+3}")
                V(f"v_cvt_pk_bf16_f32 v{T+10}, v{b}, v{b+1}")
                V(f"v_cvt_pk_bf16_f32 v{T+11}, v{b+2}, v{b+3}")
                ops.append((lambda T=T, nb=nb: p.vmem(f"buffer_store_dwordx4 v[{T+8}:{T+11}], v12, s[28:31], s51 offen offset:{(nb&1)*(1024 if M16[0] else 256)} {STP}", "st"), 16))
    return ops

def tail(p, isV, T0=28, NK=32, hooks=None, late=None):
    M0, M1 = (0, 1, 2, 3), (4, 5, 6, 7)
    N0, N1, NQ = (0, 1, 4, 5), (2, 3, 6, 7), (8, 9)
    groups = {"0": [(M0, N0), (M0, NQ), (M0, N1), (M1, N1), (M1, NQ), (M1, N0)],
              "1": [(M0 + M1, NQ), (M1, N0), (M1, N1), (M0, N1), (M0, N0)],
              "2": [(M0, N0), (M0, N1), (M0, NQ), (M1, NQ), (M1, N1), (M1, N0)],
              "3": [(M0, N0), (M0, NQ), (M0, N1), (M1, N1), (M1, N0), (M1, NQ)],
              "4": [(M0, N0), (M0, NQ), (M0, N1), (M1, N1), (M1, NQ), ((4, 5), N0), ((6, 7), N0)]}[os.environ.get("TG", "1")]
    steps = list(range(T0, NK))
    seq = []
    t = T0 - 1
    for mb in range(8):
        for nb in (range(10) if mb % 2 == 0 else range(9, -1, -1)): seq.append((mb, nb, t, -1))
    gend = []
    for gi, (ms, ns) in enumerate(groups):
        for t in steps:
            for a, mb in enumerate(ms):
                for nb in (ns if a % 2 == 0 else ns[::-1]): seq.append((mb, nb, t, gi))
        gend.append(len(seq) - 1)
    uses = {}
    for i, (mb, nb, t, gi) in enumerate(seq):
        uses.setdefault(("A", mb, t), []).append((i, gi))
        uses.setdefault(("B", nb, t), []).append((i, gi))
    inst = []
    for key, u in uses.items():
        cur = None
        for i, gi in u:
            if cur and gi - cur["g"] <= 1:
                cur["last"] = i; cur["g"] = gi
            else:
                cur = dict(key=key, first=i, last=i, g=gi); inst.append(cur)
    st0 = (T0 - 1) & 1
    free_at = {}
    for sl in range(36): free_at[sl] = -1
    where = {}
    for x in inst:
        k, idx, t = x["key"]
        if t == T0 - 1:
            x["slot"] = 18 * st0 + (idx if k == "A" else 8 + idx)
            x["rd"] = None
            free_at[x["slot"]] = x["last"]
    vis = {T0: 1, T0 + 1: 1, T0 + 2: 81, T0 + 3: 81 + 24}
    todo = sorted([x for x in inst if "slot" not in x], key=lambda x: x["first"])
    gap = 2
    for x in todo:
        k, idx, t = x["key"]
        sl = min(free_at, key=lambda s_: free_at[s_])
        g_ = max(gap, free_at[sl], vis[t], x["first"] - 72)
        assert g_ <= x["first"] - 6, (x, g_)
        x["slot"] = sl; x["rd"] = g_
        free_at[sl] = x["last"]
        gap = g_ + (2 if k == "B" else 1)
    reads = {}
    for x in todo:
        k, idx, t = x["key"]
        stage = t & 3; b = 4 * x["slot"]; tag = f"t{k}{idx}_{t}_{x['first']}"
        x["tag"] = tag
        if k == "A":
            reads.setdefault(x["rd"], []).append(lambda b=b, idx=idx, stage=stage, tag=tag: p.lds(f"ds_read_b128 a[{b}:{b+3}], v4 offset:{stage*16384 + idx*1024}", tag))
        else:
            for e in range(2):
                if idx < 8: a = 5 + (idx & 3); off = stage * 4096 + e * 512 + (idx >> 2) * 32768
                else: a = 9 + (idx - 8); off = stage * 4096 + e * 512
                reads.setdefault(x["rd"] + e, []).append(lambda b=b, e=e, a=a, off=off, tag=tag: p.lds(f"ds_read_b64_tr_b16 a[{b+2*e}:{b+2*e+1}], v{a} offset:{off}", tag))
    def find(k, idx, t, i):
        for x in inst:
            if x["key"] == (k, idx, t) and x["first"] <= i <= x["last"]: return x
        raise KeyError
    misc = {}
    def add(k, fn): misc.setdefault(k, []).append(fn)
    add(0, lambda: p.wait(vm=[f"d{T0}", f"d{T0+1}"], force=True)); add(1, lambda: p("s_barrier"))
    dm = dma_ops(p, (T0 + 3) & 3, f"d{T0+3}")
    for i, o in enumerate(dm): add(2 + 2 * i, o)
    add(80, lambda: p.wait(vm=f"d{T0+2}", force=True)); add(81, lambda: p("s_barrier"))
    add(80 + 24, lambda: p.wait(vm=f"d{T0+3}", force=True)); add(81 + 24, lambda: p("s_barrier"))
    for k_, fn in (hooks or []): add(k_ if k_ >= 0 else len(seq) + k_, fn)
    stt = {"n": 0}
    epis = [epi_ops_group(p, isV, ms, ns, stt, packed=(gi == len(groups) - 1)) for gi, (ms, ns) in enumerate(groups)]
    DELAY = 4
    tot = sum(c for e in epis[:-1] for _, c in e)
    nm = len(seq) - (gend[0] + DELAY)
    rate = tot / nm * float(os.environ.get('TR', '1.15'))
    fifo = []
    credit = 0.0
    for i, (mb, nb, t, gi) in enumerate(seq):
        xa = find("A", mb, t, i); xb = find("B", nb, t, i)
        tags = [x["tag"] for x in (xa, xb) if x.get("tag")]
        if tags: p.wait(lg=tags)
        d = vr(acc(mb, nb), 4)
        ra = f"a[{4*xa['slot']}:{4*xa['slot']+3}]"; rb = f"a[{4*xb['slot']}:{4*xb['slot']+3}]"
        if isV and nb < 8: p(f"v_mfma_f32_16x16x32_bf16 {d}, {ra}, {rb}, {d}")
        else: p(f"v_mfma_f32_16x16x32_bf16 {d}, {rb}, {ra}, {d}")
        for fn in misc.get(i, []): fn()
        for fn in reads.get(i, []): fn()
        for g2, e in enumerate(gend[:-1]):
            if i == e + DELAY: fifo += epis[g2]
        if fifo: credit += rate
        else: credit = 0.0
        while fifo and credit >= fifo[0][1] / 2:
            fn, c = fifo.pop(0); fn(); credit -= c
    stamp(p, 4, 1)
    for fn, c in fifo: fn()
    if len(fifo) < 8: p("s_nop 7")
    for n_, (fn, c) in enumerate(epis[-1]):
        if late and n_ == max(0, len(epis[-1]) - late[0]): late[1]()
        fn()

def setup_ids(p):
    p("s_and_b32 s3, s2, 7")
    p("s_lshr_b32 s43, s2, 3")
    p("s_lshr_b32 s61, s43, 3")
    p("s_and_b32 s43, s43, 7")
    p("s_mul_i32 s44, s3, 3")
    p("s_add_u32 s44, s44, s61")
    p("s_lshr_b32 s62, s43, 2")
    p("s_xor_b32 s62, s62, s3")
    p("s_and_b32 s62, s62, 1")
    p("s_lshl_b32 s62, s62, 2")
    p("s_lshr_b32 s63, s3, 1")
    p("s_sub_u32 s63, s63, s62")
    p("s_add_u32 s63, s63, 28")
    p("s_cmp_eq_u32 s61, 3")
    p("s_cselect_b32 s44, s63, s44")
    p("s_lshr_b32 s46, s45, 1")
    p("s_and_b32 s47, s45, 1")
    p("s_cmp_ge_u32 s44, 28")
    p("s_cselect_b32 s48, 1, 0")
    csel(p, "s60", 6144, 7168)
    p("s_lshl_b32 s39, s60, 5")
    p("s_lshl_b32 s40, s45, 12")
    p("v_lshlrev_b32 v1, 4, v0")
    p("v_add_u32 v1, s40, v1")
    p("s_lshl_b32 s41, s45, 10")
    p("s_add_u32 s41, s41, 0x10000")
    p("v_lshrrev_b32 v11, 3, v0")
    p("s_lshl_b32 s3, s45, 3")
    p("v_add_u32 v11, s3, v11")
    p("v_bfe_u32 v12, v0, 4, 1")
    p("s_and_b32 s3, s45, 1")
    p("s_lshl_b32 s3, s3, 1")
    p("v_or_b32 v12, s3, v12")
    p("v_lshlrev_b32 v12, 1, v12")
    p("v_and_b32 v13, 7, v0")
    p("v_xor_b32 v12, v12, v13")
    p("v_lshlrev_b32 v12, 4, v12")
    p("v_mul_lo_u32 v2, v11, s60")
    p("v_add_u32 v2, v2, v12")
    p("v_mul_u32_u24 v3, 6144, v11")
    p("v_add_u32 v3, v3, v12")

def setup_srds(p):
    p("s_lshl_b32 s3, s43, 19")
    if XN_OFF: p(f"s_add_u32 s3, s3, {hex(XN_OFF)}")
    srd(p, 12, 4, "s3", 524288)
    p("s_lshl_b32 s61, s44, 8")
    p("s_lshl_b32 s62, s44, 9")
    p(f"s_sub_u32 s62, s62, {28*512 - 4096}")
    p("s_add_u32 s63, s62, 256")
    p("s_cmp_eq_u32 s48, 1")
    p("s_cselect_b32 s64, s62, s61")
    p("s_cselect_b32 s65, s63, s61")
    p("s_cselect_b32 s66, s6, s8")
    p("s_cselect_b32 s67, s7, s9")
    p("s_cselect_b32 s68, s6, s10")
    p("s_cselect_b32 s69, s7, s11")
    csel(p, "s70", D*3*D*2, D*F*2)
    p("s_sub_u32 s71, s70, s64")
    srd(p, 16, 66, "s64", "s71")
    p("s_sub_u32 s71, s70, s65")
    srd(p, 20, 68, "s65", "s71")
    p("s_lshl_b32 s61, s44, 7")
    p(f"s_sub_u32 s71, {hex(D*3*D*2)}, s61")
    srd(p, 24, 6, "s61", "s71")
    p("s_mov_b32 s36, 0")
    p("s_mov_b32 s37, 0")
    p("s_mov_b32 s38, 0")

def setup_addrs(p):
    p("v_lshlrev_b32 v4, 4, v0")
    p("s_lshl_b32 s3, s46, 13")
    p("v_add_u32 v4, s3, v4")
    p("v_lshrrev_b32 v11, 4, v0")
    p("v_bfe_u32 v12, v0, 2, 2")
    p("v_and_b32 v13, 3, v0")
    p("v_lshlrev_b32 v14, 10, v11")
    p("v_lshl_add_u32 v14, v12, 7, v14")
    p("v_lshl_add_u32 v14, v13, 3, v14")
    p("v_lshrrev_b32 v15, 1, v12")
    p("v_and_b32 v16, 1, v11")
    p("v_lshl_or_b32 v15, v16, 1, v15")
    p("s_lshl_b32 s3, s47, 14")
    p("s_add_u32 s3, s3, 0x10000")
    for nb in range(4):
        p(f"v_xor_b32 v16, {nb}, v15")
        p(f"v_lshl_add_u32 v16, v16, 5, v14")
        p(f"v_add_u32 v{5+nb}, s3, v16")
    p("s_lshl_b32 s3, s47, 1")
    for i in range(2):
        p(f"s_add_u32 s61, s3, {i}")
        p(f"v_xor_b32 v16, s61, v15")
        p(f"v_lshl_add_u32 v16, v16, 5, v14")
        p(f"v_add_u32 v{9+i}, 0x20000, v16")
    p("v_and_b32 v16, 15, v0")
    p("v_lshrrev_b32 v17, 1, v11")
    p("v_and_b32 v18, 1, v11")
    p("v_lshlrev_b32 v19, 9, v18")
    p("s_cmp_eq_u32 s48, 1")
    p("s_cselect_b32 s61, 10, 12")
    p("v_lshlrev_b32 v12, s61, v17")
    p("v_add_u32 v12, v12, v19")
    p("v_lshl_add_u32 v12, v16, 4, v12")
    p("v_lshl_add_u32 v19, v17, 10, v19")
    p("v_lshrrev_b32 v17, 3, v16")
    p("v_and_b32 v18, 7, v16")
    p("v_lshl_add_u32 v17, v17, 4, v18")
    p("s_cmp_lt_u32 s44, 16")
    p("s_cselect_b64 vcc, -1, 0")
    csel(p, "s61", 256, 128)
    csel(p, "s62", 2048, 4096)
    p(f"s_cselect_b32 s56, {hex(f2u(32**-0.5 * math.log2(math.e)))}, 1.0")
    p("s_mov_b32 s57, s56")
    csel(p, "s63", QF_OFF, KV_OFF)
    p("s_cselect_b32 s6, 17, 18")
    p("v_cndmask_b32 v17, v17, v16, vcc")
    p("v_lshl_add_u32 v13, v17, 4, v19")
    p("v_add_u32 v14, s61, v13")
    if M16[0]:
        p("v_lshlrev_b32 v12, 4, v0")
        p("v_mov_b32 v13, v12")
        p("v_add_u32 v14, 0x400, v12")
    p("s_mov_b32 s52, 0")
    p("s_mov_b32 s53, s62")
    p("s_lshl_b32 s54, s62, 1")
    p("s_add_u32 s55, s54, s62")
    p("s_and_b32 s7, s44, 15")
    p("s_lshl_b32 s7, s7, 1")
    p("s_add_u32 s7, s7, s47")
    p("s_lshl_b32 s7, s7, s6")
    p("s_add_u32 s63, s63, s7")
    p("s_lshl_b32 s7, s43, 3")
    p("s_lshl_b32 s8, s46, 2")
    p("s_add_u32 s7, s7, s8")
    p("s_mul_i32 s8, s7, s62")
    p("s_add_u32 s63, s63, s8")
    p("s_lshl_b32 s9, s62, 2")
    srd(p, 32, 4, "s63", "s9")
    p("s_lshl_b32 s8, s43, 1")
    p("s_add_u32 s8, s8, s46")
    p("s_mul_i32 s8, s8, 917504")
    p("s_lshl_b32 s9, s44, 1")
    p("s_add_u32 s9, s9, s47")
    p("s_lshl_b32 s9, s9, 14")
    p("s_add_u32 s8, s8, s9")
    p(f"s_add_u32 s8, s8, {hex(HF_OFF)}")
    p("s_sub_u32 s9, s44, 28")
    p("s_lshl_b32 s9, s9, 2")
    p("s_add_u32 s9, s9, s47")
    p("s_lshl_b32 s9, s9, 19")
    p("s_lshl_b32 s10, s7, 12")
    p("s_add_u32 s9, s9, s10")
    p(f"s_add_u32 s9, s9, {hex(KV_OFF + 2048)}")
    p("s_cmp_eq_u32 s48, 1")
    p("s_cselect_b32 s8, s9, s8")
    csel(p, "s9", 5*262144 + 4*4096 - 2048, 0x4000)
    srd(p, 28, 4, "s8", "s9")
    p("s_mov_b32 s50, 0x2000")
    p(f"s_mov_b32 s58, {hex(f2u(-math.log2(math.e)))}")
    p("s_mov_b32 s59, s58")

def setup_pf(p, R0):
    if PF:
        p("s_lshl_b32 s3, s2, 2")
        p("s_add_u32 s3, s3, s45")
        p("s_lshl_b32 s3, s3, 6")
        p("v_add_u32 v45, s3, v0")
        p("v_lshlrev_b32 v45, 3, v45")
        srd(p, 68, 74, 0, D * D * 2)
        p("s_mov_b32 s51, 0")
        p("s_mov_b64 s[62:63], s[6:7]"); p("s_mov_b32 s61, 6"); p(f"s_mov_b32 s60, {hex(D*3*D*2)}"); p(f"s_mov_b32 s49, {R0*6144}")
        p("s_cmp_eq_u32 s45, 0")
        p("s_cbranch_scc1 L_k1_pfsel")
        p("s_mov_b64 s[62:63], s[8:9]"); p("s_mov_b32 s61, 7"); p(f"s_mov_b32 s60, {hex(D*F*2)}"); p(f"s_mov_b32 s49, {R0*7168}")
        p("s_cmp_eq_u32 s45, 1")
        p("s_cbranch_scc1 L_k1_pfsel")
        p("s_mov_b64 s[62:63], s[10:11]")
        p("s_cmp_eq_u32 s45, 2")
        p("s_cbranch_scc1 L_k1_pfsel")
        p("s_mov_b64 s[62:63], s[72:73]"); p("s_mov_b32 s61, 10"); p("s_mov_b32 s49, 0")
        p.label("L_k1_pfsel")
        srd(p, 64, 62, 0, "s60")
        p("s_lshl_b32 s72, s61, 15")
        p("s_mul_i32 s3, s2, s61")
        p("v_add_u32 v44, s3, v0")
        p("v_lshlrev_b32 v44, 7, v44")
        p("v_cmp_gt_u32 vcc, s61, v0")
        p("v_bfrev_b32 v17, 1")
        p("s_nop 0")
        p("v_cndmask_b32 v44, v17, v44, vcc")

def gen_k1(name="gemm1_kernel"):
    p = Prog()
    p("s_cmp_ge_u32 s2, 256")
    p("s_cbranch_scc1 L_k1_end")
    stamp(p, 0); stamp_rt(p, 1)
    p(f"s_load_dwordx2 s[4:5], s[0:1], {KA_WS}")
    p(f"s_load_dwordx2 s[6:7], s[0:1], {KA_WQKV}")
    p(f"s_load_dwordx4 s[8:11], s[0:1], {KA_WG}")
    if PF:
        p(f"s_load_dwordx2 s[72:73], s[0:1], {KA_WD}")
        p(f"s_load_dwordx2 s[74:75], s[0:1], {KA_WO}")
    code_prefetch(p, "k1", "L_k1_end", 0, 20, 76, n=2)
    p("v_lshrrev_b32 v11, 6, v0")
    p("v_and_b32 v0, 63, v0")
    p("v_readfirstlane_b32 s45, v11")
    setup_ids(p)
    p("s_waitcnt lgkmcnt(0)")
    stamp(p, 8)
    setup_srds(p)
    def pro_dma(t):
        for i, o in enumerate(dma_ops(p, t, f"d{t}")):
            o()
            if "m0" in p.ins[-1].text and p.ins[-1].text.startswith("s_add"):
                p("s_nop 0")
    pro_dma(0)
    stamp(p, 9)
    pro_dma(1)
    setup_pf(p, int(os.environ.get("K0PF", "192")))
    stamp(p, 7)
    setup_addrs(p)
    stamp(p, 2)
    p.wait(vm="d0")
    p("s_barrier")
    stamp(p, 3)
    for o in read_ops(p, 0, 0, "f0"): o()
    p("s_mov_b32 s42, 6")
    p("s_cmp_eq_u32 s48, 1")
    p.wait(lg="f0")
    p("s_cbranch_scc1 L_k1_v")
    head = p.mark()
    lin_all = []
    out_text = []
    final = Prog()
    final.ins = list(p.ins)
    for isV in (False, True):
        q = Prog(); q.vmq = list(p.vmq); q.lgq = list(p.lgq)
        sfx = "v" if isV else "f"
        marks = []
        iteration(q, 0, isV, dmas=[2, 3], pf="wd")
        iteration(q, 1, isV, dmas=[4, 5], pf="wd")
        for t in range(2, 26):
            if t % 4 == 2: marks.append(q.mark())
            iteration(q, t, isV, loopctl=(f"L_k1_loop_{sfx}" if t % 4 == 1 else None), dmas=[t + 4],
                      pf=("wo" if t % 4 == 0 else "wd"))
        marks.append(q.mark())
        iteration(q, 26, isV, dmas=[30])
        body = unify([q.ins[marks[i]:marks[i+1]] for i in range(6)])
        if STAMP:
            for i in range(5): q(f"v_readlane_b32 s{64+i}, v47, {[5,4,3,1,0][i]}")
        tail(q, isV)
        stamp(q, 5)
        if STAMP: q("s_waitcnt vmcnt(0)")
        stamp(q, 6); stamp_rt(q, 10)
        stamp_out(q, 11, 1, 4, "s45", extra=[64, 65, 66, 67, 68])
        q("s_endpgm")
        lin_all.append([i.text for i in p.ins] + [i.text for i in q.ins])
        if isV:
            final.label("L_k1_v")
        final.ins += q.ins[:marks[0]]
        final.ins.append(Ins(".p2align 6", "dir"))
        final.label(f"L_k1_loop_{sfx}")
        final.ins += body
        final.ins += q.ins[marks[6]:]
    final.label("L_k1_end")
    final("s_endpgm")
    launch = f"; @launch kernel={name} grid=(256,1,1) block=(256,1,1) lds=147456"
    return dict(name=name, prog=final, launch=launch, kd=kd(name, 512, 102, 256), lins=lin_all)
```

```python
from common import *
import k1_gemm1 as K1
import p2n

def ln_compute(p, R, X, T, vw, vr, lds0, smask, mid=None):
    for k in range(16):
        p(f"v_lshlrev_b32 v{X+2*k}, 16, v{R+k}")
        p(f"v_and_b32 v{X+2*k+1}, {smask}, v{R+k}")
    def pk(op, d, a, b, extra=""):
        p(f"v_pk_{op}_f32 v[{d}:{d+1}], v[{a}:{a+1}], v[{b}:{b+1}]{extra}")
    def cross(off, dst):
        pk("add", T, T, T + 2); pk("add", T + 4, T + 4, T + 6); pk("add", T, T, T + 4)
        p(f"v_add_f32 v{T}, v{T}, v{T+1}")
        p("s_nop 1")
        p(f"v_add_f32_dpp v{T}, v{T}, v{T} row_ror:8 row_mask:0xf bank_mask:0xf")
        p.lds(f"ds_write_b32 v{vw}, v{T} offset:{off}", "lw")
        p.wait(lg="lw")
        p("s_barrier")
        for j in range(4):
            p.lds(f"ds_read_b128 v[{T+8+4*j}:{T+11+4*j}], v{vr} offset:{off+16*j}", "lr")
        p.wait(lg="lr")
        for j in range(4): pk("add", T + 8 + 2 * j, T + 8 + 2 * j, T + 16 + 2 * j)
        pk("add", T + 8, T + 8, T + 12); pk("add", T + 10, T + 10, T + 14); pk("add", T + 8, T + 8, T + 10)
        p(f"v_add_f32 v{dst}, v{T+8}, v{T+9}")
        p(f"v_mul_f32 v{dst}, 0x3a800000, v{dst}")
    for a in range(4): pk("add", T + 2 * a, X + 2 * a, X + 8 + 2 * a)
    for k in range(8, 16): pk("add", T + 2 * (k % 4), T + 2 * (k % 4), X + 2 * k)
    M = T + 24; Vv = T + 26; Dd = T + 28
    cross(0, M)
    NEG = " op_sel_hi:[1,0] neg_lo:[0,1] neg_hi:[0,1]"
    for k in range(16):
        d = Dd + 2 * (k % 8)
        pk("add", d, X + 2 * k, M, NEG)
        if k >= 3:
            kk = k - 3; dd = Dd + 2 * (kk % 8); a = T + 2 * (kk % 4)
            if kk < 4: pk("mul", a, dd, dd)
            else: p(f"v_pk_fma_f32 v[{a}:{a+1}], v[{dd}:{dd+1}], v[{dd}:{dd+1}], v[{a}:{a+1}]")
    for kk in range(13, 16):
        dd = Dd + 2 * (kk % 8); a = T + 2 * (kk % 4)
        p(f"v_pk_fma_f32 v[{a}:{a+1}], v[{dd}:{dd+1}], v[{dd}:{dd+1}], v[{a}:{a+1}]")
    p(f"v_cvt_pk_bf16_f32 v{Dd}, v{M}, v{M}")
    p(f"v_and_b32 v{M}, {smask}, v{Dd}")
    if mid: mid()
    cross(1024, Vv)
    p(f"v_cvt_pk_bf16_f32 v{Dd}, v{Vv}, v{Vv}")
    p(f"v_and_b32 v{Vv}, {smask}, v{Dd}")
    p(f"v_add_f32 v{Vv}, 0x3727c5ac, v{Vv}")
    p(f"v_cvt_pk_bf16_f32 v{Dd}, v{Vv}, v{Vv}")
    p(f"v_and_b32 v{Vv}, {smask}, v{Dd}")
    p(f"v_sqrt_f32 v{Vv}, v{Vv}")
    pk("add", X, X, M, NEG)
    p(f"v_cvt_pk_bf16_f32 v{Dd}, v{Vv}, v{Vv}")
    p(f"v_and_b32 v{Vv}, {smask}, v{Dd}")
    p(f"v_rcp_f32 v{Vv}, v{Vv}")
    for k in range(1, 16): pk("add", X + 2 * k, X + 2 * k, M, NEG)
    for k in range(16): p(f"v_cvt_pk_bf16_f32 v{R+k}, v{X+2*k}, v{X+2*k+1}")
    for k in range(16):
        p(f"v_lshlrev_b32 v{X+2*k}, 16, v{R+k}")
        p(f"v_and_b32 v{X+2*k+1}, {smask}, v{R+k}")
    for k in range(16): pk("mul", X + 2 * k, X + 2 * k, Vv, " op_sel_hi:[1,0]")

def gen_mega(name):
    K1.MERGED[0] = True
    K1.M16[0] = True
    p = Prog()
    def run_ops(ops):
        for o in ops:
            o()
            if "m0," in p.ins[-1].text: p("s_nop 0")
    p("s_cmp_ge_u32 s2, 256")
    p("s_cbranch_scc1 L_k2_end")
    stamp(p, 0); stamp_rt(p, 1)
    p(f"s_load_dwordx2 s[30:31], s[0:1], {KA_X}")
    p(f"s_load_dwordx4 s[76:79], s[0:1], {KA_DBG}")
    if CPF:
        p("s_getpc_b64 s[62:63]")
        p.label("L_p0_pc")
        p("s_lshr_b32 s3, s2, 3")
        p("s_and_b32 s3, s3, 3")
        p("s_lshl_b32 s3, s3, 14")
        p("v_lshlrev_b32 v20, 7, v0")
        p("v_add_u32 v21, s3, v20")
        p("v_subrev_u32 v21, 0x2000, v21")
        p("v_lshrrev_b32 v20, 1, v20")
        p("v_cmp_gt_u32 vcc, 128, v0")
        p("s_nop 1")
        p("v_cndmask_b32 v20, v21, v20, vcc")
        p("v_min_u32 v20, L_k2_fallback-L_p0_pc, v20")
        p.vmem("global_load_dword v46, v20, s[62:63]", "cpf")
    p(f"s_load_dwordx2 s[6:7], s[0:1], {KA_WQKV}")
    p(f"s_load_dwordx4 s[8:11], s[0:1], {KA_WG}")
    p(f"s_load_dwordx2 s[72:73], s[0:1], {KA_WD}")
    p(f"s_load_dwordx2 s[74:75], s[0:1], {KA_WO}")
    R, X, T = 56, 72, 104
    VIN, VOUT, VW, VR = 48, 49, 50, 51
    LDS0 = 147456
    p("v_and_b32 v20, 7, v0")
    p("v_lshrrev_b32 v21, 3, v0")
    p(f"v_lshlrev_b32 v{VIN}, 11, v20")
    p(f"v_lshl_add_u32 v{VIN}, v21, 4, v{VIN}")
    p("v_lshrrev_b32 v11, 6, v0")
    p("s_lshl_b32 s33, s2, 14")
    p("v_readfirstlane_b32 s45, v11")
    p("s_waitcnt lgkmcnt(0)")
    p("s_mov_b64 s[4:5], s[78:79]")
    p("s_or_b32 s3, s2, s45")
    p("s_cmp_lg_u32 s3, 0")
    p("s_cbranch_scc1 L_p0_nozero")
    srd(p, 56, 4, FL_OFF, 32768)
    p("v_lshlrev_b32 v24, 7, v0")
    p("v_mov_b32 v25, 0")
    for i in range(4):
        p(f"s_movk_i32 s3, {hex(8192*i)}")
        p(f"buffer_store_dword v25, v24, s[56:59], s3 offen sc1")
    p.label("L_p0_nozero")
    nz = len(p.vmq)
    p("s_mov_b32 s28, s30"); p("s_and_b32 s29, s31, 0xffff"); p(f"s_mov_b32 s30, {hex(S*D*2)}"); p("s_mov_b32 s31, 0x20000")
    for i in range(4):
        p.vmem(f"buffer_load_dwordx4 v[{R+4*i}:{R+4*i+3}], v{VIN}, s[28:31], s33 offen offset:{512*i} {os.environ.get('XPOL', '')}", "x")
    stamp(p, 8, 1); stamp(p, 8, 4)
    p(f"v_lshrrev_b32 v{VOUT}, 2, v21")
    p(f"v_lshlrev_b32 v{VOUT}, 14, v{VOUT}")
    p("v_and_b32 v22, 3, v21")
    p(f"v_lshl_add_u32 v{VOUT}, v22, 8, v{VOUT}")
    p(f"v_lshl_add_u32 v{VOUT}, v20, 4, v{VOUT}")
    p(f"v_mul_u32_u24 v{VR}, 80, v20")
    p(f"v_add_u32 v{VR}, {LDS0}, v{VR}")
    p("v_lshrrev_b32 v22, 4, v0")
    p(f"v_lshl_add_u32 v{VW}, v22, 2, v{VR}")
    p("v_and_b32 v0, 63, v0")
    K1.setup_ids(p)
    K1.setup_srds(p)
    BE = int(os.environ.get("BE", "2"))
    if BE >= 1: run_ops(K1.dma_ops(p, 0, "d0", "B"))
    K1.setup_pf(p, 192 if os.environ.get("PFE") == "n" else 64)
    if BE >= 2: run_ops(K1.dma_ops(p, 1, "d1", "B"))
    p("s_or_b32 s3, s2, s45")
    p("s_cmp_lg_u32 s3, 0")
    p("s_cbranch_scc1 L_p0_nogo")
    p("v_mov_b32 v20, 1")
    p("v_mov_b32 v21, 0")
    p(f"s_waitcnt vmcnt({len(p.vmq) - nz})")
    p("s_mov_b64 exec, 1")
    p("global_store_dword v21, v20, s[76:77] sc1")
    p("s_mov_b64 exec, -1")
    p.label("L_p0_nogo")
    PFE = os.environ.get("PFE", "1") == "1"
    PFN = os.environ.get("PFE", "1") == "n"
    if PFE:
        for i in range(4):
            p.vmem("buffer_load_dword v46, v44, s[64:67], s49 offen", "pf")
            p("s_add_u32 s49, s49, s72")
    p("s_lshr_b32 s3, s2, 5")
    p("s_lshl_b32 s3, s3, 19")
    p("s_lshl_b32 s73, s2, 9")
    p("s_and_b32 s73, s73, 0x3c00")
    p("s_add_u32 s3, s3, s73")
    p("s_and_b32 s73, s2, 1")
    p("s_lshl_b32 s73, s73, 7")
    p("s_add_u32 s3, s3, s73")
    if XN_OFF: p(f"s_add_u32 s3, s3, {hex(XN_OFF)}")
    srd(p, 60, 4, "s3", 524288 - 16384 + 1024)
    p("s_mov_b32 s73, 0xffff0000")
    stamp(p, 7, 1); stamp(p, 7, 4)
    p.wait(vm="x")
    stamp(p, 2, 1); stamp(p, 2, 4)
    ln_compute(p, R, X, T, VW, VR, LDS0, "s73", mid=lambda: (p("v_mov_b32 v21, 0"), p.vmem("global_load_dword v23, v21, s[76:77] sc1", "go")))
    for i in range(4):
        for k in range(4):
            kk = 4 * i + k
            p(f"v_cvt_pk_bf16_f32 v{R+kk}, v{X+2*kk}, v{X+2*kk+1}")
        p.vmem(f"buffer_store_dwordx4 v[{R+4*i}:{R+4*i+3}], v{VOUT}, s[60:63], 0 offen sc1", "xs")
        if i < 3: p(f"v_add_u32 v{VOUT}, 0x20000, v{VOUT}")
    stamp(p, 4, 4)
    K1.setup_addrs(p)
    p2n.qkv_poll_addr(p, 15, 24)
    p("s_mov_b64 s[74:75], s[76:77]")
    srd(p, 76, 4, FL_OFF, 32768)
    p("s_lshl_b32 s73, s2, 7")
    p("s_lshl_b32 s60, s43, 12")
    p("v_and_b32 v20, 31, v0")
    p("v_lshlrev_b32 v20, 7, v20")
    p("v_mov_b32 v22, 1")
    stamp(p, 5, 4)
    p.wait(vm="xs")
    p("s_barrier")
    stamp(p, 6, 4)
    p("s_cmp_eq_u32 s45, 3")
    p("s_cbranch_scc1 L_p0_sig")
    for i in range(0 if (PFE or PFN) else 4):
        p("buffer_load_dword v46, v44, s[64:67], s49 offen")
        p("s_add_u32 s49, s49, s72")
    p("s_branch L_p0_polled")
    p.label("L_p0_sig")
    p("s_mov_b32 s61, 0x40000")
    p.label("L_p0_go")
    p("v_cmp_ne_u32 vcc, 1, v23")
    p("s_sub_u32 s61, s61, 1")
    p("s_cmp_eq_u32 s61, 0")
    p("s_cbranch_scc1 L_p0_gone")
    p("s_nop 1")
    p("s_cbranch_vccz L_p0_gone")
    p("global_load_dword v23, v21, s[74:75] sc1")
    p("s_waitcnt vmcnt(0)")
    p("s_branch L_p0_go")
    p.label("L_p0_gone")
    p("s_mov_b64 exec, 1")
    p("buffer_store_dword v22, v21, s[76:79], s73 offen sc1")
    p("s_mov_b64 exec, -1")
    p("s_mov_b32 s61, 0x40000")
    p.label("L_p0_poll")
    p("buffer_load_dword v23, v20, s[76:79], s60 offen sc1")
    p("s_sub_u32 s61, s61, 1")
    p("s_waitcnt vmcnt(0)")
    p("v_cmp_gt_u32 vcc, 1, v23")
    p("s_cmp_eq_u32 s61, 0")
    p("s_cbranch_scc1 L_p0_polled")
    p("s_nop 2")
    p("s_cbranch_vccnz L_p0_poll")
    p.label("L_p0_polled")
    p("s_barrier")
    stamp(p, 3, 1); stamp(p, 3, 4)
    run_ops(K1.dma_ops(p, 0, "d0", "A" if BE >= 1 else "AB"))
    run_ops(K1.dma_ops(p, 1, "d1", "A" if BE >= 2 else "AB"))
    HV = os.environ.get("HV", "2")
    win, h0, h1 = {"0": ([], [2, 3], [4, 5]),
                   "1": ([(2, "AB")], [3, (4, "B")], [(4, "A"), 5]),
                   "2": ([(2, "B")], [(2, "A"), 3], [4, 5]),
                   "3": ([(2, "B")], [(2, "A"), 3, (4, "B")], [(4, "A"), 5])}[HV]
    for d_, parts in win: run_ops(K1.dma_ops(p, d_, f"d{d_}", parts))
    p.wait(vm="d0")
    p("s_barrier")
    for o in K1.read_ops(p, 0, 0, "f0"): o()
    p("s_mov_b32 s42, 6")
    p("s_cmp_eq_u32 s48, 1")
    p.wait(lg="f0")
    stamp(p, 9, 1); stamp(p, 9, 4)
    p("s_cbranch_scc1 L_k1_v")
    k2 = p2n.gen_p2()
    lin_all = []
    final = Prog()
    final.ins = list(p.ins)
    for isV in (False, True):
        q = Prog(); q.vmq = list(p.vmq); q.lgq = list(p.lgq)
        sfx = "v" if isV else "f"
        marks = []
        K1.iteration(q, 0, isV, dmas=h0, pf="wd")
        K1.iteration(q, 1, isV, dmas=h1, pf="wd")
        if os.environ.get("ST4") == "1": stamp(q, 3, 1)
        for t in range(2, 26):
            if t % 4 == 2: marks.append(q.mark())
            K1.iteration(q, t, isV, loopctl=(f"L_k1_loop_{sfx}" if t % 4 == 1 else None), dmas=[t + 4],
                         pf=("wo" if t % 4 == 0 else "wd"))
        marks.append(q.mark())
        K1.iteration(q, 26, isV, dmas=[30])
        body = unify([q.ins[marks[i]:marks[i+1]] for i in range(6)])
        if STAMP and os.environ.get("ST4") == "1":
            q("v_readlane_b32 s94, v47, 5"); q("v_readlane_b32 s96, v47, 0"); q("v_readlane_b32 s84, v47, 4")
        hooks = []
        late = (int(os.environ.get("QPL", "30")), lambda q=q: q.vmem("buffer_load_dword v47, v15, s[76:79], 0 offen sc1", "qp"))
        if not isV:
            MS = int(os.environ.get("MS", "250"))
            def chk(q=q):
                assert sum(1 for x in q.ins if x.tag == "stq") == 8
                q.wait(vm="stq", force=True)
            hooks += [(MS, chk), (MS + 1, lambda q=q: q("s_barrier")), (MS + 2, lambda q=q: p2n.signal(q, "f2", 2, 76, "s73", t0=44))]
        K1.tail(q, isV, hooks=hooks, late=late)
        stamp(q, 5, 1)
        if isV:
            q("s_waitcnt vmcnt(0)")
            q("s_barrier")
            p2n.signal(q, "v3", 3, 76, "s73")
        else:
            assert q._cnt(q.vmq, ["qp"]) == p2n.QP_YOUNGER, q._cnt(q.vmq, ["qp"])
            q("s_branch L_p2")
        lin_all.append([i.text for i in p.ins] + [i.text for i in q.ins] + k2["lins"][0][:200])
        if isV: final.label("L_k1_v")
        final.ins += q.ins[:marks[0]]
        final.ins.append(Ins(".p2align 6", "dir"))
        final.label(f"L_k1_loop_{sfx}")
        final.ins += body
        final.ins += q.ins[marks[6]:]
    final.ins += k2["prog"].ins
    launch = f"; @launch grid=(256,1,1) block=(256,1,1) lds=163840"
    return dict(name=name, prog=final, launch=launch, kd=kd(name, 512, 102, 256), lins=lin_all + k2["lins"])
```

```python
from common import *
from k3_final import tile_map
import math, struct
def f2u(x): return struct.unpack("<I", struct.pack("<f", x))[0]
HSC = os.environ.get("HSC", "sc1")
sc = " " + HSC
M16 = "v_mfma_f32_16x16x32_bf16"
S_ = [16, 32]; CB = 48; P_ = [80, 88]; QR = 96; SEL = 112
VRD = 64; VXW = 68; VXR = 71; VDMA = 116; VROT = 120; HB = 128
OA = 0; LA = 32; KB = 48; VB = 64; ACC = 80; WFR = 208
def r4(b, f="v"): return f"{f}[{b}:{b+3}]"
def Kf(j, f): return r4(KB + 8 * (j & 1) + 4 * f, "a")
def Vf(j, f): return r4(VB + 8 * (j & 1) + 4 * f, "a")
def qk(blk, j, zero=False):
    out = []
    for kb, q in ((0, 0), (0, 1), (1, 1), (1, 0)):
        c = "0" if zero else r4(CB + 4 * (2 * blk + q))
        out.append(f"{M16} {r4(S_[blk] + 8*q + 4*kb)}, {Kf(j, kb)}, {r4(QR + 4*(2*blk+q))}, {c}")
    return out
def pv(blk, j):
    out = []
    for q, what in ((0, 0), (0, 1), (0, "L"), (1, "L"), (1, 1), (1, 0)):
        P = r4(P_[blk] + 4 * q); qq = 2 * blk + q
        if what == "L":
            d = r4(LA + 4 * qq, "a"); out.append(f"{M16} {d}, {r4(SEL)}, {P}, {d}")
        else:
            d = r4(OA + 8 * qq + 4 * what, "a"); out.append(f"{M16} {d}, {Vf(j, what)}, {P}, {d}")
    return out
def softmax_valu(blk):
    S = S_[blk]; P = P_[blk]
    e = [(f"v_exp_f32 v{S+i}, v{S+i}", 8) for i in range(16)]
    c = [(f"v_cvt_pk_bf16_f32 v{P+k}, v{S+2*k}, v{S+2*k+1}", 4) for k in range(8)]
    out = []
    for i in range(16):
        out.append(e[i])
        if i >= 2 and i % 2 == 0: out.append(c[(i - 2) // 2])
    return out[:-2] + [e[15], c[6], c[7]]

def fill16(p, mf, valu, side):
    n = len(mf)
    ext = {i: [] for i in range(n)}
    for g_, fn, kind in side:
        assert 0 <= g_ < n, (g_, n)
        ext[g_].append((fn, kind))
    cost = []
    for i in range(n):
        c = 4 * len(ext[i])
        if ext[i] and ext[i][0][1] == "s": c -= 4
        cost.append(c)
    tot = sum(cost) + sum(c for _, c in valu)
    cum = 0; vi = 0
    for i in range(n):
        p(mf[i])
        for fn, _ in ext[i]: fn()
        used = cost[i]; cum += cost[i]
        target = tot * (i + 1) / n
        while vi < len(valu):
            c = valu[vi][1]
            need_later = sum(max(0, 8 - cost[k]) for k in range(i + 1, n))
            left = sum(x for _, x in valu[vi:])
            if i == n - 1 or used < 8 or (cum + c / 2 <= target and left - c >= need_later):
                p(valu[vi][0]); cum += c; used += c; vi += 1
            else: break

def wg_of(p, nt, mt, out, t1, t2, t3):
    p(f"v_mul_u32_u24 v{out}, 43, v{nt}")
    p(f"v_lshrrev_b32 v{out}, 7, v{out}")
    p(f"v_mul_u32_u24 v{t1}, 3, v{out}")
    p(f"v_sub_u32 v{t1}, v{nt}, v{t1}")
    p(f"v_lshl_add_u32 v{out}, v{t1}, 6, v{out}")
    p(f"v_and_b32 v{t1}, 3, v{nt}")
    p(f"v_lshlrev_b32 v{t1}, 1, v{t1}")
    p(f"v_lshrrev_b32 v{t2}, 2, v{mt}")
    p(f"v_bfe_u32 v{t3}, v{nt}, 2, 1")
    p(f"v_xor_b32 v{t2}, v{t2}, v{t3}")
    p(f"v_xor_b32 v{t2}, 1, v{t2}")
    p(f"v_add3_u32 v{t1}, v{t1}, v{t2}, 64")
    p(f"v_add_u32 v{t1}, 128, v{t1}")
    p(f"v_cmp_gt_u32 vcc, 24, v{nt}")
    p("s_nop 1")
    p(f"v_cndmask_b32 v{out}, v{t1}, v{out}, vcc")
    p(f"v_lshl_add_u32 v{out}, v{mt}, 3, v{out}")
    p(f"v_lshlrev_b32 v{out}, 7, v{out}")

def qkv_poll_addr(p, out, t):
    p("s_and_b32 s3, s2, 7")
    p("s_lshl_b32 s3, s3, 2")
    p("s_lshr_b32 s6, s2, 6")
    p("s_add_u32 s3, s3, s6")
    p("s_lshr_b32 s6, s3, 1")
    p("s_lshr_b32 s7, s3, 3")
    p("s_add_u32 s7, s7, 28")
    p(f"v_mov_b32 v{t}, s6")
    p(f"v_mov_b32 v{t+2}, s7")
    p("s_bfe_u32 s3, s2, 0x30003")
    p(f"v_mov_b32 v{t+1}, s3")
    p(f"v_and_b32 v{t+3}, 7, v0")
    p("v_cmp_gt_u32 vcc, 16, v0")
    p("s_add_u32 s6, s6, 16")
    p(f"v_mov_b32 v{t+4}, s6")
    p(f"v_cndmask_b32 v{t}, v{t}, v{t+2}, vcc")
    p(f"v_cndmask_b32 v{t+1}, v{t+1}, v{t+3}, vcc")
    p("v_cmp_gt_u32 vcc, 8, v0")
    p("s_nop 1")
    p(f"v_cndmask_b32 v{t}, v{t}, v{t+4}, vcc")
    wg_of(p, t, t + 1, out, t + 2, t + 3, t + 4)

def spin(p, tag, vdst, vaddr, srdn, soff, need, first_check=True):
    p("s_mov_b32 s70, 0x40000")
    if not first_check:
        p(f"s_branch L_{tag}_ld")
    p.label(f"L_{tag}_ck")
    p(f"v_cmp_gt_u32 vcc, {need}, v{vdst}")
    p("s_sub_u32 s70, s70, 1")
    p("s_cmp_eq_u32 s70, 0")
    p(f"s_cbranch_scc1 L_{tag}_ok")
    p("s_nop 1")
    p(f"s_cbranch_vccz L_{tag}_ok")
    p.label(f"L_{tag}_ld")
    p(f"buffer_load_dword v{vdst}, v{vaddr}, s[{srdn}:{srdn+3}], {soff} offen sc1")
    p("s_waitcnt vmcnt(0)")
    p(f"s_branch L_{tag}_ck")
    p.label(f"L_{tag}_ok")

def signal(p, tag, val, srdn, soff, t0=6, cond=None):
    p("s_cmp_lg_u32 s45, 0" if cond is None else cond)
    p(f"s_cbranch_scc1 L_{tag}_ns")
    p(f"v_mov_b32 v{t0}, {val}")
    p(f"v_mov_b32 v{t0+1}, 0")
    p("s_mov_b64 exec, 1")
    p(f"buffer_store_dword v{t0}, v{t0+1}, s[{srdn}:{srdn+3}], {soff} offen sc1")
    p("s_mov_b64 exec, -1")
    p.label(f"L_{tag}_ns")

QP_YOUNGER = int(os.environ.get('QPY', '1'))
def gen_p2():
    p = Prog()
    def run_ops(ops):
        for o in ops:
            o()
            if "m0," in p.ins[-1].text: p("s_nop 0")
    p.label("L_p2")
    p(f"s_load_dwordx4 s[60:63], s[0:1], {KA_WD}")
    p(f"s_load_dwordx2 s[8:9], s[0:1], {KA_WO}")
    p(f"s_load_dwordx2 s[10:11], s[0:1], {KA_X}")
    p("v_lshlrev_b32 v1, 4, v0")
    p("s_and_b32 s44, s2, 7")
    p("s_lshl_b32 s44, s44, 2")
    p("s_lshr_b32 s43, s2, 3")
    p("s_lshr_b32 s3, s43, 3")
    p("s_add_u32 s44, s44, s3")
    p("s_and_b32 s43, s43, 7")
    p("s_lshl_b32 s36, s45, 12")
    p("s_mov_b32 s37, s36")
    p("s_lshl_b32 s52, s44, 18")
    p(f"s_add_u32 s52, s52, {hex(KV_OFF)}")
    p("s_lshl_b32 s3, s44, 17")
    p("s_lshl_b32 s6, s43, 14")
    p("s_add_u32 s3, s3, s6")
    p("s_add_u32 s3, s3, s36")
    p(f"s_add_u32 s53, s3, {hex(QF_OFF)}")
    srd(p, 16, 4, "s53", 4096)
    srd(p, 12, 4, "s52", 262144)
    p("s_or_b32 s71, s48, s45")
    def kv_dma(c):
        ops = [lambda: p("s_mov_b32 m0, s37")]
        ops += [lambda i=i: p.vmem(f"buffer_load_dwordx4 v1, s[12:15], s36 offen offset:{1024*i}{sc} lds", f"kv{c}") for i in range(4)]
        ops.append(lambda: p("s_add_u32 s36, s36, 0x4000"))
        ops.append(lambda: p("s_add_u32 s37, s37, 0x4000"))
        ops.append(lambda: p("s_and_b32 s37, s37, 0xffff"))
        return ops
    tile_map(p, "s46", "s47")
    p("s_lshl_b32 s41, s45, 14")
    p("s_add_u32 s41, s41, 0x10000")
    p("v_lshrrev_b32 v6, 3, v0")
    p("v_lshrrev_b32 v7, 4, v0")
    p("v_and_b32 v8, 7, v0")
    p("v_lshlrev_b32 v9, 1, v7")
    p("v_xor_b32 v8, v8, v9")
    p("v_lshlrev_b32 v8, 4, v8")
    p(f"v_lshl_add_u32 v{VDMA}, v6, 11, v8")
    for i in range(1, 4): p(f"v_add_u32 v{VDMA+i}, {hex(i*(16384-1024))}, v{VDMA}")
    p("s_waitcnt lgkmcnt(0)")
    p(f"s_mul_i32 s3, s45, {896*2048}")
    p("s_lshl_b32 s6, s47, 7")
    p("s_add_u32 s3, s3, s6")
    p(f"s_sub_u32 s7, {896*2048}, s6")
    srd(p, 28, 60, "s3", "s7")
    p("s_mov_b32 s39, 0"); p("s_mov_b32 s40, 0")
    def w_dma(fg):
        ops = [lambda: p(f"s_add_u32 m0, s41, {(fg & 1)*4096}")]
        ops += [lambda i=i: p.vmem(f"buffer_load_dwordx4 v{VDMA+i}, s[28:31], s40 offen offset:{1024*i} lds", f"w{fg}") for i in range(4)]
        ops.append(lambda: p("s_add_u32 s40, s40, 0x10000"))
        if fg & 1: ops.append(lambda: p("s_xor_b32 s41, s41, 0x2000"))
        return ops
    SPL = int(os.environ.get('SPL', '1'))
    def check():
        p(f"s_waitcnt vmcnt({QP_YOUNGER})")
        spin(p, "qkv", 47, 15, 76, "0", 2)
        p("s_barrier")
        stamp(p, 2, 2)
        for i in range(4):
            p.vmem(f"buffer_load_dwordx4 {r4(QR+4*i)}, v1, s[16:19], 0 offen offset:{1024*i}{sc}", "q")
        for f in range(2):
            p.vmem(f"buffer_load_dwordx4 {Kf(0,f)}, v1, s[12:15], 0 offen offset:{1024*f}{sc}", "q")
        run_ops(kv_dma(0))
        run_ops(w_dma(0))
    p("v_lshrrev_b32 v6, 2, v0")
    p("v_bfe_u32 v7, v0, 3, 2")
    p("v_and_b32 v8, 3, v0")
    p("v_lshlrev_b32 v8, 3, v8")
    p("v_lshl_add_u32 v8, v6, 7, v8")
    p("v_add_u32 v8, s41, v8")
    for nb in range(4):
        p(f"v_xor_b32 v9, {nb}, v7")
        p(f"v_lshl_add_u32 v{VRD+nb}, v9, 5, v8")
    for a in range(4):
        p(f"s_add_u32 s3, s45, {a}")
        p("s_and_b32 s3, s3, 3")
        p("s_lshl_b32 s6, s3, 11")
        p(f"v_add_u32 v{VROT+a}, s6, v1")
        p("s_lshl_b32 s6, s3, 13")
        p("s_add_u32 s6, s6, 0x20000")
        p(f"v_add_u32 v{VXR if a == 0 else VXW + a - 1}, s6, v1")
    p("s_mul_i32 s3, s46, 917504")
    p(f"s_mul_i32 s6, s45, {28*8192}")
    p("s_add_u32 s3, s3, s6")
    p(f"s_add_u32 s3, s3, {hex(HF_OFF)}")
    srd(p, 24, 4, "s3", 28 * 8192)
    if SPL == 0: check()
    p("s_lshl_b32 s3, s43, 19")
    p("s_lshl_b32 s6, s45, 17")
    p("s_add_u32 s3, s3, s6")
    p("s_lshl_b32 s6, s44, 11")
    p("s_add_u32 s3, s3, s6")
    p(f"s_add_u32 s3, s3, {hex(OF_OFF)}")
    srd(p, 20, 4, "s3", 65536 + 2048)
    p("s_mov_b32 s50, 0x10000")
    p("v_and_b32 v2, 3, v0")
    p("v_cmp_eq_u32 vcc, 0, v2")
    p("v_mov_b32 v3, 0x3f803f80")
    p("v_mov_b32 v4, v1")
    p(f"v_cndmask_b32 v{SEL}, 0, v3, vcc")
    for i in range(1, 4): p(f"v_mov_b32 v{SEL+i}, v{SEL}")
    p("v_add_u32 v5, 0x4000, v1")
    p("s_mov_b32 s38, 0x4000")
    p("s_mov_b32 s51, 0xffff0000")
    p(f"s_mov_b32 s58, {hex(f2u(-math.log2(math.e)))}")
    p("s_mov_b32 s59, s58")
    p("s_lshl_b32 s6, s47, 7")
    p(f"s_sub_u32 s7, {D*D*2}, s6")
    srd(p, 32, 8, "s6", "s7")
    p("s_lshl_b32 s48, s45, 16")
    p("s_lshl_b32 s49, s45, 12")
    if SPL == 1: check()
    p("v_min_u32 v6, 6, v0")
    p("s_mul_i32 s3, s45, 7")
    p("v_add_u32 v6, s3, v6")
    p("s_lshr_b32 s69, s46, 1")
    p("v_mov_b32 v7, s69")
    wg_of(p, 6, 7, 14, 8, 9, 10)
    p("s_lshl_b32 s69, s69, 10")
    p("v_and_b32 v12, 7, v0")
    p("v_bfe_u32 v13, v0, 3, 2")
    p("v_lshl_add_u32 v12, v13, 6, v12")
    p("v_lshlrev_b32 v12, 7, v12")
    if SPL == 2: check()
    for i in range(0, 48): p(f"v_accvgpr_write_b32 a{i}, 0")
    NZ = int(os.environ.get("NZ", "64"))
    for i in range(NZ): p(f"v_accvgpr_write_b32 a{ACC+i}, 0")
    p.wait(vm="q")
    for blk in range(2):
        for t in qk(blk, 0, True): p(t)
    p("s_barrier")
    signal(p, "b3", 3, 76, "s73", cond="s_cmp_lg_u32 s71, 0")
    stamp(p, 8, 2)
    for i in range(NZ, NZ + 8): p(f"v_accvgpr_write_b32 a{ACC+i}, 0")
    def rowmax(q_, mreg):
        for stage in ("16", "32"):
            for qq in range(4): q_(f"v_mov_b32 v{mreg+4+qq}, v{mreg+qq}")
            q_("s_nop 0")
            for qq in range(4): q_(f"v_permlane{stage}_swap_b32 v{mreg+qq}, v{mreg+4+qq}")
            for qq in range(4): q_(f"v_max_f32 v{mreg+qq}, v{mreg+qq}, v{mreg+4+qq}")
        for qq in range(4):
            for i in range(4): q_(f"v_sub_f32 v{CB+4*qq+i}, 0, v{mreg+qq}")
    MR = 72
    for qq in range(4): p(f"v_max3_f32 v{MR+qq}, v{16+8*qq}, v{17+8*qq}, v{18+8*qq}")
    for qq in range(4): p(f"v_max3_f32 v{MR+qq}, v{MR+qq}, v{19+8*qq}, v{20+8*qq}")
    for qq in range(4): p(f"v_max3_f32 v{MR+qq}, v{MR+qq}, v{21+8*qq}, v{22+8*qq}")
    for qq in range(4): p(f"v_max_f32 v{MR+qq}, v{MR+qq}, v{23+8*qq}")
    rowmax(p, MR)
    for qq in range(2):
        for i in range(8): p(f"v_sub_f32 v{16+8*qq+i}, v{16+8*qq+i}, v{MR+qq}")
    p("s_mov_b32 s42, 13")
    p.wait(vm="kv0")
    p("s_barrier")
    stamp(p, 3, 2)
    NC = 16; NKS = 56; KOFF = 4
    WT = os.environ.get('WT', '1') == '1'
    OT = os.environ.get('OT', '1') == '1'
    def hreg(k, n): return r4(HB + 16 * (k % 4) + 4 * n)
    def h_loads(k):
        s_ = k & 1
        ops = [lambda n=n: p.vmem(f"buffer_load_dwordx4 {hreg(k, n)}, v{VROT + 2*s_ + (n>>1)}, s[24:27], s39 offen offset:{1024*(n&1)}{sc}", f"h{k}") for n in range(4)]
        if s_: ops.append(lambda: p("s_add_u32 s39, s39, 0x2000"))
        return ops
    def w_reads(fg, half):
        ops = []
        for nb in (2 * half, 2 * half + 1):
            for e in range(2):
                b = WFR + 16 * (fg & 1) + 4 * nb + 2 * e
                ops.append(lambda b=b, nb=nb, e=e: p.lds(f"ds_read_b64_tr_b16 a[{b}:{b+1}], v{VRD+nb} offset:{(fg & 1)*4096 + e*2048}", f"f{fg}"))
        return ops
    def gmf(k, ph):
        a = 2 * (k & 1) + ph; fg = k >> 1
        out = []
        for u in range(2):
            for nb in (range(4) if u == 0 else range(3, -1, -1)):
                d = r4(ACC + 32 * a + 16 * u + 4 * nb, "a")
                out.append(f"{M16} {d}, {r4(WFR + 16*(fg&1) + 4*nb, 'a')}, {hreg(k, 2*ph + u)}, {d}")
        return out
    WOFF = [0, 0x4000, 0x8000, 0x10000, 0x14000, 0x18000, 0x1c000, 0xc000]
    def wo_dma(g_):
        ops = [lambda: p(f"s_add_u32 s3, s48, {hex(g_ * 0x40000)}"), lambda: p(f"s_add_u32 m0, s49, {hex(WOFF[g_])}")]
        ops += [lambda n=n: p.vmem(f"buffer_load_dwordx4 v{VDMA+n}, s[32:35], s3 offen offset:{1024*n} lds", f"wo{g_}") for n in range(4)]
        return ops
    XT = {1: 128, 2: 192, 3: 160}
    def XW(a): return [lambda q=q: p.lds(f"ds_write_b128 v{VXW+a-1}, {r4(ACC + 32*a + 4*q, 'a')} offset:{1024*q}", f"xw{a}") for q in range(8)]
    def XR(a): return [lambda q=q: p.lds(f"ds_read_b128 {r4(XT[a] + 4*q)}, v{VXR} offset:{1024*q}", f"xr{a}") for q in range(8)]
    marks = []
    for c in range(NC):
        marks.append(p.mark())
        inloop = 1 <= c <= 13
        for i in range(4):
            j = 4 * c + i
            k = j - KOFF
            fused = 0 <= k < NKS
            if j == 56: stamp(p, 5, 3)
            if j == 60: stamp(p, 7, 3)
            for ph in range(2):
                side = []
                def V(g_, fn): side.append((g_, fn, "v"))
                def SC(g_, fn): side.append((g_, fn, "s"))
                def T(g_, text): side.append((g_, lambda: p(text), "s"))
                va = softmax_valu(ph)
                if ph == 0:
                    a_qk = qk(1, j); a_pv = pv(1, j - 1) if j > 0 else []
                else:
                    a_qk = qk(0, j + 1) if j < 63 else []; a_pv = pv(0, j)
                if fused:
                    gm = gmf(k, ph)
                    mf = a_qk + gm[:4] + a_pv + gm[4:]
                    pvi = 8
                else:
                    mf = a_qk + a_pv
                    pvi = len(a_qk)
                n = len(mf)
                def pos(x): return min(n - 1, int(x * n))
                ds_pos = [pos(x) for x in (0.0, 0.25, 0.5, 0.75)]
                vm_pos = [pos(x) for x in (0.125, 0.375, 0.625, 0.875)]
                def dma(ops, nsc, where=None):
                    w_ = where or vm_pos
                    for o in ops[:nsc]: SC(max(w_[0] - 1, 0), o)
                    if w_[0] == 0: T(0, "s_nop 0")
                    for m in range(4): V(w_[m], ops[nsc + m])
                    for m, o in enumerate(ops[nsc + 4:]): SC(min(w_[3] + 1 + m, n - 1), o)
                if ph == 0:
                    kaddr, koff = ("v4", (i + 1) * 4096) if i < 3 else ("v5", 0)
                    if j < 63:
                        for f in range(2): V(ds_pos[f], lambda f=f: p.lds(f"ds_read_b128 {Kf(j+1,f)}, {kaddr} offset:{koff + 1024*f}", f"k{j+1}"))
                    for f in range(2): V(ds_pos[2 + f], lambda f=f: p.lds(f"ds_read_b128 {Vf(j,f)}, v4 offset:{i*4096 + 2048 + 1024*f}", f"v{j}"))
                    if fused:
                        SC(3, lambda: p.wait(vm=f"h{k}", lg=f"f{k>>1}", force=True))
                        if k + 3 < NKS: dma(h_loads(k + 3), 0)
                        if k % 4 == 2 and (k >> 1) + 1 < 28:
                            va = [(f"v_xor_b32 v{VRD+nb}, 0x2000, v{VRD+nb}", 4) for nb in range(4)] + va
                    if j == 0:
                        va = va + [(f"v_accvgpr_write_b32 a{ACC+x}, 0", 4) for x in range(NZ + 8, 128)]
                    if j == 1: dma(w_dma(1), 1)
                    if j == 2: dma(w_dma(2), 1)
                    if j == 3:
                        dma(h_loads(1), 0)
                    if j < 63: SC(n - 1, lambda: p.wait(lg=f"k{j+1}", force=True))
                else:
                    if pvi > 0: SC(pvi - 1, lambda: p.wait(lg=f"v{j}", force=True))
                    else: p.wait(lg=f"v{j}")
                    if fused:
                        fg1 = (k >> 1) + 1
                        if fg1 < 28:
                            if k % 2 == 0: SC(0, lambda: p.wait(vm=f"w{fg1}", force=True))
                            for m, o in enumerate(w_reads(fg1, k & 1)): V(ds_pos[m], o)
                        if k % 2 == 0 and (inloop or (k >> 1) + 3 < 28): dma(w_dma((k >> 1) + 3), 1)
                    if i == 3 and c <= 13: dma(kv_dma(c + 3), 1, [2, 6, 10, 13] if fused else None)
                    if i == 2 and c <= 14:
                        tags = [f"kv{c+1}"] + (["w28", "kv16"] if c == 14 else [])
                        SC(n - 4, lambda: p.wait(vm=tags, force=True)); T(n - 3, "s_barrier")
                    if i == 1 and inloop: T(n - 2, "s_sub_u32 s42, s42, 1")
                    if i == 1 and c < 15:
                        T(1, "s_add_u32 s38, s38, 0x4000"); T(2, "s_and_b32 s38, s38, 0xffff")
                    if j == 0: dma(kv_dma(1), 1)
                    if j == 1:
                        V(0, lambda: p.vmem("buffer_load_dword v13, v14, s[76:79], 0 offen sc1", "hp"))
                        dma(kv_dma(2), 1, [2, 4, 6, 8])
                    if j == 2:
                        p.wait(vm="hp")
                        spin(p, "hp", 13, 14, 76, "0", 3)
                        stamp(p, 9, 2)
                        dma(h_loads(0), 0)
                        for m, o in enumerate(w_reads(0, 0)): V(ds_pos[m], o)
                    if j == 3:
                        for m, o in enumerate(w_reads(0, 1)): V(ds_pos[m], o)
                        hl = h_loads(2)
                        for m in range(4): V(ds_pos[m], hl[m])
                    if i == 3 and c < 15: va = [("v_mov_b32 v4, v5", 4), ("v_add_u32 v5, s38, v1", 4)] + va
                    if i == 3 and inloop: T(n - 1, "s_cmp_lg_u32 s42, 0")
                key = (j, ph)
                def spread(ops, g0, g1):
                    for m, o in enumerate(ops): V(g0 + (m * (g1 - g0 + 1)) // len(ops), o)
                def sync(g_, tag):
                    side.insert(0, (g_, lambda: p.wait(lg=tag, force=True), "s"))
                    side.insert(0, (g_ + 1, lambda: p("s_barrier"), "s"))
                def at(ops, gaps):
                    assert len(ops) == len(gaps)
                    for o, g_ in zip(ops, gaps): V(g_, o)
                if WT and key == (56, 1):
                    T(1, "s_and_b32 s3, s46, 3"); T(2, "s_lshl_b32 s3, s3, 2"); T(3, "s_add_u32 s3, s3, s45"); T(5, "s_lshl_b32 s3, s3, 17")
                    va = [("v_lshlrev_b32 v6, 11, v0", 4)] + va
                    V(11, lambda: p.vmem("buffer_load_dword v7, v6, s[32:35], s3 offen", "wt"))
                if key == (59, 0): at(XW(1)[:4], [5, 8, 12, 16]); dma(wo_dma(0), 2)
                if key == (59, 1): at(XW(1)[4:], [0, 4, 8, 12]); dma(wo_dma(1), 2)
                if key == (60, 0): sync(0, "xw1"); at(XR(1)[:4], [3, 4, 6, 9]); dma(wo_dma(3), 2, [1, 4, 6, 8])
                if key == (60, 1): at(XR(1)[4:], [0, 2, 4, 5]); dma(wo_dma(2), 2)
                if key == (61, 0): sync(0, "xr1"); at(XW(2)[:2], [4, 9]); dma(wo_dma(4), 2)
                if key == (61, 1): at(XW(2)[2:5], [2, 5, 9]); dma(wo_dma(5), 2)
                if key == (62, 0): at(XW(2)[5:], [1, 4, 8])
                if key == (62, 1): sync(1, "xw2"); at(XR(2)[:4], [4, 5, 7, 9]); dma(wo_dma(6), 2)
                if key == (63, 0): at(XR(2)[4:], [0, 1, 2, 3])
                if key == (63, 1): sync(0, "xr2")
                side.sort(key=lambda x: (x[0], 0 if x[2] == "s" and not getattr(x[1], "late", False) else 1))
                fill16(p, mf, va, side)
            if i == 3 and c < 15:
                if inloop: p("s_cbranch_scc1 L_k2_loop")
                if c == 0: stamp(p, 2, 3)
    marks.append(p.mark())
    body = unify([p.ins[marks[i]:marks[i+1]] for i in range(1, 14)])
    stamp(p, 4, 2); stamp(p, 4, 3)
    p("s_mov_b32 s71, 0")
    p("s_nop 0")
    for t in pv(1, 63): p(t)
    p.label("L_k2_out")
    def norm(blk):
        T = S_[blk]
        for q in range(2): p(f"v_accvgpr_read_b32 v{6+2*blk+q}, a{LA + 4*(2*blk+q)}")
        for i in range(16):
            p(f"v_accvgpr_read_b32 v{T+i}, a{OA + 16*blk + i}")
            if i < 2: p(f"v_rcp_f32 v{10+i}, v{6+2*blk+i}")
        for i in range(16): p(f"v_mul_f32 v{T+i}, v{T+i}, v{10 + (i>>3)}")
        for k in range(8): p(f"v_cvt_pk_bf16_f32 v{P_[blk]+k}, v{T+2*k}, v{T+2*k+1}")
    def ostore(blk):
        for u in range(2):
            so = "0" if blk == 0 else "s50"
            p.vmem(f"buffer_store_dwordx4 {r4(P_[blk] + 4*u)}, v1, s[20:23], {so} offen offset:{1024*u} sc1", "ost")
    norm(0)
    p(f"v_accvgpr_read_b32 v8, a{LA+8}")
    p(f"v_accvgpr_read_b32 v9, a{LA+12}")
    p(f"v_mov_b32 v2, {hex(f2u(2.0**30))}")
    p(f"v_mov_b32 v3, {hex(f2u(2.0**-20))}")
    p("v_add_f32 v10, v6, v7")
    p("v_add_f32 v11, v8, v9")
    p("v_add_f32 v10, v10, v11")
    p("v_min3_f32 v11, v6, v7, v8")
    p("v_min_f32 v11, v11, v9")
    p("v_cmp_nlt_f32 vcc, v10, v2")
    p("v_cmp_ngt_f32 s[6:7], v11, v3")
    p("s_cmp_lg_u32 s71, 0")
    p("s_cbranch_scc1 L_k2_safe")
    p("s_or_b64 vcc, vcc, s[6:7]")
    p("s_cbranch_vccnz L_k2_fallback")
    p.label("L_k2_safe")
    ostore(0)
    norm(1)
    ostore(1)
    stamp(p, 5, 2)
    p("s_lshl_b32 s3, s46, 2")
    p("s_add_u32 s3, s3, s45")
    p("s_lshl_b32 s3, s3, 16")
    p(f"s_add_u32 s3, s3, {hex(OF_OFF)}")
    srd(p, 28, 4, "s3", 65536)
    for nb in range(4): p(f"v_and_b32 v{VRD+nb}, 0xfff, v{VRD+nb}")
    for t_ in ["s_lshl_b32 s3, s46, 18", "s_lshl_b32 s6, s45, 16", "s_add_u32 s3, s3, s6", "s_lshl_b32 s6, s47, 7", "s_add_u32 s3, s3, s6", "s_sub_u32 s7, 0x10000, s6"]: p(t_)
    srd(p, 20, 10, "s3", "s7")
    srd(p, 24, 62, "s3", "s7")
    p("s_mul_i32 s6, s45, 4608")
    p("s_add_u32 s6, s6, 0x20000")
    for t_ in ["v_lshrrev_b32 v2, 3, v0", "v_and_b32 v4, 7, v0", "v_lshlrev_b32 v3, 4, v4", "v_lshl_add_u32 v3, v2, 11, v3",
               "v_and_b32 v10, 15, v0", "v_mul_u32_u24 v10, 144, v10", "v_lshrrev_b32 v11, 4, v0", "v_lshl_add_u32 v10, v11, 3, v10", "v_add_u32 v10, s6, v10",
               "v_mul_u32_u24 v11, 144, v2", "v_lshl_add_u32 v11, v4, 4, v11", "v_add_u32 v11, s6, v11"]: p(t_)
    for i in range(1, 4): p(f"s_mov_b32 s{60+i}, {hex(i*8*2048)}")
    XRr = 96; XD = 80; XU = 160; G = 128; Y = 224; A3 = 16; WF = 192; OB = 112; DEP = int(os.environ.get('DEP', '12'))
    for i in range(4):
        so = "0" if i == 0 else f"s{60+i}"
        p.vmem(f"buffer_load_dwordx4 {r4(XRr+4*i)}, v3, s[20:23], {so} offen", "x")
    va_ = [f"v_accvgpr_read_b32 v{Y+i}, a{ACC+i}" for i in range(32)]
    for a in (1, 2):
        va_ += [f"v_pk_add_f32 v[{Y+i}:{Y+i+1}], v[{Y+i}:{Y+i+1}], v[{XT[a]+i}:{XT[a]+i+1}]" for i in range(0, 32, 2)]
    xw3 = XW(3)
    for n_, t_ in enumerate(va_):
        if n_ % 8 == 0: xw3[n_ // 8]()
        p(t_)
    p.wait(vm="ost", lg="xw3")
    p("s_barrier")
    signal(p, "c4", 4, 76, "s73")
    stamp(p, 7, 2)
    for o in XR(3): o()
    run_ops(wo_dma(7))
    p.wait(lg="xr3")
    for i in range(0, 32, 2): p(f"v_pk_add_f32 v[{Y+i}:{Y+i+1}], v[{Y+i}:{Y+i+1}], v[{XT[3]+i}:{XT[3]+i+1}]")
    for i in range(0, 32, 2): p(f"v_pk_mul_f32 v[{G+i}:{G+i+1}], v[{Y+i}:{Y+i+1}], s[58:59]")
    for i in range(32): p(f"v_exp_f32 v{G+i}, v{G+i}")
    WF3 = [192, 208, 48]
    def wreads3(h):
        g_ = h >> 2
        off = (WOFF[g_] & 0xffff) + (h & 3) * 4096
        ops = []
        for nb in range(4):
            for e in range(2):
                b = WF3[h % 3] + 4 * nb + 2 * e
                ops.append(lambda b=b, nb=nb, e=e: p.lds(f"ds_read_b64_tr_b16 v[{b}:{b+1}], v{VRD+nb} offset:{off + e*2048}", f"w3_{h}_{nb}"))
        return ops
    for o in wreads3(0) + wreads3(1): o()
    p("s_mov_b32 s39, 0")
    if OT:
        p("s_and_b32 s3, s47, 7")
        p("s_lshl_b32 s3, s3, 7")
        p("v_lshlrev_b32 v8, 10, v0")
        p("v_add_u32 v8, s3, v8")
        p("v_bfrev_b32 v9, 1")
        p("v_cmp_gt_u32 vcc, 16, v0")
        p("s_movk_i32 s40, 0x4000")
        p("s_nop 0")
        p("v_cndmask_b32 v8, v9, v8, vcc")
    def otouch():
        p.vmem("buffer_load_dword v9, v8, s[28:31], s40 offen sc1", "ot")
        p("s_add_u32 s40, s40, 0x4000")
    p("s_cmp_lg_u32 s45, 0")
    p("s_cbranch_scc1 L_c_ok")
    spin(p, "c", 13, 12, 76, "s69", 4, first_check=False)
    p.wait(vm=["wo7", "x"])
    p("s_barrier")
    stamp(p, 9, 3)
    def oload(k):
        if k % 4 == 0 and k > 0: p("s_add_u32 s39, s39, 0x1000")
        p.vmem(f"buffer_load_dwordx4 {r4(OB + 4*(k % 32), 'a')}, v1, s[28:31], s39 offen offset:{1024*(k%4)} sc1", f"o{k}")
    OTP = [int(x) for x in os.environ.get("OTP", "6,20,34").split(",")]
    for k in range(DEP):
        oload(k)
        if OT and k in OTP: otouch()
    for i in range(4): p.lds(f"ds_write_b128 v11, {r4(XRr+4*i)} offset:{i*8*144}", "xs")
    for i in range(0, 32, 2): p(f"v_pk_add_f32 v[{G+i}:{G+i+1}], v[{G+i}:{G+i+1}], 1.0 op_sel_hi:[1,0]")
    p.wait(lg="xs")
    for q in range(8): p.lds(f"ds_read_b64 v[{XD+2*q}:{XD+2*q+1}], v10 offset:{(q>>2)*16*144 + 32*(q&3)}", "xd")
    for i in range(32): p(f"v_rcp_f32 v{G+i}, v{G+i}")
    for i in range(0, 32, 2): p(f"v_pk_mul_f32 v[{G+i}:{G+i+1}], v[{G+i}:{G+i+1}], v[{Y+i}:{Y+i+1}]")
    p.wait(lg="xd")
    for k in range(16):
        p(f"v_lshlrev_b32 v{XU+2*k}, 16, v{XD+k}")
        p(f"v_and_b32 v{XU+2*k+1}, s51, v{XD+k}")
    for h in range(32):
        wr = wreads3(h + 2) if h + 2 < 32 else []
        if h + 2 in (12, 28):
            for nb in range(4): p(f"v_xor_b32 v{VRD+nb}, 0x10000, v{VRD+nb}")
        m = 0
        for u in range(2):
            k = 2 * h + u
            for nb in (range(4) if u == 0 else range(3, -1, -1)):
                p.wait(vm=f"o{k}", lg=f"w3_{h}_3")
                d = r4(A3 + 16 * u + 4 * nb)
                p(f"{M16} {d}, {r4(WF3[h % 3] + 4*nb)}, {r4(OB + 4*(k % 32), 'a')}, {'0' if h == 0 else d}")
                if m % 4 == 1 and k + DEP < 64: oload(k + DEP)
                if m % 4 == 3 and OT and k + DEP in OTP: otouch()
                if wr: wr[m]()
                m += 1
    stamp(p, 10, 2); stamp(p, 10, 3)
    p("s_nop 7")
    T = 80
    for u in range(2):
        Sx = A3 + 16 * u
        for i in range(0, 16, 2):
            p(f"v_pk_fma_f32 v[{Sx+i}:{Sx+i+1}], v[{Sx+i}:{Sx+i+1}], v[{G+16*u+i}:{G+16*u+i+1}], v[{XU+16*u+i}:{XU+16*u+i+1}]")
        for nb in range(4):
            r = T + 8 * u + 2 * nb
            p(f"v_cvt_pk_bf16_f32 v{r}, v{Sx+4*nb}, v{Sx+4*nb+1}")
            p(f"v_cvt_pk_bf16_f32 v{r+1}, v{Sx+4*nb+2}, v{Sx+4*nb+3}")
            p.lds(f"ds_write_b64 v10, v[{r}:{r+1}] offset:{u*16*144 + 32*nb}", "tw")
    p.wait(lg="tw")
    for i in range(4):
        p.lds(f"ds_read_b128 {r4(XRr+4*i)}, v11 offset:{i*8*144}", f"tr{i}")
    for i in range(4):
        p.wait(lg=f"tr{i}")
        so = "0" if i == 0 else f"s{60+i}"
        p.vmem(f"buffer_store_dwordx4 {r4(XRr+4*i)}, v3, s[24:27], {so} offen {os.environ.get('OPOL', 'sc1')}", "st")
    if STAMP:
        p("s_waitcnt vmcnt(0)")
        stamp(p, 6, 2); stamp(p, 6, 3)
        p("s_memrealtime s[78:79]")
        p("s_waitcnt lgkmcnt(0)")
        stamp_out(p, 11, 2, 4, "s45", extra=[78])
    p("s_endpgm")
    fb = Prog()
    fb.label("L_k2_fallback")
    fb("s_waitcnt vmcnt(0) lgkmcnt(0)")
    for qq in range(4): fb(f"v_mov_b32 v{MR+qq}, 0xff800000")
    fb("s_mov_b32 s36, 0")
    fb.label("L_k2_fb1")
    for f in range(2):
        fb(f"buffer_load_dwordx4 {Kf(0,f)}, v1, s[12:15], s36 offen offset:{1024*f}{sc}")
    fb("s_waitcnt vmcnt(0)")
    for blk in range(2):
        for t in qk(blk, 0, True): fb(t)
    fb("s_nop 15")
    for i in range(0, 8, 2):
        for qq in range(4): fb(f"v_max3_f32 v{MR+qq}, v{MR+qq}, v{16+8*qq+i}, v{17+8*qq+i}")
    fb("s_add_u32 s36, s36, 0x1000")
    fb("s_cmp_lt_u32 s36, 0x40000")
    fb("s_cbranch_scc1 L_k2_fb1")
    rowmax(fb, MR)
    for i in range(0, 48): fb(f"v_accvgpr_write_b32 a{i}, 0")
    fb("s_mov_b32 s36, 0")
    fb.label("L_k2_fb2")
    for f in range(2):
        fb(f"buffer_load_dwordx4 {Kf(0,f)}, v1, s[12:15], s36 offen offset:{1024*f}{sc}")
        fb(f"buffer_load_dwordx4 {Vf(0,f)}, v1, s[12:15], s36 offen offset:{2048+1024*f}{sc}")
    fb("s_waitcnt vmcnt(0)")
    for blk in range(2):
        for t in qk(blk, 0): fb(t)
    fb("s_nop 15")
    for blk in range(2):
        for t, _ in softmax_valu(blk): fb(t)
    fb("s_nop 1")
    for blk in range(2):
        for t in pv(blk, 0): fb(t)
    fb("s_add_u32 s36, s36, 0x1000")
    fb("s_cmp_lt_u32 s36, 0x40000")
    fb("s_nop 15")
    fb("s_cbranch_scc1 L_k2_fb2")
    fb("s_mov_b32 s71, 1")
    fb("s_branch L_k2_out")
    final = Prog()
    final.ins = p.ins[:marks[1]] + [Ins(".p2align 6", "dir"), Ins("L_k2_loop:", "label")] + body + p.ins[marks[14]:] + fb.ins
    final.label("L_k2_end")
    final("s_endpgm")
    lins = [[x.text for x in p.ins], [x.text for x in fb.ins] + [x.text for x in fb.ins]]
    return dict(prog=final, lins=lins)
```

```python
from asmlib import *
MB = 1 << 20
XN_OFF = 0
QF_OFF = 4 * MB
KV_OFF = 8 * MB
HF_OFF = 16 * MB
OF_OFF = 32 * MB
YG_OFF = 38 * MB
FL_OFF = 40 * MB
S = 2048; D = 1024; F = 3584
KA_X, KA_WQKV, KA_WO, KA_BX, KA_WG, KA_WU, KA_WD, KA_OUT, KA_DBG, KA_WS = [8 * i for i in range(10)]

def srd(p, d, ptr, off, size):
    if off == 0:
        p(f"s_mov_b32 s{d}, s{ptr}")
        p(f"s_and_b32 s{d+1}, s{ptr+1}, 0xffff")
    else:
        o = off if isinstance(off, str) else hex(off)
        p(f"s_add_u32 s{d}, s{ptr}, {o}")
        p(f"s_addc_u32 s{d+1}, s{ptr+1}, 0")
        p(f"s_and_b32 s{d+1}, s{d+1}, 0xffff")
    sz = size if isinstance(size, str) else hex(size)
    p(f"s_mov_b32 s{d+2}, {sz}")
    p(f"s_mov_b32 s{d+3}, 0x20000")

def kernel_text(name, p):
    return f".p2align 8\n.globl {name}\n.type {name},@function\n{name}:\n" + p.text() + "\n"

def csel(p, d, a, b):
    p(f"s_mov_b32 {d}, {hex(b)}")
    p(f"s_cmov_b32 {d}, {hex(a)}")

import os
STAMP = os.environ.get("STAMP", "0") == "1"
DBG_OFF = 64 * MB
STS = int(os.environ.get("STS", "2"))
def stamp(p, idx, grp=0, base=80):
    if not STAMP or (grp and grp != STS): return
    p(f"{'s_memrealtime' if os.environ.get('RT') == '1' else 's_memtime'} s[{base+2*idx}:{base+2*idx+1}]")
def stamp_rt(p, idx, base=80):
    if not STAMP: return
    p(f"s_memrealtime s[{base+2*idx}:{base+2*idx+1}]")
def stamp_out(p, n, kidx, wsptr, wave_sgpr, nwaves=4, base=80, tmp=72, extra=(), vt=1):
    if not STAMP: return
    p("s_waitcnt vmcnt(0) lgkmcnt(0)")
    srd(p, tmp, wsptr, DBG_OFF + kidx * MB, MB)
    p(f"s_mul_i32 s{tmp+4}, s2, {nwaves}")
    p(f"s_add_u32 s{tmp+4}, s{tmp+4}, {wave_sgpr}")
    p(f"s_lshl_b32 s{tmp+4}, s{tmp+4}, 6")
    p(f"v_mov_b32 v{vt}, 0")
    for i in range(n):
        p(f"v_mov_b32 v{vt+1}, s{base+2*i}")
        p(f"buffer_store_dword v{vt+1}, v{vt}, s[{tmp}:{tmp+3}], s{tmp+4} offen offset:{4*i}")
    for i, r in enumerate(extra):
        p(f"v_mov_b32 v{vt+1}, s{r}")
        p(f"buffer_store_dword v{vt+1}, v{vt}, s[{tmp}:{tmp+3}], s{tmp+4} offen offset:{4*(n+i)}")
    p("s_waitcnt vmcnt(0)")

CPF = os.environ.get("CPF", "1") == "1"
def code_prefetch(p, tag, end_label, vtid, vt, sp, n=1, start_label=None):
    if not CPF: return
    p(f"s_getpc_b64 s[{sp}:{sp+1}]")
    p.label(f"L_{tag}_pc")
    if start_label:
        p(f"s_add_u32 s{sp}, s{sp}, {start_label}-L_{tag}_pc")
        p(f"s_addc_u32 s{sp+1}, s{sp+1}, 0")
    base = start_label or f"L_{tag}_pc"
    for i in range(n):
        p(f"v_lshlrev_b32 v{vt}, 7, v{vtid}")
        if i: p(f"v_add_u32 v{vt}, {hex(i*32768)}, v{vt}")
        p(f"v_min_u32 v{vt}, {end_label}-{base}, v{vt}")
        p.vmem(f"global_load_dword v{vt+1}, v{vt}, s[{sp}:{sp+1}]", "cpf")

OF_ST = 65536 + int(os.environ.get("OPAD", "4352"))

XN3 = os.environ.get("XN3", "1") == "1"
XN3_OFF = 44 * MB
XNP = 4096 + int(os.environ.get("XPAD", "128"))
```

```python
from common import *
import math, struct

def f2u(x):
    return struct.unpack("<I", struct.pack("<f", x))[0]

def acc(mb, nb):
    if nb < 4:
        return ("v", 48 + 4 * (mb * 4 + nb))
    if nb < 8:
        if mb < 5:
            return ("v", 48 + 128 + 4 * (mb * 4 + nb - 4))
        return ("a", 144 + 4 * ((mb - 5) * 4 + nb - 4))
    return ("a", 144 + 48 + 4 * (mb * 2 + nb - 8))

def fragA(st, mb): return ("a", 72 * st + 4 * mb)
def fragB(st, nb): return ("a", 72 * st + 32 + 4 * nb)

HSC = os.environ.get("HSC", "sc1")
MERGED = [False]
M16 = [False]
def dma_ops(p, stage, tag, parts="AB"):
    ops = []
    sc = (" " + HSC) if MERGED[0] else ""
    if "A" in parts:
        ops.append(lambda: p(f"s_add_u32 m0, s40, {stage*16384}"))
        for i in range(4):
            va_ = ["v1", "v17", "v18", "v19"][i] if (XN3 and MERGED[0]) else "v1"
            ops.append(lambda i=i, va_=va_: p.vmem(f"buffer_load_dwordx4 {va_}, s[12:15], s36 offen offset:{1024*i}{sc} lds", tag))
    if "B" in parts:
        for u in range(5):
            srdn = [16, 16, 20, 20, 24][u]
            voff = "v2" if u < 4 else "v3"
            soff = "s37" if u < 4 else "s38"
            io = 128 if u in (1, 3) else 0
            ops.append(lambda u=u, io=io: p(f"s_add_u32 m0, s41, {u*16384 + stage*4096 - io}"))
            ops.append(lambda srdn=srdn, voff=voff, soff=soff, io=io: p.vmem(
                f"buffer_load_dwordx4 {voff}, s[{srdn}:{srdn+3}], {soff} offen offset:{io} lds", tag))
    k_ = 0
    if "A" in parts:
        for i in range(1, 5): ops[i].ld = True
        k_ = 5
    if "B" in parts:
        for u in range(5): ops[k_ + 2 * u + 1].ld = True
    if "A" in parts:
        ops.append(lambda: p("s_add_u32 s36, s36, 0x80" if (XN3 and MERGED[0]) else "s_add_u32 s36, s36, 0x4000"))
    if "B" in parts:
        ops.append(lambda: p("s_add_u32 s37, s37, s39"))
        ops.append(lambda: p(f"s_add_u32 s38, s38, {32*6144}"))
    return ops

def read_ops(p, stage, st, tag):
    ops = []
    ra = [lambda mb=mb: p.lds(f"ds_read_b128 {vr(fragA(st, mb), 4)}, v4 offset:{stage*16384 + mb*1024}", tag) for mb in range(8)]
    rb = []
    for nb in range(10):
        for e in range(2):
            f, b = fragB(st, nb)
            if nb < 8:
                a = 5 + (nb & 3); off = stage * 4096 + e * 512 + (nb >> 2) * 32768
            else:
                a = 9 + (nb - 8); off = stage * 4096 + e * 512
            rb.append(lambda b=b, e=e, a=a, off=off: p.lds(f"ds_read_b64_tr_b16 a[{b+2*e}:{b+2*e+1}], v{a} offset:{off}", tag))
    out = []
    ia = ib = 0
    while ia < len(ra) or ib < len(rb):
        if ia < len(ra): out.append(ra[ia]); ia += 1
        for _ in range(3 if ia > 4 else 2):
            if ib < len(rb): out.append(rb[ib]); ib += 1
    return out

def merge_ops(a, b):
    out = []
    na, nb = len(a), len(b)
    ia = ib = 0
    while ia < na or ib < nb:
        if ib >= nb or (ia < na and ia * nb <= ib * na):
            out.append(a[ia]); ia += 1
        else:
            out.append(b[ib]); ib += 1
    return out

PF = os.environ.get('K1PF', '1') == '1'
def iteration(p, t, isV, NK=32, loopctl=None, dmas=None, pf=None):
    st = t & 1
    slots = {}
    def add(k, fn): slots.setdefault(k, []).append(fn)
    if t + 1 < NK:
        add(0, lambda: p.wait(vm=f"d{t+1}", force=True))
        add(1, lambda: p("s_barrier"))
        rd = read_ops(p, (t + 1) & 3, 1 - st, f"f{t+1}")
        dm = []
        for d in dmas:
            d, parts = d if isinstance(d, tuple) else (d, "AB")
            dm += dma_ops(p, d & 3, f"d{d}", parts)
        if os.environ.get("K1SCHED", "1") == "1":
            isld = [getattr(o, "ld", False) for o in dm]
            nld = sum(isld) + (1 if pf else 0) + (1 if pf == "wo" else 0)
            per = 77.0 / max(nld, 1)
            ldg = [int(3 + n * per) for n in range(nld)]
            n = 0
            for i, o in enumerate(dm):
                if isld[i]:
                    add(ldg[n], o); n += 1
                elif i + 1 < len(dm) and isld[i + 1]:
                    slots.setdefault(ldg[n] - 1, []).insert(0, o)
                else:
                    extra_s = getattr(iteration, "_c", 0); iteration._c = (extra_s + 1) % 2
                    slots.setdefault(ldg[n - 1] + 1 + (i - max(j for j in range(i) if isld[j]) - 1), []).insert(0, o)
            pfg = ldg[n:]
            free = [k_ for k_ in range(2, 70) if k_ not in ldg]
            for i, o in enumerate(rd):
                add(free[(i * len(free)) // len(rd)], o)
        else:
            pfg = [77, 40]
            k0, k1 = 2, 66
            for i, o in enumerate(rd):
                add(k0 + (i * (k1 - k0)) // max(len(rd), 1), o)
            k0, k1 = 3, 76
            for i, o in enumerate(dm):
                add(k0 + (i * (k1 - k0)) // max(len(dm), 1), o)
    if PF and pf in ("wd", "wo"):
        add(pfg[0], lambda: p.vmem("buffer_load_dword v46, v44, s[64:67], s49 offen", "pf"))
        add(pfg[0] + 1, lambda: p("s_add_u32 s49, s49, s72"))
    if PF and pf == "wo":
        add(pfg[1], lambda: p.vmem("buffer_load_dword v46, v45, s[68:71], s51 offen", "pf"))
        add(pfg[1] + 1, lambda: p("s_add_u32 s51, s51, 0x80000"))
    if loopctl:
        add(76, lambda: p("s_sub_u32 s42, s42, 1"))
        add(79, lambda: p("s_cmp_lg_u32 s42, 0"))
    k = 0
    for mb in range(8):
        order = range(10) if mb % 2 == 0 else range(9, -1, -1)
        for nb in order:
            d = vr(acc(mb, nb), 4)
            c = "0" if t == 0 else d
            xa = vr(fragA(st, mb), 4); wb = vr(fragB(st, nb), 4)
            if isV and nb < 8:
                p(f"v_mfma_f32_16x16x32_bf16 {d}, {xa}, {wb}, {c}")
            else:
                p(f"v_mfma_f32_16x16x32_bf16 {d}, {wb}, {xa}, {c}")
            for fn in slots.get(k, []): fn()
            k += 1
    LST = STAMP and os.environ.get("ST4") == "1"
    if LST and loopctl: p("s_memtime s[74:75]")
    if t + 1 < NK:
        p.wait(lg=f"f{t+1}")
    if LST and loopctl:
        p("s_waitcnt lgkmcnt(0)")
        p("s_mov_b32 m0, s42")
        p("s_nop 1")
        p("v_writelane_b32 v47, s74, m0")
    if loopctl:
        p(f"s_cbranch_scc1 {loopctl}")

def get4(p, tile, tmp):
    f, b = tile
    if f == "v": return b
    for i in range(4):
        p(f"v_accvgpr_read_b32 v{tmp+i}, a{b+i}")
    return tmp

STP = os.environ.get('K1ST', 'sc1')
def epi_qk(p):
    for mb in range(8):
        T = 16 + 16 * (mb & 1)
        a = get4(p, acc(mb, 8), T)
        b = get4(p, acc(mb, 9), T + 4)
        for i in range(0, 8, 2):
            p(f"v_pk_mul_f32 v[{T+i}:{T+i+1}], v[{T+i}:{T+i+1}], s[56:57]")
        for i in range(4):
            p(f"v_cvt_pk_bf16_f32 v{T+8+i}, v{T+2*i}, v{T+2*i+1}")
        p.vmem(f"buffer_store_dwordx4 v[{T+8}:{T+11}], v{13+(mb&1)}, s[32:35], s{52+(mb>>1)} offen {STP}", "st")

def epi_f(p):
    n = 0
    for mb in range(8):
        for pr in range(2):
            T = 16 + 16 * (n & 1); n += 1
            g0 = acc(mb, 2 * pr)[1]; g1 = acc(mb, 2 * pr + 1)[1]
            assert g1 == g0 + 4
            for i in range(0, 8, 2):
                p(f"v_pk_mul_f32 v[{g0+i}:{g0+i+1}], v[{g0+i}:{g0+i+1}], s[58:59]")
            u0 = get4(p, acc(mb, 4 + 2 * pr), T)
            u1 = get4(p, acc(mb, 5 + 2 * pr), T + 4)
            assert u1 == u0 + 4
            for i in range(8):
                p(f"v_exp_f32 v{g0+i}, v{g0+i}")
            for i in range(0, 8, 2):
                p(f"v_pk_add_f32 v[{g0+i}:{g0+i+1}], v[{g0+i}:{g0+i+1}], 1.0 op_sel_hi:[1,0]")
            for i in range(8):
                p(f"v_rcp_f32 v{g0+i}, v{g0+i}")
            for i in range(0, 8, 2):
                p(f"v_pk_mul_f32 v[{g0+i}:{g0+i+1}], v[{g0+i}:{g0+i+1}], v[{u0+i}:{u0+i+1}]")
            for i in range(4):
                p(f"v_cvt_pk_bf16_f32 v{T+8+i}, v{g0+2*i}, v{g0+2*i+1}")
            so = "0" if pr == 0 else "s50"
            p.vmem(f"buffer_store_dwordx4 v[{T+8}:{T+11}], v12, s[28:31], {so} offen offset:{(mb>>1)*1024 + (mb&1)*256} {STP}", "st")

def epi_v(p):
    n = 0
    for j in range(4):
        for nb in range(8):
            T = 16 + 16 * (n & 1); n += 1
            a = get4(p, acc(2 * j, nb), T)
            b = get4(p, acc(2 * j + 1, nb), T + 4)
            hd = (nb >> 2) * 4 + ((nb & 3) >> 1)
            p(f"s_mov_b32 s51, {hex(hd * 262144 + j * 4096)}")
            p(f"v_cvt_pk_bf16_f32 v{T+8}, v{a}, v{a+1}")
            p(f"v_cvt_pk_bf16_f32 v{T+9}, v{a+2}, v{a+3}")
            p(f"v_cvt_pk_bf16_f32 v{T+10}, v{b}, v{b+1}")
            p(f"v_cvt_pk_bf16_f32 v{T+11}, v{b+2}, v{b+3}")
            p.vmem(f"buffer_store_dwordx4 v[{T+8}:{T+11}], v12, s[28:31], s51 offen offset:{(nb&1)*256} {STP}", "st")
            if len(p.vmq) > 40:
                p.vmq = p.vmq[-20:]


def epi_ops_group(p, isV, mbs, nbs, st, packed):
    ops = []
    def V(text, cost=4): ops.append((lambda text=text: p(text), cost))
    def get(tile, tmp):
        f, b = tile
        if f == "v": return b
        for i in range(4): V(f"v_accvgpr_read_b32 v{tmp+i}, a{b+i}")
        return tmp
    def mul_s(base, n, sreg):
        if packed:
            for i in range(0, n, 2): V(f"v_pk_mul_f32 v[{base+i}:{base+i+1}], v[{base+i}:{base+i+1}], s[{sreg}:{sreg+1}]")
        else:
            for i in range(n): V(f"v_mul_f32 v{base+i}, s{sreg}, v{base+i}")
    if nbs == (8, 9):
        for mb in mbs:
            T = 16 + 16 * (st["n"] & 1); st["n"] += 1
            get(acc(mb, 8), T); get(acc(mb, 9), T + 4)
            mul_s(T, 8, 56)
            for i in range(4): V(f"v_cvt_pk_bf16_f32 v{T+8+i}, v{T+2*i}, v{T+2*i+1}")
            ops.append((lambda T=T, mb=mb: p.vmem(f"buffer_store_dwordx4 v[{T+8}:{T+11}], v{13+(mb&1)}, s[32:35], s{52+(mb>>1)} offen {STP}", "stq"), 4))
    elif not isV:
        pr = nbs[0] // 2
        for mb in mbs:
            T = 16 + 16 * (st["n"] & 1); st["n"] += 1
            g0 = acc(mb, 2 * pr)[1]
            mul_s(g0, 8, 58)
            for i in range(8): V(f"v_exp_f32 v{g0+i}, v{g0+i}", 8)
            u0 = get(acc(mb, 4 + 2 * pr), T); u1 = get(acc(mb, 5 + 2 * pr), T + 4)
            assert u1 == u0 + 4
            if packed:
                for i in range(0, 8, 2): V(f"v_pk_add_f32 v[{g0+i}:{g0+i+1}], v[{g0+i}:{g0+i+1}], 1.0 op_sel_hi:[1,0]")
            else:
                for i in range(8): V(f"v_add_f32 v{g0+i}, 1.0, v{g0+i}")
            for i in range(8): V(f"v_rcp_f32 v{g0+i}, v{g0+i}", 8)
            if packed:
                for i in range(0, 8, 2): V(f"v_pk_mul_f32 v[{g0+i}:{g0+i+1}], v[{g0+i}:{g0+i+1}], v[{u0+i}:{u0+i+1}]")
            else:
                for i in range(8): V(f"v_mul_f32 v{g0+i}, v{g0+i}, v{u0+i}")
            for i in range(4): V(f"v_cvt_pk_bf16_f32 v{T+8+i}, v{g0+2*i}, v{g0+2*i+1}")
            if M16[0]:
                ops.insert(len(ops) - 2, (lambda pr=pr, mb=mb: p(f"s_movk_i32 s51, {hex(pr * 8192 + (mb >> 2) * 4096)}"), 4))
                ops.append((lambda T=T, mb=mb: p.vmem(f"buffer_store_dwordx4 v[{T+8}:{T+11}], v12, s[28:31], s51 offen offset:{(mb&3)*1024} {STP}", "st"), 4))
                continue
            so = "0" if pr == 0 else "s50"
            ops.append((lambda T=T, mb=mb, so=so: p.vmem(f"buffer_store_dwordx4 v[{T+8}:{T+11}], v12, s[28:31], {so} offen offset:{(mb>>1)*1024 + (mb&1)*256} {STP}", "st"), 4))
    else:
        for j in sorted({mb >> 1 for mb in mbs}):
            for nb in nbs:
                T = 16 + 16 * (st["n"] & 1); st["n"] += 1
                a = get(acc(2 * j, nb), T); b = get(acc(2 * j + 1, nb), T + 4)
                hd = (nb >> 2) * 4 + ((nb & 3) >> 1)
                V(f"s_mov_b32 s51, {hex(hd * 262144 + j * 4096)}")
                V(f"v_cvt_pk_bf16_f32 v{T+8}, v{a}, v{a+1}")
                V(f"v_cvt_pk_bf16_f32 v{T+9}, v{a+2}, v{a+3}")
                V(f"v_cvt_pk_bf16_f32 v{T+10}, v{b}, v{b+1}")
                V(f"v_cvt_pk_bf16_f32 v{T+11}, v{b+2}, v{b+3}")
                ops.append((lambda T=T, nb=nb: p.vmem(f"buffer_store_dwordx4 v[{T+8}:{T+11}], v12, s[28:31], s51 offen offset:{(nb&1)*(1024 if M16[0] else 256)} {STP}", "st"), 16))
    return ops

def tail(p, isV, T0=28, NK=32, hooks=None, late=None, early=None):
    M0, M1 = (0, 1, 2, 3), (4, 5, 6, 7)
    N0, N1, NQ = (0, 1, 4, 5), (2, 3, 6, 7), (8, 9)
    groups = {"0": [(M0, N0), (M0, NQ), (M0, N1), (M1, N1), (M1, NQ), (M1, N0)],
              "1": [(M0 + M1, NQ), (M1, N0), (M1, N1), (M0, N1), (M0, N0)],
              "2": [(M0, N0), (M0, N1), (M0, NQ), (M1, NQ), (M1, N1), (M1, N0)],
              "3": [(M0, N0), (M0, NQ), (M0, N1), (M1, N1), (M1, N0), (M1, NQ)],
              "4": [(M0, N0), (M0, NQ), (M0, N1), (M1, N1), (M1, NQ), ((4, 5), N0), ((6, 7), N0)]}[os.environ.get("TG", "1")]
    steps = list(range(T0, NK))
    seq = []
    t = T0 - 1
    for mb in range(8):
        for nb in (range(10) if mb % 2 == 0 else range(9, -1, -1)): seq.append((mb, nb, t, -1))
    gend = []
    for gi, (ms, ns) in enumerate(groups):
        for t in steps:
            for a, mb in enumerate(ms):
                for nb in (ns if a % 2 == 0 else ns[::-1]): seq.append((mb, nb, t, gi))
        gend.append(len(seq) - 1)
    uses = {}
    for i, (mb, nb, t, gi) in enumerate(seq):
        uses.setdefault(("A", mb, t), []).append((i, gi))
        uses.setdefault(("B", nb, t), []).append((i, gi))
    inst = []
    for key, u in uses.items():
        cur = None
        for i, gi in u:
            if cur and gi - cur["g"] <= 1:
                cur["last"] = i; cur["g"] = gi
            else:
                cur = dict(key=key, first=i, last=i, g=gi); inst.append(cur)
    st0 = (T0 - 1) & 1
    free_at = {}
    for sl in range(36): free_at[sl] = -1
    where = {}
    for x in inst:
        k, idx, t = x["key"]
        if t == T0 - 1:
            x["slot"] = 18 * st0 + (idx if k == "A" else 8 + idx)
            x["rd"] = None
            free_at[x["slot"]] = x["last"]
    vis = {T0: 1, T0 + 1: 1, T0 + 2: 81, T0 + 3: 81 + 24}
    todo = sorted([x for x in inst if "slot" not in x], key=lambda x: x["first"])
    gap = 2
    for x in todo:
        k, idx, t = x["key"]
        sl = min(free_at, key=lambda s_: free_at[s_])
        g_ = max(gap, free_at[sl], vis[t], x["first"] - 72)
        assert g_ <= x["first"] - 6, (x, g_)
        x["slot"] = sl; x["rd"] = g_
        free_at[sl] = x["last"]
        gap = g_ + (2 if k == "B" else 1)
    reads = {}
    for x in todo:
        k, idx, t = x["key"]
        stage = t & 3; b = 4 * x["slot"]; tag = f"t{k}{idx}_{t}_{x['first']}"
        x["tag"] = tag
        if k == "A":
            reads.setdefault(x["rd"], []).append(lambda b=b, idx=idx, stage=stage, tag=tag: p.lds(f"ds_read_b128 a[{b}:{b+3}], v4 offset:{stage*16384 + idx*1024}", tag))
        else:
            for e in range(2):
                if idx < 8: a = 5 + (idx & 3); off = stage * 4096 + e * 512 + (idx >> 2) * 32768
                else: a = 9 + (idx - 8); off = stage * 4096 + e * 512
                reads.setdefault(x["rd"] + e, []).append(lambda b=b, e=e, a=a, off=off, tag=tag: p.lds(f"ds_read_b64_tr_b16 a[{b+2*e}:{b+2*e+1}], v{a} offset:{off}", tag))
    def find(k, idx, t, i):
        for x in inst:
            if x["key"] == (k, idx, t) and x["first"] <= i <= x["last"]: return x
        raise KeyError
    misc = {}
    def add(k, fn): misc.setdefault(k, []).append(fn)
    add(0, lambda: p.wait(vm=[f"d{T0}", f"d{T0+1}"], force=True)); add(1, lambda: p("s_barrier"))
    dm = dma_ops(p, (T0 + 3) & 3, f"d{T0+3}")
    for i, o in enumerate(dm): add(2 + 2 * i, o)
    add(80, lambda: p.wait(vm=f"d{T0+2}", force=True)); add(81, lambda: p("s_barrier"))
    add(80 + 24, lambda: p.wait(vm=f"d{T0+3}", force=True)); add(81 + 24, lambda: p("s_barrier"))
    for k_, fn in (hooks or []): add(k_ if k_ >= 0 else len(seq) + k_, fn)
    stt = {"n": 0}
    epis = [epi_ops_group(p, isV, ms, ns, stt, packed=(gi == len(groups) - 1)) for gi, (ms, ns) in enumerate(groups)]
    DELAY = 4
    tot = sum(c for e in epis[:-1] for _, c in e)
    nm = len(seq) - (gend[0] + DELAY)
    rate = tot / nm * float(os.environ.get('TR', '1.15'))
    fifo = []
    credit = 0.0
    for i, (mb, nb, t, gi) in enumerate(seq):
        xa = find("A", mb, t, i); xb = find("B", nb, t, i)
        tags = [x["tag"] for x in (xa, xb) if x.get("tag")]
        if tags: p.wait(lg=tags)
        d = vr(acc(mb, nb), 4)
        ra = f"a[{4*xa['slot']}:{4*xa['slot']+3}]"; rb = f"a[{4*xb['slot']}:{4*xb['slot']+3}]"
        if isV and nb < 8: p(f"v_mfma_f32_16x16x32_bf16 {d}, {ra}, {rb}, {d}")
        else: p(f"v_mfma_f32_16x16x32_bf16 {d}, {rb}, {ra}, {d}")
        for fn in misc.get(i, []): fn()
        for fn in reads.get(i, []): fn()
        for g2, e in enumerate(gend[:-1]):
            if i == e + DELAY: fifo += epis[g2]
        if fifo: credit += rate
        else: credit = 0.0
        while fifo and credit >= fifo[0][1] / 2:
            fn, c = fifo.pop(0); fn(); credit -= c
    stamp(p, 4, 1); stamp(p, 4, 5)
    for fn, c in fifo: fn()
    inter = early() if early else []
    if len(fifo) < 8 and not early: p("s_nop 7")
    lastn = len(epis[-1]); lp = max(0, lastn - late[0]) if late else lastn
    per = max(1, lp // max(len(inter), 1))
    for n_, (fn, c) in enumerate(epis[-1]):
        if late and n_ == lp:
            while inter:
                inter.pop(0)()
                if "m0," in p.ins[-1].text: p("s_nop 0")
            late[1]()
        elif inter and n_ % per == 0: inter.pop(0)()
        fn()

def setup_ids(p):
    p("s_and_b32 s3, s2, 7")
    p("s_lshr_b32 s43, s2, 3")
    p("s_lshr_b32 s61, s43, 3")
    p("s_and_b32 s43, s43, 7")
    p("s_mul_i32 s44, s3, 3")
    p("s_add_u32 s44, s44, s61")
    p("s_lshr_b32 s62, s43, 2")
    p("s_xor_b32 s62, s62, s3")
    p("s_and_b32 s62, s62, 1")
    p("s_lshl_b32 s62, s62, 2")
    p("s_lshr_b32 s63, s3, 1")
    p("s_sub_u32 s63, s63, s62")
    p("s_add_u32 s63, s63, 28")
    p("s_cmp_eq_u32 s61, 3")
    p("s_cselect_b32 s44, s63, s44")
    p("s_lshr_b32 s46, s45, 1")
    p("s_and_b32 s47, s45, 1")
    p("s_cmp_ge_u32 s44, 28")
    p("s_cselect_b32 s48, 1, 0")
    csel(p, "s60", 6144, 7168)
    p("s_lshl_b32 s39, s60, 5")
    p("s_lshl_b32 s40, s45, 12")
    p("v_lshlrev_b32 v1, 4, v0")
    p("v_add_u32 v1, s40, v1")
    p("s_lshl_b32 s41, s45, 10")
    p("s_add_u32 s41, s41, 0x10000")
    p("v_lshrrev_b32 v11, 3, v0")
    p("s_lshl_b32 s3, s45, 3")
    p("v_add_u32 v11, s3, v11")
    p("v_bfe_u32 v12, v0, 4, 1")
    p("s_and_b32 s3, s45, 1")
    p("s_lshl_b32 s3, s3, 1")
    p("v_or_b32 v12, s3, v12")
    p("v_lshlrev_b32 v12, 1, v12")
    p("v_and_b32 v13, 7, v0")
    p("v_xor_b32 v12, v12, v13")
    p("v_lshlrev_b32 v12, 4, v12")
    p("v_mul_lo_u32 v2, v11, s60")
    p("v_add_u32 v2, v2, v12")
    p("v_mul_u32_u24 v3, 6144, v11")
    p("v_add_u32 v3, v3, v12")

def setup_srds(p):
    if XN3 and MERGED[0]:
        p(f"s_mul_i32 s3, s43, {128*XNP}")
        p(f"s_add_u32 s3, s3, {hex(XN3_OFF)}")
        srd(p, 12, 4, "s3", 128 * XNP)
    else:
        p("s_lshl_b32 s3, s43, 19")
        if XN_OFF: p(f"s_add_u32 s3, s3, {hex(XN_OFF)}")
        srd(p, 12, 4, "s3", 524288)
    p("s_lshl_b32 s61, s44, 8")
    p("s_lshl_b32 s62, s44, 9")
    p(f"s_sub_u32 s62, s62, {28*512 - 4096}")
    p("s_add_u32 s63, s62, 256")
    p("s_cmp_eq_u32 s48, 1")
    p("s_cselect_b32 s64, s62, s61")
    p("s_cselect_b32 s65, s63, s61")
    p("s_cselect_b32 s66, s6, s8")
    p("s_cselect_b32 s67, s7, s9")
    p("s_cselect_b32 s68, s6, s10")
    p("s_cselect_b32 s69, s7, s11")
    csel(p, "s70", D*3*D*2, D*F*2)
    p("s_sub_u32 s71, s70, s64")
    srd(p, 16, 66, "s64", "s71")
    p("s_sub_u32 s71, s70, s65")
    srd(p, 20, 68, "s65", "s71")
    p("s_lshl_b32 s61, s44, 7")
    p(f"s_sub_u32 s71, {hex(D*3*D*2)}, s61")
    srd(p, 24, 6, "s61", "s71")
    p("s_mov_b32 s36, 0")
    p("s_mov_b32 s37, 0")
    p("s_mov_b32 s38, 0")

def setup_addrs(p):
    p("v_lshlrev_b32 v4, 4, v0")
    p("s_lshl_b32 s3, s46, 13")
    p("v_add_u32 v4, s3, v4")
    p("v_lshrrev_b32 v11, 4, v0")
    p("v_bfe_u32 v12, v0, 2, 2")
    p("v_and_b32 v13, 3, v0")
    p("v_lshlrev_b32 v14, 10, v11")
    p("v_lshl_add_u32 v14, v12, 7, v14")
    p("v_lshl_add_u32 v14, v13, 3, v14")
    p("v_lshrrev_b32 v15, 1, v12")
    p("v_and_b32 v16, 1, v11")
    p("v_lshl_or_b32 v15, v16, 1, v15")
    p("s_lshl_b32 s3, s47, 14")
    p("s_add_u32 s3, s3, 0x10000")
    for nb in range(4):
        p(f"v_xor_b32 v16, {nb}, v15")
        p(f"v_lshl_add_u32 v16, v16, 5, v14")
        p(f"v_add_u32 v{5+nb}, s3, v16")
    p("s_lshl_b32 s3, s47, 1")
    for i in range(2):
        p(f"s_add_u32 s61, s3, {i}")
        p(f"v_xor_b32 v16, s61, v15")
        p(f"v_lshl_add_u32 v16, v16, 5, v14")
        p(f"v_add_u32 v{9+i}, 0x20000, v16")
    p("v_and_b32 v16, 15, v0")
    p("v_lshrrev_b32 v17, 1, v11")
    p("v_and_b32 v18, 1, v11")
    p("v_lshlrev_b32 v19, 9, v18")
    p("s_cmp_eq_u32 s48, 1")
    p("s_cselect_b32 s61, 10, 12")
    p("v_lshlrev_b32 v12, s61, v17")
    p("v_add_u32 v12, v12, v19")
    p("v_lshl_add_u32 v12, v16, 4, v12")
    p("v_lshl_add_u32 v19, v17, 10, v19")
    p("v_lshrrev_b32 v17, 3, v16")
    p("v_and_b32 v18, 7, v16")
    p("v_lshl_add_u32 v17, v17, 4, v18")
    p("s_cmp_lt_u32 s44, 16")
    p("s_cselect_b64 vcc, -1, 0")
    csel(p, "s61", 256, 128)
    csel(p, "s62", 2048, 4096)
    p(f"s_cselect_b32 s56, {hex(f2u(32**-0.5 * math.log2(math.e)))}, 1.0")
    p("s_mov_b32 s57, s56")
    csel(p, "s63", QF_OFF, KV_OFF)
    p("s_cselect_b32 s6, 17, 18")
    p("v_cndmask_b32 v17, v17, v16, vcc")
    p("v_lshl_add_u32 v13, v17, 4, v19")
    p("v_add_u32 v14, s61, v13")
    if M16[0]:
        p("v_lshlrev_b32 v12, 4, v0")
        p("v_mov_b32 v13, v12")
        p("v_add_u32 v14, 0x400, v12")
    p("s_mov_b32 s52, 0")
    p("s_mov_b32 s53, s62")
    p("s_lshl_b32 s54, s62, 1")
    p("s_add_u32 s55, s54, s62")
    p("s_and_b32 s7, s44, 15")
    p("s_lshl_b32 s7, s7, 1")
    p("s_add_u32 s7, s7, s47")
    p("s_lshl_b32 s7, s7, s6")
    p("s_add_u32 s63, s63, s7")
    p("s_lshl_b32 s7, s43, 3")
    p("s_lshl_b32 s8, s46, 2")
    p("s_add_u32 s7, s7, s8")
    p("s_mul_i32 s8, s7, s62")
    p("s_add_u32 s63, s63, s8")
    p("s_lshl_b32 s9, s62, 2")
    srd(p, 32, 4, "s63", "s9")
    p("s_lshl_b32 s8, s43, 1")
    p("s_add_u32 s8, s8, s46")
    p("s_mul_i32 s8, s8, 917504")
    p("s_lshl_b32 s9, s44, 1")
    p("s_add_u32 s9, s9, s47")
    p("s_lshl_b32 s9, s9, 14")
    p("s_add_u32 s8, s8, s9")
    p(f"s_add_u32 s8, s8, {hex(HF_OFF)}")
    p("s_sub_u32 s9, s44, 28")
    p("s_lshl_b32 s9, s9, 2")
    p("s_add_u32 s9, s9, s47")
    p("s_lshl_b32 s9, s9, 19")
    p("s_lshl_b32 s10, s7, 12")
    p("s_add_u32 s9, s9, s10")
    p(f"s_add_u32 s9, s9, {hex(KV_OFF + 2048)}")
    p("s_cmp_eq_u32 s48, 1")
    p("s_cselect_b32 s8, s9, s8")
    csel(p, "s9", 5*262144 + 4*4096 - 2048, 0x4000)
    srd(p, 28, 4, "s8", "s9")
    p("s_mov_b32 s50, 0x2000")
    p(f"s_mov_b32 s58, {hex(f2u(-math.log2(math.e)))}")
    p("s_mov_b32 s59, s58")

def setup_xn3(p):
    p("v_lshrrev_b32 v16, 3, v0")
    p("s_lshl_b32 s3, s45, 5")
    p("v_add_u32 v16, s3, v16")
    p(f"v_mul_u32_u24 v1, {XNP}, v16")
    p("v_and_b32 v16, 7, v0")
    p("v_lshl_add_u32 v1, v16, 4, v1")
    for i in range(1, 4): p(f"v_add_u32 v{16+i}, {hex(i * (8 * XNP - 1024))}, v1")
    p("v_bfe_u32 v16, v0, 3, 1")
    p("v_lshlrev_b32 v16, 1, v16")
    p("v_lshrrev_b32 v4, 4, v0")
    p("v_xor_b32 v4, v4, v16")
    p("v_lshlrev_b32 v4, 4, v4")
    p("v_and_b32 v16, 15, v0")
    p("v_lshl_add_u32 v4, v16, 6, v4")
    p("s_lshl_b32 s3, s46, 13")
    p("v_add_u32 v4, s3, v4")

def setup_pf(p, R0):
    if PF:
        p("s_lshl_b32 s3, s2, 2")
        p("s_add_u32 s3, s3, s45")
        p("s_lshl_b32 s3, s3, 6")
        p("v_add_u32 v45, s3, v0")
        p("v_lshlrev_b32 v45, 3, v45")
        srd(p, 68, 74, 0, D * D * 2)
        p("s_mov_b32 s51, 0")
        p("s_mov_b64 s[62:63], s[6:7]"); p("s_mov_b32 s61, 6"); p(f"s_mov_b32 s60, {hex(D*3*D*2)}"); p(f"s_mov_b32 s49, {R0*6144}")
        p("s_cmp_eq_u32 s45, 0")
        p("s_cbranch_scc1 L_k1_pfsel")
        p("s_mov_b64 s[62:63], s[8:9]"); p("s_mov_b32 s61, 7"); p(f"s_mov_b32 s60, {hex(D*F*2)}"); p(f"s_mov_b32 s49, {R0*7168}")
        p("s_cmp_eq_u32 s45, 1")
        p("s_cbranch_scc1 L_k1_pfsel")
        p("s_mov_b64 s[62:63], s[10:11]")
        p("s_cmp_eq_u32 s45, 2")
        p("s_cbranch_scc1 L_k1_pfsel")
        p("s_mov_b64 s[62:63], s[72:73]"); p("s_mov_b32 s61, 10"); p("s_mov_b32 s49, 0")
        p.label("L_k1_pfsel")
        srd(p, 64, 62, 0, "s60")
        p("s_lshl_b32 s72, s61, 15")
        p("s_mul_i32 s3, s2, s61")
        p("v_add_u32 v44, s3, v0")
        p("v_lshlrev_b32 v44, 7, v44")
        p("v_cmp_gt_u32 vcc, s61, v0")
        p("v_bfrev_b32 v17, 1")
        p("s_nop 0")
        p("v_cndmask_b32 v44, v17, v44, vcc")

def gen_k1(name="gemm1_kernel"):
    p = Prog()
    p("s_cmp_ge_u32 s2, 256")
    p("s_cbranch_scc1 L_k1_end")
    stamp(p, 0); stamp_rt(p, 1)
    p(f"s_load_dwordx2 s[4:5], s[0:1], {KA_WS}")
    p(f"s_load_dwordx2 s[6:7], s[0:1], {KA_WQKV}")
    p(f"s_load_dwordx4 s[8:11], s[0:1], {KA_WG}")
    if PF:
        p(f"s_load_dwordx2 s[72:73], s[0:1], {KA_WD}")
        p(f"s_load_dwordx2 s[74:75], s[0:1], {KA_WO}")
    code_prefetch(p, "k1", "L_k1_end", 0, 20, 76, n=2)
    p("v_lshrrev_b32 v11, 6, v0")
    p("v_and_b32 v0, 63, v0")
    p("v_readfirstlane_b32 s45, v11")
    setup_ids(p)
    p("s_waitcnt lgkmcnt(0)")
    stamp(p, 8)
    setup_srds(p)
    def pro_dma(t):
        for i, o in enumerate(dma_ops(p, t, f"d{t}")):
            o()
            if "m0" in p.ins[-1].text and p.ins[-1].text.startswith("s_add"):
                p("s_nop 0")
    pro_dma(0)
    stamp(p, 9)
    pro_dma(1)
    setup_pf(p, int(os.environ.get("K0PF", "192")))
    stamp(p, 7)
    setup_addrs(p)
    stamp(p, 2)
    p.wait(vm="d0")
    p("s_barrier")
    stamp(p, 3)
    for o in read_ops(p, 0, 0, "f0"): o()
    p("s_mov_b32 s42, 6")
    p("s_cmp_eq_u32 s48, 1")
    p.wait(lg="f0")
    p("s_cbranch_scc1 L_k1_v")
    head = p.mark()
    lin_all = []
    out_text = []
    final = Prog()
    final.ins = list(p.ins)
    for isV in (False, True):
        q = Prog(); q.vmq = list(p.vmq); q.lgq = list(p.lgq)
        sfx = "v" if isV else "f"
        marks = []
        iteration(q, 0, isV, dmas=[2, 3], pf="wd")
        iteration(q, 1, isV, dmas=[4, 5], pf="wd")
        for t in range(2, 26):
            if t % 4 == 2: marks.append(q.mark())
            iteration(q, t, isV, loopctl=(f"L_k1_loop_{sfx}" if t % 4 == 1 else None), dmas=[t + 4],
                      pf=("wo" if t % 4 == 0 else "wd"))
        marks.append(q.mark())
        iteration(q, 26, isV, dmas=[30])
        body = unify([q.ins[marks[i]:marks[i+1]] for i in range(6)])
        if STAMP:
            for i in range(5): q(f"v_readlane_b32 s{64+i}, v47, {[5,4,3,1,0][i]}")
        tail(q, isV)
        stamp(q, 5)
        if STAMP: q("s_waitcnt vmcnt(0)")
        stamp(q, 6); stamp_rt(q, 10)
        stamp_out(q, 11, 1, 4, "s45", extra=[64, 65, 66, 67, 68])
        q("s_endpgm")
        lin_all.append([i.text for i in p.ins] + [i.text for i in q.ins])
        if isV:
            final.label("L_k1_v")
        final.ins += q.ins[:marks[0]]
        final.ins.append(Ins(".p2align 6", "dir"))
        final.label(f"L_k1_loop_{sfx}")
        final.ins += body
        final.ins += q.ins[marks[6]:]
    final.label("L_k1_end")
    final("s_endpgm")
    launch = f"; @launch kernel={name} grid=(256,1,1) block=(256,1,1) lds=147456"
    return dict(name=name, prog=final, launch=launch, kd=kd(name, 512, 102, 256), lins=lin_all)
```

```python
from common import *
import k1_gemm1 as K1
import p2n

def ln_compute(p, R, X, T, vw, vr, lds0, smask, mid=None):
    for k in range(16):
        p(f"v_lshlrev_b32 v{X+2*k}, 16, v{R+k}")
        p(f"v_and_b32 v{X+2*k+1}, {smask}, v{R+k}")
    def pk(op, d, a, b, extra=""):
        p(f"v_pk_{op}_f32 v[{d}:{d+1}], v[{a}:{a+1}], v[{b}:{b+1}]{extra}")
    def cross(off, dst):
        pk("add", T, T, T + 2); pk("add", T + 4, T + 4, T + 6); pk("add", T, T, T + 4)
        p(f"v_add_f32 v{T}, v{T}, v{T+1}")
        if XN3:
            for d_ in ("quad_perm:[1,0,3,2]", "quad_perm:[2,3,0,1]", "row_ror:8"):
                p("s_nop 1")
                p(f"v_add_f32_dpp v{T}, v{T}, v{T} {d_} row_mask:0xf bank_mask:0xf")
            for w_ in ("16", "32"):
                p(f"v_mov_b32 v{T+1}, v{T}")
                p("s_nop 1")
                p(f"v_permlane{w_}_swap_b32 v{T}, v{T+1}")
                p(f"v_add_f32 v{T}, v{T}, v{T+1}")
            p(f"v_mul_f32 v{dst}, 0x3a800000, v{T}")
            return
        p("s_nop 1")
        p(f"v_add_f32_dpp v{T}, v{T}, v{T} row_ror:8 row_mask:0xf bank_mask:0xf")
        p.lds(f"ds_write_b32 v{vw}, v{T} offset:{off}", "lw")
        p.wait(lg="lw")
        p("s_barrier")
        for j in range(4):
            p.lds(f"ds_read_b128 v[{T+8+4*j}:{T+11+4*j}], v{vr} offset:{off+16*j}", "lr")
        p.wait(lg="lr")
        for j in range(4): pk("add", T + 8 + 2 * j, T + 8 + 2 * j, T + 16 + 2 * j)
        pk("add", T + 8, T + 8, T + 12); pk("add", T + 10, T + 10, T + 14); pk("add", T + 8, T + 8, T + 10)
        p(f"v_add_f32 v{dst}, v{T+8}, v{T+9}")
        p(f"v_mul_f32 v{dst}, 0x3a800000, v{dst}")
    for a in range(4): pk("add", T + 2 * a, X + 2 * a, X + 8 + 2 * a)
    for k in range(8, 16): pk("add", T + 2 * (k % 4), T + 2 * (k % 4), X + 2 * k)
    M = T + 24; Vv = T + 26; Dd = T + 28
    cross(0, M)
    NEG = " op_sel_hi:[1,0] neg_lo:[0,1] neg_hi:[0,1]"
    for k in range(16):
        d = Dd + 2 * (k % 8)
        pk("add", d, X + 2 * k, M, NEG)
        if k >= 3:
            kk = k - 3; dd = Dd + 2 * (kk % 8); a = T + 2 * (kk % 4)
            if kk < 4: pk("mul", a, dd, dd)
            else: p(f"v_pk_fma_f32 v[{a}:{a+1}], v[{dd}:{dd+1}], v[{dd}:{dd+1}], v[{a}:{a+1}]")
    for kk in range(13, 16):
        dd = Dd + 2 * (kk % 8); a = T + 2 * (kk % 4)
        p(f"v_pk_fma_f32 v[{a}:{a+1}], v[{dd}:{dd+1}], v[{dd}:{dd+1}], v[{a}:{a+1}]")
    p(f"v_cvt_pk_bf16_f32 v{Dd}, v{M}, v{M}")
    p(f"v_and_b32 v{M}, {smask}, v{Dd}")
    if mid: mid()
    cross(1024, Vv)
    p(f"v_cvt_pk_bf16_f32 v{Dd}, v{Vv}, v{Vv}")
    p(f"v_and_b32 v{Vv}, {smask}, v{Dd}")
    p(f"v_add_f32 v{Vv}, 0x3727c5ac, v{Vv}")
    p(f"v_cvt_pk_bf16_f32 v{Dd}, v{Vv}, v{Vv}")
    p(f"v_and_b32 v{Vv}, {smask}, v{Dd}")
    p(f"v_sqrt_f32 v{Vv}, v{Vv}")
    pk("add", X, X, M, NEG)
    p(f"v_cvt_pk_bf16_f32 v{Dd}, v{Vv}, v{Vv}")
    p(f"v_and_b32 v{Vv}, {smask}, v{Dd}")
    p(f"v_rcp_f32 v{Vv}, v{Vv}")
    for k in range(1, 16): pk("add", X + 2 * k, X + 2 * k, M, NEG)
    for k in range(16): p(f"v_cvt_pk_bf16_f32 v{R+k}, v{X+2*k}, v{X+2*k+1}")
    for k in range(16):
        p(f"v_lshlrev_b32 v{X+2*k}, 16, v{R+k}")
        p(f"v_and_b32 v{X+2*k+1}, {smask}, v{R+k}")
    for k in range(16): pk("mul", X + 2 * k, X + 2 * k, Vv, " op_sel_hi:[1,0]")

def gen_mega(name):
    K1.MERGED[0] = True
    K1.M16[0] = True
    p = Prog()
    def run_ops(ops):
        for o in ops:
            o()
            if "m0," in p.ins[-1].text: p("s_nop 0")
    p("s_cmp_ge_u32 s2, 256")
    p("s_cbranch_scc1 L_k2_end")
    stamp(p, 0); stamp_rt(p, 1)
    p(f"s_load_dwordx2 s[30:31], s[0:1], {KA_X}")
    p(f"s_load_dwordx4 s[76:79], s[0:1], {KA_DBG}")
    if CPF:
        p("s_getpc_b64 s[62:63]")
        p.label("L_p0_pc")
        CM = os.environ.get("CM", "2")
        if CM == "0":
            p("s_lshr_b32 s3, s2, 3")
            p("s_and_b32 s3, s3, 3")
            p("s_lshl_b32 s3, s3, 14")
            p("v_lshlrev_b32 v20, 7, v0")
            p("v_add_u32 v21, s3, v20")
            p("v_subrev_u32 v21, 0x2000, v21")
            p("v_lshrrev_b32 v20, 1, v20")
            p("v_cmp_gt_u32 vcc, 128, v0")
            p("s_nop 1")
            p("v_cndmask_b32 v20, v21, v20, vcc")
        else:
            sh = 4 if CM == "1" else 2
            p("s_lshr_b32 s3, s2, 3")
            if CM == "2": p("s_and_b32 s3, s3, 7")
            p(f"v_lshrrev_b32 v20, {sh}, v0")
            p(f"v_lshlrev_b32 v20, {5 if CM == '1' else 3}, v20")
            p("v_add_u32 v20, s3, v20")
            p("v_lshlrev_b32 v20, 7, v20")
        p("v_min_u32 v20, L_code_end-L_p0_pc, v20")
        p.vmem("global_load_dword v46, v20, s[62:63]", "cpf")
    p(f"s_load_dwordx2 s[6:7], s[0:1], {KA_WQKV}")
    p(f"s_load_dwordx4 s[8:11], s[0:1], {KA_WG}")
    p(f"s_load_dwordx2 s[72:73], s[0:1], {KA_WD}")
    p(f"s_load_dwordx2 s[74:75], s[0:1], {KA_WO}")
    R, X, T = 56, 72, 104
    VIN, VOUT, VW, VR = 48, 49, 50, 51
    LDS0 = 147456
    p("v_and_b32 v20, 7, v0")
    p("v_lshrrev_b32 v21, 3, v0")
    if XN3:
        p("s_and_b32 s3, s2, 1")
        p("s_lshl_b32 s3, s3, 1")
        p("v_and_b32 v22, 3, v0")
        p("v_xor_b32 v22, s3, v22")
        p(f"v_lshlrev_b32 v{VIN}, 4, v22")
        p("v_bfe_u32 v22, v0, 3, 3")
        p(f"v_lshl_add_u32 v{VIN}, v22, 6, v{VIN}")
        p("v_bfe_u32 v22, v0, 2, 1")
        p(f"v_lshl_add_u32 v{VIN}, v22, 11, v{VIN}")
        p("v_lshrrev_b32 v22, 6, v0")
        p(f"v_lshl_add_u32 v{VIN}, v22, 12, v{VIN}")
    else:
        p(f"v_lshlrev_b32 v{VIN}, 11, v20")
        p(f"v_lshl_add_u32 v{VIN}, v21, 4, v{VIN}")
    p("v_lshrrev_b32 v11, 6, v0")
    p("s_lshl_b32 s33, s2, 14")
    p("v_readfirstlane_b32 s45, v11")
    p("s_waitcnt lgkmcnt(0)")
    p("s_mov_b64 s[4:5], s[78:79]")
    p("s_or_b32 s3, s2, s45")
    p("s_cmp_lg_u32 s3, 0")
    p("s_cbranch_scc1 L_p0_nozero")
    srd(p, 56, 4, FL_OFF, 32768)
    p("v_lshlrev_b32 v24, 7, v0")
    p("v_mov_b32 v25, 0")
    for i in range(4):
        p(f"s_movk_i32 s3, {hex(8192*i)}")
        p(f"buffer_store_dword v25, v24, s[56:59], s3 offen sc1")
    p.label("L_p0_nozero")
    nz = len(p.vmq)
    p("s_mov_b32 s28, s30"); p("s_and_b32 s29, s31, 0xffff"); p(f"s_mov_b32 s30, {hex(S*D*2)}"); p("s_mov_b32 s31, 0x20000")
    for i in range(4):
        p.vmem(f"buffer_load_dwordx4 v[{R+4*i}:{R+4*i+3}], v{VIN}, s[28:31], s33 offen offset:{512*i} {os.environ.get('XPOL', '')}", "x")
    stamp(p, 8, 1); stamp(p, 8, 4)
    if not XN3:
        p(f"v_lshrrev_b32 v{VOUT}, 2, v21")
        p(f"v_lshlrev_b32 v{VOUT}, 14, v{VOUT}")
        p("v_and_b32 v22, 3, v21")
        p(f"v_lshl_add_u32 v{VOUT}, v22, 8, v{VOUT}")
        p(f"v_lshl_add_u32 v{VOUT}, v20, 4, v{VOUT}")
        p(f"v_mul_u32_u24 v{VR}, 80, v20")
        p(f"v_add_u32 v{VR}, {LDS0}, v{VR}")
        p("v_lshrrev_b32 v22, 4, v0")
        p(f"v_lshl_add_u32 v{VW}, v22, 2, v{VR}")
    p("v_and_b32 v0, 63, v0")
    if XN3: p(f"v_lshlrev_b32 v{VOUT}, 4, v0")
    K1.setup_ids(p)
    K1.setup_srds(p)
    BE = int(os.environ.get("BE", "2"))
    if BE >= 1: run_ops(K1.dma_ops(p, 0, "d0", "B"))
    K1.setup_pf(p, 192 if os.environ.get("PFE") == "n" else 64)
    if BE >= 2: run_ops(K1.dma_ops(p, 1, "d1", "B"))
    p("s_or_b32 s3, s2, s45")
    p("s_cmp_lg_u32 s3, 0")
    p("s_cbranch_scc1 L_p0_nogo")
    p("v_mov_b32 v20, 1")
    p("v_mov_b32 v21, 0")
    p(f"s_waitcnt vmcnt({len(p.vmq) - nz})")
    p("s_mov_b64 exec, 1")
    p("global_store_dword v21, v20, s[76:77] sc1")
    p("s_mov_b64 exec, -1")
    p.label("L_p0_nogo")
    PFE = os.environ.get("PFE", "1") == "1"
    PFN = os.environ.get("PFE", "1") == "n"
    if PFE:
        for i in range(4):
            p.vmem("buffer_load_dword v46, v44, s[64:67], s49 offen", "pf")
            p("s_add_u32 s49, s49, s72")
    if XN3:
        p("s_lshl_b32 s3, s2, 2")
        p("s_add_u32 s3, s3, s45")
        p(f"s_mul_i32 s3, s3, {XNP}")
        p(f"s_add_u32 s3, s3, {hex(XN3_OFF)}")
        srd(p, 60, 4, "s3", 4096)
    else:
        p("s_lshr_b32 s3, s2, 5")
        p("s_lshl_b32 s3, s3, 19")
        p("s_lshl_b32 s73, s2, 9")
        p("s_and_b32 s73, s73, 0x3c00")
        p("s_add_u32 s3, s3, s73")
        p("s_and_b32 s73, s2, 1")
        p("s_lshl_b32 s73, s73, 7")
        p("s_add_u32 s3, s3, s73")
        if XN_OFF: p(f"s_add_u32 s3, s3, {hex(XN_OFF)}")
        srd(p, 60, 4, "s3", 524288 - 16384 + 1024)
    p("s_mov_b32 s73, 0xffff0000")
    stamp(p, 7, 1); stamp(p, 7, 4)
    p.wait(vm="x")
    stamp(p, 2, 1); stamp(p, 2, 4)
    ln_compute(p, R, X, T, VW, VR, LDS0, "s73", mid=lambda: (p("v_mov_b32 v21, 0"), p.vmem("global_load_dword v23, v21, s[76:77] sc1", "go")))
    for i in range(4):
        for k in range(4):
            kk = 4 * i + k
            p(f"v_cvt_pk_bf16_f32 v{R+kk}, v{X+2*kk}, v{X+2*kk+1}")
        if XN3:
            p.vmem(f"buffer_store_dwordx4 v[{R+4*i}:{R+4*i+3}], v{VOUT}, s[60:63], 0 offen offset:{1024*i} sc1", "xs")
            continue
        p.vmem(f"buffer_store_dwordx4 v[{R+4*i}:{R+4*i+3}], v{VOUT}, s[60:63], 0 offen sc1", "xs")
        if i < 3: p(f"v_add_u32 v{VOUT}, 0x20000, v{VOUT}")
    stamp(p, 4, 4)
    K1.setup_addrs(p)
    if XN3: K1.setup_xn3(p)
    p2n.qkv_poll_addr(p, 15, 24)
    p2n.touch_addr(p)
    p("s_mov_b64 s[74:75], s[76:77]")
    srd(p, 76, 4, FL_OFF, 32768)
    p("s_lshl_b32 s73, s2, 7")
    p("s_lshl_b32 s60, s43, 12")
    p("v_and_b32 v20, 31, v0")
    p("v_lshlrev_b32 v20, 7, v20")
    p("v_mov_b32 v22, 1")
    stamp(p, 5, 4)
    p.wait(vm="xs")
    p("s_barrier")
    stamp(p, 6, 4)
    p("s_cmp_eq_u32 s45, 3")
    p("s_cbranch_scc1 L_p0_sig")
    for i in range(0 if (PFE or PFN) else 4):
        p("buffer_load_dword v46, v44, s[64:67], s49 offen")
        p("s_add_u32 s49, s49, s72")
    p("s_branch L_p0_polled")
    p.label("L_p0_sig")
    p("s_mov_b32 s61, 0x40000")
    p.label("L_p0_go")
    p("v_cmp_ne_u32 vcc, 1, v23")
    p("s_sub_u32 s61, s61, 1")
    p("s_cmp_eq_u32 s61, 0")
    p("s_cbranch_scc1 L_p0_gone")
    p("s_nop 1")
    p("s_cbranch_vccz L_p0_gone")
    p("global_load_dword v23, v21, s[74:75] sc1")
    p("s_waitcnt vmcnt(0)")
    p("s_branch L_p0_go")
    p.label("L_p0_gone")
    p("s_mov_b64 exec, 1")
    p("buffer_store_dword v22, v21, s[76:79], s73 offen sc1")
    p("s_mov_b64 exec, -1")
    p("s_mov_b32 s61, 0x40000")
    p.label("L_p0_poll")
    p("buffer_load_dword v23, v20, s[76:79], s60 offen sc1")
    p("s_sub_u32 s61, s61, 1")
    p("s_waitcnt vmcnt(0)")
    p("v_cmp_gt_u32 vcc, 1, v23")
    p("s_cmp_eq_u32 s61, 0")
    p("s_cbranch_scc1 L_p0_polled")
    p("s_nop 2")
    p("s_cbranch_vccnz L_p0_poll")
    p.label("L_p0_polled")
    p("s_barrier")
    stamp(p, 3, 1); stamp(p, 3, 4)
    run_ops(K1.dma_ops(p, 0, "d0", "A" if BE >= 1 else "AB"))
    run_ops(K1.dma_ops(p, 1, "d1", "A" if BE >= 2 else "AB"))
    p(f"s_load_dwordx4 s[60:63], s[0:1], {KA_WD}")
    p(f"s_load_dwordx2 s[8:9], s[0:1], {KA_WO}")
    p(f"s_load_dwordx2 s[10:11], s[0:1], {KA_X}")
    HV = os.environ.get("HV", "2")
    win, h0, h1 = {"0": ([], [2, 3], [4, 5]),
                   "1": ([(2, "AB")], [3, (4, "B")], [(4, "A"), 5]),
                   "2": ([(2, "B")], [(2, "A"), 3], [4, 5]),
                   "3": ([(2, "B")], [(2, "A"), 3, (4, "B")], [(4, "A"), 5])}[HV]
    for d_, parts in win: run_ops(K1.dma_ops(p, d_, f"d{d_}", parts))
    p.wait(vm="d0")
    p("s_barrier")
    for o in K1.read_ops(p, 0, 0, "f0"): o()
    p("s_mov_b32 s42, 6")
    p("s_cmp_eq_u32 s48, 1")
    p.wait_all(vm=False)
    stamp(p, 9, 1); stamp(p, 9, 4)
    p("s_cbranch_scc1 L_k1_v")
    k2 = p2n.gen_p2()
    lin_all = []
    final = Prog()
    final.ins = list(p.ins)
    for isV in (False, True):
        q = Prog(); q.vmq = list(p.vmq); q.lgq = list(p.lgq)
        sfx = "v" if isV else "f"
        marks = []
        K1.iteration(q, 0, isV, dmas=h0, pf="wd")
        K1.iteration(q, 1, isV, dmas=h1, pf="wd")
        if os.environ.get("ST4") == "1": stamp(q, 3, 1)
        for t in range(2, 26):
            if t % 4 == 2: marks.append(q.mark())
            K1.iteration(q, t, isV, loopctl=(f"L_k1_loop_{sfx}" if t % 4 == 1 else None), dmas=[t + 4],
                         pf=("wo" if t % 4 == 0 else "wd"))
        marks.append(q.mark())
        K1.iteration(q, 26, isV, dmas=[30])
        body = unify([q.ins[marks[i]:marks[i+1]] for i in range(6)])
        if STAMP and os.environ.get("ST4") == "1":
            q("v_readlane_b32 s94, v47, 5"); q("v_readlane_b32 s96, v47, 0"); q("v_readlane_b32 s84, v47, 4")
        MS = int(os.environ.get("MS", "250"))
        g1, g2 = p2n.scalar_setup()
        hooks = []
        for n_, g_ in enumerate(g1): hooks.append((110 + n_, lambda g_=g_, q=q: [q(t_) for t_ in g_]))
        assert 110 + len(g1) < MS
        for n_, g_ in enumerate(g2): hooks.append((MS + 4 + n_, lambda g_=g_, q=q: [q(t_) for t_ in g_]))
        if not isV and p2n.EQ: hooks.append((-int(os.environ.get("QP0", "50")), lambda q=q: q.vmem("buffer_load_dword v47, v15, s[76:79], 0 offen sc1", "qp0")))
        if p2n.CT and not isV:
            to = p2n.touch_ops(q, "p" + sfx, "L_p2", 46)
            CTP = int(os.environ.get("CTP", "360"))
            hooks += [(CTP, to[0]), (CTP + 1, to[1])]
        WDT = int(os.environ.get("WDT", "0"))
        if WDT and not isV:
            to = p2n.wd_touch_ops(q)
            hooks += [(WDT, to[0]), (WDT + 1, to[1])]
        late = (6 if isV else int(os.environ.get("QPL", "30")), lambda q=q: q.vmem("buffer_load_dword v47, v15, s[76:79], 0 offen sc1", "qp"))
        def chk(q=q):
            assert sum(1 for x in q.ins if x.tag == "stq") == 8
            if not isV: q.wait(vm="stq", force=True)
        hooks.append((MS, chk))
        if not isV:
            hooks += [(MS + 1, lambda q=q: q("s_barrier")), (MS + 2, lambda q=q: p2n.signal(q, "f2", 2, 76, "s73", t0=44))]
        K1.tail(q, isV, hooks=hooks, late=late, early=lambda q=q: p2n.early_block(q, sfx))
        stamp(q, 5, 1); stamp(q, 5, 5)
        assert isV or q._cnt(q.vmq, ["qp"]) >= p2n.QP_YOUNGER, q._cnt(q.vmq, ["qp"])
        if isV:
            q("s_waitcnt vmcnt(0)")
            q("s_barrier")
            p2n.signal(q, "v3", 3, 76, "s73")
            q("s_branch L_p2")
        lin_all.append([i.text for i in p.ins] + [i.text for i in q.ins] + k2["lins"][0][:200])
        if isV:
            final.ins += k2["prog"].ins
            final.label("L_k1_v")
        final.ins += q.ins[:marks[0]]
        final.ins.append(Ins(".p2align 6", "dir"))
        final.label(f"L_k1_loop_{sfx}")
        final.ins += body
        final.ins += q.ins[marks[6]:]
    final.label("L_code_end")
    launch = f"; @launch grid=(256,1,1) block=(256,1,1) lds=163840"
    return dict(name=name, prog=final, launch=launch, kd=kd(name, 512, 102, 256), lins=lin_all + k2["lins"])
```

```python
from common import *
from k3_final import tile_map
import math, struct
def f2u(x): return struct.unpack("<I", struct.pack("<f", x))[0]
HSC = os.environ.get("HSC", "sc1")
sc = " " + HSC
HMAP = os.environ.get("HMAP", "1") == "1"
EQ = os.environ.get("EQ", "1") == "1"
M16 = "v_mfma_f32_16x16x32_bf16"
S_ = [16, 32]; CB = 48; P_ = [80, 88]; QR = 96; SEL = 112
VRD = 64; VXW = 68; VXR = 71; VDMA = 116; VROT = 120; HB = 128
QA = 240; OA = 0; LA = 32; KB = 48; VB = 64; ACC = 80; WFR = 208
def r4(b, f="v"): return f"{f}[{b}:{b+3}]"
def Kf(j, f): return r4(KB + 8 * (j & 1) + 4 * f, "a")
def Vf(j, f): return r4(VB + 8 * (j & 1) + 4 * f, "a")
def qk(blk, j, zero=False):
    out = []
    for kb, q in ((0, 0), (0, 1), (1, 1), (1, 0)):
        c = "0" if zero else r4(CB + 4 * (2 * blk + q))
        out.append(f"{M16} {r4(S_[blk] + 8*q + 4*kb)}, {Kf(j, kb)}, {r4(QA + 4*(2*blk+q), 'a')}, {c}")
    return out
def pv(blk, j):
    out = []
    for q, what in ((0, 0), (0, 1), (0, "L"), (1, "L"), (1, 1), (1, 0)):
        P = r4(P_[blk] + 4 * q); qq = 2 * blk + q
        if what == "L":
            d = r4(LA + 4 * qq, "a"); out.append(f"{M16} {d}, {r4(SEL)}, {P}, {d}")
        else:
            d = r4(OA + 8 * qq + 4 * what, "a"); out.append(f"{M16} {d}, {Vf(j, what)}, {P}, {d}")
    return out
def softmax_valu(blk):
    S = S_[blk]; P = P_[blk]
    e = [(f"v_exp_f32 v{S+i}, v{S+i}", 8) for i in range(16)]
    c = [(f"v_cvt_pk_bf16_f32 v{P+k}, v{S+2*k}, v{S+2*k+1}", 4) for k in range(8)]
    out = []
    for i in range(16):
        out.append(e[i])
        if i >= 2 and i % 2 == 0: out.append(c[(i - 2) // 2])
    return out[:-2] + [e[15], c[6], c[7]]

def fill16(p, mf, valu, side):
    n = len(mf)
    ext = {i: [] for i in range(n)}
    for g_, fn, kind in side:
        assert 0 <= g_ < n, (g_, n)
        ext[g_].append((fn, kind))
    cost = []
    for i in range(n):
        c = 4 * len(ext[i])
        if ext[i] and ext[i][0][1] == "s": c -= 4
        cost.append(c)
    tot = sum(cost) + sum(c for _, c in valu)
    cum = 0; vi = 0
    for i in range(n):
        p(mf[i])
        for fn, _ in ext[i]: fn()
        used = cost[i]; cum += cost[i]
        target = tot * (i + 1) / n
        while vi < len(valu):
            c = valu[vi][1]
            need_later = sum(max(0, 8 - cost[k]) for k in range(i + 1, n))
            left = sum(x for _, x in valu[vi:])
            if i == n - 1 or used < 8 or (cum + c / 2 <= target and left - c >= need_later):
                p(valu[vi][0]); cum += c; used += c; vi += 1
            else: break

def wg_of(p, nt, mt, out, t1, t2, t3):
    p(f"v_mul_u32_u24 v{out}, 43, v{nt}")
    p(f"v_lshrrev_b32 v{out}, 7, v{out}")
    p(f"v_mul_u32_u24 v{t1}, 3, v{out}")
    p(f"v_sub_u32 v{t1}, v{nt}, v{t1}")
    p(f"v_lshl_add_u32 v{out}, v{t1}, 6, v{out}")
    p(f"v_and_b32 v{t1}, 3, v{nt}")
    p(f"v_lshlrev_b32 v{t1}, 1, v{t1}")
    p(f"v_lshrrev_b32 v{t2}, 2, v{mt}")
    p(f"v_bfe_u32 v{t3}, v{nt}, 2, 1")
    p(f"v_xor_b32 v{t2}, v{t2}, v{t3}")
    p(f"v_xor_b32 v{t2}, 1, v{t2}")
    p(f"v_add3_u32 v{t1}, v{t1}, v{t2}, 64")
    p(f"v_add_u32 v{t1}, 128, v{t1}")
    p(f"v_cmp_gt_u32 vcc, 24, v{nt}")
    p("s_nop 1")
    p(f"v_cndmask_b32 v{out}, v{t1}, v{out}, vcc")
    p(f"v_lshl_add_u32 v{out}, v{mt}, 3, v{out}")
    p(f"v_lshlrev_b32 v{out}, 7, v{out}")

CT = os.environ.get("CT", "1") == "1"
def touch_addr(p):
    p("s_lshr_b32 s3, s2, 3")
    p("s_lshl_b32 s3, s3, 2")
    p("s_add_u32 s3, s3, s45")
    p("v_and_b32 v11, 3, v0")
    p("v_lshlrev_b32 v11, 5, v11")
    p("v_add_u32 v11, s3, v11")
    p("v_and_b32 v11, 127, v11")
    p("v_lshlrev_b32 v11, 7, v11")
def touch_ops(p, tag, target, vdst):
    def a():
        p("s_getpc_b64 s[74:75]")
        p.label(f"L_ct_{tag}")
        p(f"s_add_u32 s74, s74, {target}-L_ct_{tag}")
        p("s_addc_u32 s75, s75, 0")
    return [a, lambda: p.vmem(f"global_load_dword v{vdst}, v11, s[74:75]", "ct")]

def qkv_poll_addr(p, out, t):
    p("s_and_b32 s3, s2, 7")
    p("s_lshl_b32 s3, s3, 2")
    if HMAP:
        p("s_lshr_b32 s3, 0x04621753, s3")
        p("s_and_b32 s3, s3, 7")
        p("s_lshl_b32 s3, s3, 2")
    p("s_lshr_b32 s6, s2, 6")
    p("s_add_u32 s3, s3, s6")
    p("s_lshr_b32 s6, s3, 1")
    p("s_lshr_b32 s7, s3, 3")
    p("s_add_u32 s7, s7, 28")
    p(f"v_mov_b32 v{t}, s6")
    p(f"v_mov_b32 v{t+2}, s7")
    p("s_bfe_u32 s3, s2, 0x30003")
    p(f"v_mov_b32 v{t+1}, s3")
    p(f"v_and_b32 v{t+3}, 7, v0")
    p("v_cmp_gt_u32 vcc, 16, v0")
    p("s_add_u32 s6, s6, 16")
    p(f"v_mov_b32 v{t+4}, s6")
    p(f"v_cndmask_b32 v{t}, v{t}, v{t+2}, vcc")
    p(f"v_cndmask_b32 v{t+1}, v{t+1}, v{t+3}, vcc")
    p("v_cmp_gt_u32 vcc, 8, v0")
    p("s_nop 1")
    p(f"v_cndmask_b32 v{t}, v{t}, v{t+4}, vcc")
    wg_of(p, t, t + 1, out, t + 2, t + 3, t + 4)

def spin(p, tag, vdst, vaddr, srdn, soff, need, first_check=True):
    p("s_mov_b32 s70, 0x40000")
    if not first_check:
        p(f"s_branch L_{tag}_ld")
    p.label(f"L_{tag}_ck")
    p(f"v_cmp_gt_u32 vcc, {need}, v{vdst}")
    p("s_sub_u32 s70, s70, 1")
    p("s_cmp_eq_u32 s70, 0")
    p(f"s_cbranch_scc1 L_{tag}_ok")
    p("s_nop 1")
    p(f"s_cbranch_vccz L_{tag}_ok")
    p.label(f"L_{tag}_ld")
    p(f"buffer_load_dword v{vdst}, v{vaddr}, s[{srdn}:{srdn+3}], {soff} offen sc1")
    p("s_waitcnt vmcnt(0)")
    p(f"s_branch L_{tag}_ck")
    p.label(f"L_{tag}_ok")

def signal(p, tag, val, srdn, soff, t0=6, cond=None):
    p("s_cmp_lg_u32 s45, 0" if cond is None else cond)
    p(f"s_cbranch_scc1 L_{tag}_ns")
    p(f"v_mov_b32 v{t0}, {val}")
    p(f"v_mov_b32 v{t0+1}, 0")
    p("s_mov_b64 exec, 1")
    p(f"buffer_store_dword v{t0}, v{t0+1}, s[{srdn}:{srdn+3}], {soff} offen sc1")
    p("s_mov_b64 exec, -1")
    p.label(f"L_{tag}_ns")

QP_YOUNGER = int(os.environ.get('QPY', '1'))
def scalar_setup():
    p = Prog()
    p("s_and_b32 s44, s2, 7")
    p("s_lshl_b32 s44, s44, 2")
    if HMAP:
        p("s_lshr_b32 s44, 0x04621753, s44")
        p("s_and_b32 s44, s44, 7")
        p("s_lshl_b32 s44, s44, 2")
    p("s_lshr_b32 s43, s2, 3")
    p("s_lshr_b32 s3, s43, 3")
    p("s_add_u32 s44, s44, s3")
    p("s_and_b32 s43, s43, 7")
    p("s_lshl_b32 s36, s45, 12")
    p("s_mov_b32 s37, s36")
    p("s_lshl_b32 s3, s44, 18")
    p(f"s_add_u32 s3, s3, {hex(KV_OFF)}")
    srd(p, 12, 4, "s3", 262144)
    p("s_lshl_b32 s3, s44, 17")
    p("s_lshl_b32 s6, s43, 14")
    p("s_add_u32 s3, s3, s6")
    p("s_add_u32 s3, s3, s36")
    p(f"s_add_u32 s3, s3, {hex(QF_OFF)}")
    srd(p, 16, 4, "s3", 4096)
    tile_map(p, "s46", "s47")
    p("s_lshl_b32 s41, s45, 14")
    p("s_add_u32 s41, s41, 0x10000")
    p(f"s_mul_i32 s3, s45, {896*2048}")
    p("s_lshl_b32 s6, s47, 7")
    p("s_add_u32 s3, s3, s6")
    p(f"s_sub_u32 s7, {896*2048}, s6")
    srd(p, 64, 60, "s3", "s7")
    p("s_mov_b32 s39, 0"); p("s_mov_b32 s40, 0")
    p("s_mul_i32 s3, s46, 917504")
    p(f"s_mul_i32 s6, s45, {28*8192}")
    p("s_add_u32 s3, s3, s6")
    p(f"s_add_u32 s3, s3, {hex(HF_OFF)}")
    srd(p, 24, 4, "s3", 28 * 8192)
    p("s_lshl_b32 s3, s43, 2")
    p("s_add_u32 s3, s3, s45")
    p(f"s_mul_i32 s3, s3, {2*OF_ST}")
    p("s_lshl_b32 s6, s44, 11")
    p("s_add_u32 s3, s3, s6")
    p(f"s_add_u32 s3, s3, {hex(OF_OFF)}")
    srd(p, 20, 4, "s3", OF_ST + 2048)
    p(f"s_mov_b32 s50, {OF_ST}")
    p("s_mov_b32 s38, 0x4000")
    p("s_lshl_b32 s68, s45, 16")
    p("s_lshl_b32 s49, s45, 12")
    p("s_lshr_b32 s69, s46, 1")
    p("s_mov_b32 s42, 13")
    n1 = len(p.ins)
    p("s_lshl_b32 s6, s47, 7")
    p(f"s_sub_u32 s7, {D*D*2}, s6")
    srd(p, 32, 8, "s6", "s7")
    for a in range(4):
        p(f"s_add_u32 s{52+a}, s45, {a}")
        p(f"s_and_b32 s{52+a}, s{52+a}, 3")
        p(f"s_lshl_b32 s{52+a}, s{52+a}, 11")
    def groups(ins):
        out = []
        for x in ins:
            if x.text.startswith("s_addc"): out[-1].append(x.text)
            else: out.append([x.text])
        return out
    return groups(p.ins[:n1]), groups(p.ins[n1:])

def w_dma_ops(p, fg):
    ops = [lambda: p(f"s_add_u32 m0, s41, {(fg & 1)*4096}")]
    ops += [lambda i=i: p.vmem(f"buffer_load_dwordx4 v{VDMA+i}, s[64:67], s40 offen offset:{1024*i} lds", f"w{fg}") for i in range(4)]
    ops.append(lambda: p("s_add_u32 s40, s40, 0x10000"))
    if fg & 1: ops.append(lambda: p("s_xor_b32 s41, s41, 0x2000"))
    return ops

def wd_touch_ops(p):
    def a():
        p("s_and_b32 s3, s46, 3")
        p("s_mul_i32 s3, s3, 0xc000")
        p("v_min_u32 v44, 23, v0")
        p("v_lshlrev_b32 v44, 11, v44")
    return [a, lambda: p.vmem("buffer_load_dword v45, v44, s[64:67], s3 offen", "wdt")]

def early_block(p, sfx):
    p("v_lshlrev_b32 v1, 4, v0")
    p("v_lshrrev_b32 v6, 3, v0")
    p("v_lshrrev_b32 v7, 4, v0")
    p("v_and_b32 v8, 7, v0")
    p("v_lshlrev_b32 v9, 1, v7")
    p("v_xor_b32 v8, v8, v9")
    p("v_lshlrev_b32 v8, 4, v8")
    p(f"v_lshl_add_u32 v{VDMA}, v6, 11, v8")
    for i in range(1, 4): p(f"v_add_u32 v{VDMA+i}, {hex(i*(16384-1024))}, v{VDMA}")
    p("s_mov_b32 s72, 0")
    p("s_barrier")
    if sfx == "f" and EQ:
        p.wait(vm="qp0")
        p("v_readlane_b32 s72, v47, 16")
        p("s_nop 1")
        p("s_cmp_lt_u32 s72, 2")
        p(f"s_cbranch_scc1 L_noq_{sfx}")
        for i in range(4):
            p(f"buffer_load_dwordx4 {r4(QA+4*i, 'a')}, v1, s[16:19], 0 offen offset:{1024*i}{sc}")
        p.label(f"L_noq_{sfx}")
    return []

def gen_p2():
    p = Prog()
    def run_ops(ops):
        for o in ops:
            o()
            if "m0," in p.ins[-1].text: p("s_nop 0")
    p.label("L_p2")
    def kv_dma(c):
        ops = [lambda: p("s_mov_b32 m0, s37")]
        ops += [lambda i=i: p.vmem(f"buffer_load_dwordx4 v1, s[12:15], s36 offen offset:{1024*i}{sc} lds", f"kv{c}") for i in range(4)]
        ops.append(lambda: p("s_add_u32 s36, s36, 0x4000"))
        ops.append(lambda: p("s_add_u32 s37, s37, 0x4000"))
        ops.append(lambda: p("s_and_b32 s37, s37, 0xffff"))
        return ops
    def w_dma(fg): return w_dma_ops(p, fg)
    def loads(tag):
        p("s_cmp_ge_u32 s72, 2")
        p(f"s_cbranch_scc1 L_hasq_{tag}")
        for i in range(4):
            p(f"buffer_load_dwordx4 {r4(QA+4*i, 'a')}, v1, s[16:19], 0 offen offset:{1024*i}{sc}")
        p.label(f"L_hasq_{tag}")
        p.vmq = []
        for f in range(2):
            p.vmem(f"buffer_load_dwordx4 {Kf(0,f)}, v1, s[12:15], 0 offen offset:{1024*f}{sc}", "q")
        run_ops(kv_dma(0))
    p("s_mov_b32 s3, s41")
    p("v_lshrrev_b32 v6, 2, v0")
    p("v_bfe_u32 v7, v0, 3, 2")
    p("v_and_b32 v8, 3, v0")
    p("v_lshlrev_b32 v8, 3, v8")
    p("v_lshl_add_u32 v8, v6, 7, v8")
    p("v_add_u32 v8, s3, v8")
    for nb in range(4):
        p(f"v_xor_b32 v9, {nb}, v7")
        p(f"v_lshl_add_u32 v{VRD+nb}, v9, 5, v8")
    p("v_add_u32 v9, 0x20000, v1")
    for a in range(4):
        p(f"v_add_u32 v{VROT+a}, s{52+a}, v1")
        p(f"v_lshl_add_u32 v{VXR if a == 0 else VXW + a - 1}, s{52+a}, 2, v9")
    p("v_and_b32 v2, 3, v0")
    p("v_cmp_eq_u32 vcc, 0, v2")
    p("v_mov_b32 v3, 0x3f803f80")
    p("v_mov_b32 v4, v1")
    p(f"v_cndmask_b32 v{SEL}, 0, v3, vcc")
    for i in range(1, 4): p(f"v_mov_b32 v{SEL+i}, v{SEL}")
    p("v_add_u32 v5, 0x4000, v1")
    p("s_mov_b32 s51, 0xffff0000")
    p("v_min_u32 v6, 6, v0")
    p("s_mul_i32 s3, s45, 7")
    p("v_add_u32 v6, s3, v6")
    p("v_mov_b32 v7, s69")
    wg_of(p, 6, 7, 14, 8, 9, 10)
    p("s_lshl_b32 s69, s69, 10")
    p("v_and_b32 v12, 7, v0")
    p("v_bfe_u32 v13, v0, 3, 2")
    p("v_lshl_add_u32 v12, v13, 6, v12")
    p("v_lshlrev_b32 v12, 7, v12")
    zl = list(range(48)) + list(range(ACC, ACC + 128))
    Z0, Z1, Z2 = [int(x) for x in os.environ.get("ZZ", "64,40,64").split(",")]
    assert Z0 >= 0 and Z0 + Z1 + Z2 + 8 <= 176
    def zero(n):
        for _ in range(n): p(f"v_accvgpr_write_b32 a{zl.pop(0)}, 0")
    zero(Z0)
    stamp(p, 10, 5)
    p(f"s_waitcnt vmcnt({QP_YOUNGER})")
    stamp(p, 6, 5)
    p("v_cmp_gt_u32 vcc, 2, v47")
    p("s_mov_b32 s71, 0")
    p("s_nop 2")
    p("s_cbranch_vccnz L_p2_late")
    p("s_mov_b32 s71, 1")
    loads("e")
    p.label("L_p2_late")
    zero(Z1)
    p("s_cmp_eq_u32 s71, 1")
    p("s_cbranch_scc1 L_p2_w6")
    p("s_waitcnt vmcnt(0)")
    p.label("L_p2_w6")
    p("s_waitcnt vmcnt(6)")
    p("s_barrier")
    p("s_or_b32 s3, s48, s45")
    signal(p, "b3", 3, 76, "s73", cond="s_cmp_lg_u32 s3, 0")
    stamp(p, 2, 2); stamp(p, 2, 5)
    p("s_cmp_eq_u32 s71, 1")
    p("s_cbranch_scc1 L_p2_have")
    spin(p, "qkv", 47, 15, 76, "0", 2, first_check=False)
    loads("l")
    p.label("L_p2_have")
    zero(Z2)
    p.wait(vm="q")
    for blk in range(2):
        for t in qk(blk, 0, True): p(t)
    stamp(p, 8, 2); stamp(p, 8, 5)
    zero(8)
    def rowmax(q_, mreg):
        for stage in ("16", "32"):
            for qq in range(4): q_(f"v_mov_b32 v{mreg+4+qq}, v{mreg+qq}")
            q_("s_nop 0")
            for qq in range(4): q_(f"v_permlane{stage}_swap_b32 v{mreg+qq}, v{mreg+4+qq}")
            for qq in range(4): q_(f"v_max_f32 v{mreg+qq}, v{mreg+qq}, v{mreg+4+qq}")
        for qq in range(4):
            for i in range(4): q_(f"v_sub_f32 v{CB+4*qq+i}, 0, v{mreg+qq}")
    MR = 72
    for qq in range(4): p(f"v_max3_f32 v{MR+qq}, v{16+8*qq}, v{17+8*qq}, v{18+8*qq}")
    for qq in range(4): p(f"v_max3_f32 v{MR+qq}, v{MR+qq}, v{19+8*qq}, v{20+8*qq}")
    for qq in range(4): p(f"v_max3_f32 v{MR+qq}, v{MR+qq}, v{21+8*qq}, v{22+8*qq}")
    for qq in range(4): p(f"v_max_f32 v{MR+qq}, v{MR+qq}, v{23+8*qq}")
    rowmax(p, MR)
    for qq in range(2):
        for i in range(8): p(f"v_sub_f32 v{16+8*qq+i}, v{16+8*qq+i}, v{MR+qq}")
    p("s_or_b32 s3, s48, s45")
    p("s_cmp_eq_u32 s3, 0")
    p("s_cselect_b32 s3, s71, 0")
    p("s_cmp_eq_u32 s3, 1")
    p("s_cbranch_scc1 L_p2_w1")
    p.wait(vm="kv0")
    p.label("L_p2_w1")
    p("s_waitcnt vmcnt(1)")
    p("s_barrier")
    stamp(p, 3, 2); stamp(p, 3, 5)
    NC = 16; NKS = 56; KOFF = 4
    WT = os.environ.get('WT', '1') == '1'
    B0 = int(os.environ.get('B0', '1'))
    OT = os.environ.get('OT', '0') == '1'
    def hreg(k, n): return r4(HB + 16 * (k % 4) + 4 * n)
    def h_loads(k):
        s_ = k & 1
        ops = [lambda n=n: p.vmem(f"buffer_load_dwordx4 {hreg(k, n)}, v{VROT + 2*s_ + (n>>1)}, s[24:27], s39 offen offset:{1024*(n&1)}{sc}", f"h{k}") for n in range(4)]
        if s_: ops.append(lambda: p("s_add_u32 s39, s39, 0x2000"))
        return ops
    def w_reads(fg, half):
        ops = []
        for nb in (2 * half, 2 * half + 1):
            for e in range(2):
                b = WFR + 16 * (fg & 1) + 4 * nb + 2 * e
                ops.append(lambda b=b, nb=nb, e=e: p.lds(f"ds_read_b64_tr_b16 a[{b}:{b+1}], v{VRD+nb} offset:{(fg & 1)*4096 + e*2048}", f"f{fg}"))
        return ops
    def gmf(k, ph):
        a = 2 * (k & 1) + ph; fg = k >> 1
        out = []
        for u in range(2):
            for nb in (range(4) if u == 0 else range(3, -1, -1)):
                d = r4(ACC + 32 * a + 16 * u + 4 * nb, "a")
                out.append(f"{M16} {d}, {r4(WFR + 16*(fg&1) + 4*nb, 'a')}, {hreg(k, 2*ph + u)}, {d}")
        return out
    WOFF = [0, 0x4000, 0x8000, 0x10000, 0x14000, 0x18000, 0x1c000, 0xc000]
    def wo_dma(g_):
        ops = [lambda: p(f"s_add_u32 s3, s68, {hex(g_ * 0x40000)}"), lambda: p(f"s_add_u32 m0, s49, {hex(WOFF[g_])}")]
        ops += [lambda n=n: p.vmem(f"buffer_load_dwordx4 v{VDMA+n}, s[32:35], s3 offen offset:{1024*n} lds", f"wo{g_}") for n in range(4)]
        return ops
    XT = {1: 128, 2: 192, 3: 160}
    def XW(a): return [lambda q=q: p.lds(f"ds_write_b128 v{VXW+a-1}, {r4(ACC + 32*a + 4*q, 'a')} offset:{1024*q}", f"xw{a}") for q in range(8)]
    def XR(a): return [lambda q=q: p.lds(f"ds_read_b128 {r4(XT[a] + 4*q)}, v{VXR} offset:{1024*q}", f"xr{a}") for q in range(8)]
    marks = []
    for c in range(NC):
        marks.append(p.mark())
        inloop = 1 <= c <= 13
        for i in range(4):
            j = 4 * c + i
            k = j - KOFF
            fused = 0 <= k < NKS
            if j == 56: stamp(p, 5, 3)
            if j == 60: stamp(p, 7, 3)
            for ph in range(2):
                side = []
                def V(g_, fn): side.append((g_, fn, "v"))
                def SC(g_, fn): side.append((g_, fn, "s"))
                def T(g_, text): side.append((g_, lambda: p(text), "s"))
                va = softmax_valu(ph)
                if ph == 0:
                    a_qk = qk(1, j); a_pv = pv(1, j - 1) if j > 0 else []
                else:
                    a_qk = qk(0, j + 1) if j < 63 else []; a_pv = pv(0, j)
                if fused:
                    gm = gmf(k, ph)
                    mf = a_qk + gm[:4] + a_pv + gm[4:]
                    pvi = 8
                else:
                    mf = a_qk + a_pv
                    pvi = len(a_qk)
                n = len(mf)
                def pos(x): return min(n - 1, int(x * n))
                ds_pos = [pos(x) for x in (0.0, 0.25, 0.5, 0.75)]
                vm_pos = [pos(x) for x in (0.125, 0.375, 0.625, 0.875)]
                def dma(ops, nsc, where=None):
                    w_ = where or vm_pos
                    for o in ops[:nsc]: SC(max(w_[0] - 1, 0), o)
                    if w_[0] == 0: T(0, "s_nop 0")
                    for m in range(4): V(w_[m], ops[nsc + m])
                    for m, o in enumerate(ops[nsc + 4:]): SC(min(w_[3] + 1 + m, n - 1), o)
                if ph == 0:
                    kaddr, koff = ("v4", (i + 1) * 4096) if i < 3 else ("v5", 0)
                    if j < 63:
                        for f in range(2): V(ds_pos[f], lambda f=f: p.lds(f"ds_read_b128 {Kf(j+1,f)}, {kaddr} offset:{koff + 1024*f}", f"k{j+1}"))
                    for f in range(2): V(ds_pos[2 + f], lambda f=f: p.lds(f"ds_read_b128 {Vf(j,f)}, v4 offset:{i*4096 + 2048 + 1024*f}", f"v{j}"))
                    if fused:
                        SC(3, lambda: p.wait(vm=f"h{k}", lg=f"f{k>>1}", force=True))
                        if k + 3 < NKS: dma(h_loads(k + 3), 0)
                        if k % 4 == 2 and (k >> 1) + 1 < 28:
                            va = [(f"v_xor_b32 v{VRD+nb}, 0x2000, v{VRD+nb}", 4) for nb in range(4)] + va
                    if j == 0:
                        va = va + [(f"v_accvgpr_write_b32 a{x}, 0", 4) for x in zl]
                    if j == 0: dma(w_dma(0), 1, [1, 1, 2, 2])
                    if B0 == 0:
                        if j == 1: dma(w_dma(1), 1)
                        if j == 2: dma(w_dma(2), 1)
                        if j == 3: dma(h_loads(1), 0)
                    else:
                        if j == 2: dma(kv_dma(2), 1)
                        if j == 3:
                            dma(h_loads(1), 0, [1, 2, 3, 4])
                            dma(w_dma(2), 1, [6, 7, 8, 8])
                    if j < 63: SC(n - 1, lambda: p.wait(lg=f"k{j+1}", force=True))
                else:
                    if pvi > 0: SC(pvi - 1, lambda: p.wait(lg=f"v{j}", force=True))
                    else: p.wait(lg=f"v{j}")
                    if fused:
                        fg1 = (k >> 1) + 1
                        if fg1 < 28:
                            if k % 2 == 0: SC(0, lambda: p.wait(vm=f"w{fg1}", force=True))
                            for m, o in enumerate(w_reads(fg1, k & 1)): V(ds_pos[m], o)
                        if k % 2 == 0 and (inloop or (k >> 1) + 3 < 28): dma(w_dma((k >> 1) + 3), 1)
                    if i == 3 and c <= 13: dma(kv_dma(c + 3), 1, [2, 6, 10, 13] if fused else None)
                    if i == 2 and c <= 14:
                        tags = [f"kv{c+1}"] + (["w28", "kv16"] if c == 14 else [])
                        SC(n - 4, lambda: p.wait(vm=tags, force=True)); T(n - 3, "s_barrier")
                    if i == 1 and inloop: T(n - 2, "s_sub_u32 s42, s42, 1")
                    if i == 1 and c < 15:
                        T(1, "s_add_u32 s38, s38, 0x4000"); T(2, "s_and_b32 s38, s38, 0xffff")
                    if j == 0: dma(kv_dma(1), 1)
                    if j == 1:
                        V(0, lambda: p.vmem("buffer_load_dword v13, v14, s[76:79], 0 offen sc1", "hp"))
                        dma(kv_dma(2) if B0 == 0 else w_dma(1), 1, [2, 4, 6, 8])
                    if j == 2:
                        p.wait(vm="hp")
                        spin(p, "hp", 13, 14, 76, "0", 3)
                        stamp(p, 9, 2); stamp(p, 9, 5)
                        dma(h_loads(0), 0)
                        for m, o in enumerate(w_reads(0, 0)): V(ds_pos[m], o)
                    if j == 3:
                        for m, o in enumerate(w_reads(0, 1)): V(ds_pos[m], o)
                        hl = h_loads(2)
                        for m in range(4): V(ds_pos[m], hl[m])
                    if i == 3 and c < 15: va = [("v_mov_b32 v4, v5", 4), ("v_add_u32 v5, s38, v1", 4)] + va
                    if i == 3 and inloop: T(n - 1, "s_cmp_lg_u32 s42, 0")
                key = (j, ph)
                def spread(ops, g0, g1):
                    for m, o in enumerate(ops): V(g0 + (m * (g1 - g0 + 1)) // len(ops), o)
                def sync(g_, tag):
                    side.insert(0, (g_, lambda: p.wait(lg=tag, force=True), "s"))
                    side.insert(0, (g_ + 1, lambda: p("s_barrier"), "s"))
                def at(ops, gaps):
                    assert len(ops) == len(gaps)
                    for o, g_ in zip(ops, gaps): V(g_, o)
                if CT and key == (56, 0):
                    to = touch_ops(p, "e", "L_ct_here", 10)
                    SC(1, to[0]); V(8, to[1])
                if key == (57, 0): p.label("L_ct_here")
                if WT and key == (56, 1):
                    T(1, "s_and_b32 s3, s46, 3"); T(2, "s_lshl_b32 s3, s3, 2"); T(3, "s_add_u32 s3, s3, s45"); T(5, "s_lshl_b32 s3, s3, 17")
                    va = [("v_lshlrev_b32 v6, 11, v0", 4)] + va
                    V(11, lambda: p.vmem("buffer_load_dword v7, v6, s[32:35], s3 offen", "wt"))
                if key == (59, 0): at(XW(1)[:4], [5, 8, 12, 16]); dma(wo_dma(0), 2)
                if key == (59, 1): at(XW(1)[4:], [0, 4, 8, 12]); dma(wo_dma(1), 2)
                if key == (60, 0): sync(0, "xw1"); at(XR(1)[:4], [3, 4, 6, 9]); dma(wo_dma(3), 2, [1, 4, 6, 8])
                if key == (60, 1): at(XR(1)[4:], [0, 2, 4, 5]); dma(wo_dma(2), 2)
                if key == (61, 0): sync(0, "xr1"); at(XW(2)[:2], [4, 9]); dma(wo_dma(4), 2)
                if key == (61, 1): at(XW(2)[2:5], [2, 5, 9]); dma(wo_dma(5), 2)
                if key == (62, 0): at(XW(2)[5:], [1, 4, 8])
                if key == (62, 1): sync(1, "xw2"); at(XR(2)[:4], [4, 5, 7, 9]); dma(wo_dma(6), 2)
                if key == (63, 0): at(XR(2)[4:], [0, 1, 2, 3])
                if key == (63, 1): sync(0, "xr2")
                side.sort(key=lambda x: (x[0], 0 if x[2] == "s" and not getattr(x[1], "late", False) else 1))
                fill16(p, mf, va, side)
            if i == 3 and c < 15:
                if inloop: p("s_cbranch_scc1 L_k2_loop")
                if c == 0: stamp(p, 2, 3); stamp(p, 7, 5)
    marks.append(p.mark())
    body = unify([p.ins[marks[i]:marks[i+1]] for i in range(1, 14)])
    stamp(p, 4, 2); stamp(p, 4, 3)
    p("s_mov_b32 s71, 0")
    p("s_nop 0")
    for t in pv(1, 63): p(t)
    p.label("L_k2_out")
    def norm(blk):
        T = S_[blk]
        for q in range(2): p(f"v_accvgpr_read_b32 v{6+2*blk+q}, a{LA + 4*(2*blk+q)}")
        for i in range(16):
            p(f"v_accvgpr_read_b32 v{T+i}, a{OA + 16*blk + i}")
            if i < 2: p(f"v_rcp_f32 v{10+i}, v{6+2*blk+i}")
        for i in range(16): p(f"v_mul_f32 v{T+i}, v{T+i}, v{10 + (i>>3)}")
        for k in range(8): p(f"v_cvt_pk_bf16_f32 v{P_[blk]+k}, v{T+2*k}, v{T+2*k+1}")
    def ostore(blk):
        for u in range(2):
            so = "0" if blk == 0 else "s50"
            p.vmem(f"buffer_store_dwordx4 {r4(P_[blk] + 4*u)}, v1, s[20:23], {so} offen offset:{1024*u} sc1", "ost")
    norm(0)
    p(f"v_accvgpr_read_b32 v8, a{LA+8}")
    p(f"v_accvgpr_read_b32 v9, a{LA+12}")
    p(f"v_mov_b32 v2, {hex(f2u(2.0**30))}")
    p(f"v_mov_b32 v3, {hex(f2u(2.0**-20))}")
    p("v_add_f32 v10, v6, v7")
    p("v_add_f32 v11, v8, v9")
    p("v_add_f32 v10, v10, v11")
    p("v_min3_f32 v11, v6, v7, v8")
    p("v_min_f32 v11, v11, v9")
    p("v_cmp_nlt_f32 vcc, v10, v2")
    p("v_cmp_ngt_f32 s[6:7], v11, v3")
    p("s_cmp_lg_u32 s71, 0")
    p("s_cbranch_scc1 L_k2_safe")
    p("s_or_b64 vcc, vcc, s[6:7]")
    p("s_cbranch_vccnz L_k2_fallback")
    p.label("L_k2_safe")
    ostore(0)
    norm(1)
    ostore(1)
    stamp(p, 5, 2)
    p("s_lshl_b32 s3, s46, 2")
    p("s_add_u32 s3, s3, s45")
    p(f"s_mul_i32 s3, s3, {OF_ST}")
    p(f"s_add_u32 s3, s3, {hex(OF_OFF)}")
    srd(p, 28, 4, "s3", 65536)
    for nb in range(4): p(f"v_and_b32 v{VRD+nb}, 0xfff, v{VRD+nb}")
    for t_ in ["s_lshl_b32 s3, s46, 18", "s_lshl_b32 s6, s45, 16", "s_add_u32 s3, s3, s6", "s_lshl_b32 s6, s47, 7", "s_add_u32 s3, s3, s6", "s_sub_u32 s7, 0x10000, s6"]: p(t_)
    srd(p, 20, 10, "s3", "s7")
    srd(p, 24, 62, "s3", "s7")
    p("s_mul_i32 s6, s45, 4608")
    p("s_add_u32 s6, s6, 0x20000")
    for t_ in ["v_lshrrev_b32 v2, 3, v0", "v_and_b32 v4, 7, v0", "v_lshlrev_b32 v3, 4, v4", "v_lshl_add_u32 v3, v2, 11, v3",
               "v_and_b32 v10, 15, v0", "v_mul_u32_u24 v10, 144, v10", "v_lshrrev_b32 v11, 4, v0", "v_lshl_add_u32 v10, v11, 3, v10", "v_add_u32 v10, s6, v10",
               "v_mul_u32_u24 v11, 144, v2", "v_lshl_add_u32 v11, v4, 4, v11", "v_add_u32 v11, s6, v11"]: p(t_)
    for i in range(1, 4): p(f"s_mov_b32 s{60+i}, {hex(i*8*2048)}")
    XRr = 96; XD = 80; XU = 160; G = 128; Y = 224; A3 = 16; WF = 192; OB = 112; DEP = int(os.environ.get('DEP', '12'))
    for i in range(4):
        so = "0" if i == 0 else f"s{60+i}"
        p.vmem(f"buffer_load_dwordx4 {r4(XRr+4*i)}, v3, s[20:23], {so} offen", "x")
    va_ = [f"v_accvgpr_read_b32 v{Y+i}, a{ACC+i}" for i in range(32)]
    for a in (1, 2):
        va_ += [f"v_pk_add_f32 v[{Y+i}:{Y+i+1}], v[{Y+i}:{Y+i+1}], v[{XT[a]+i}:{XT[a]+i+1}]" for i in range(0, 32, 2)]
    xw3 = XW(3)
    for n_, t_ in enumerate(va_):
        if n_ % 8 == 0: xw3[n_ // 8]()
        p(t_)
    p.wait(vm="ost", lg="xw3")
    p("s_barrier")
    signal(p, "c4", 4, 76, "s73")
    stamp(p, 7, 2)
    for o in XR(3): o()
    run_ops(wo_dma(7))
    p.wait(lg="xr3")
    for i in range(0, 32, 2): p(f"v_pk_add_f32 v[{Y+i}:{Y+i+1}], v[{Y+i}:{Y+i+1}], v[{XT[3]+i}:{XT[3]+i+1}]")
    for i in range(0, 32, 2): p(f"v_pk_mul_f32 v[{G+i}:{G+i+1}], v[{Y+i}:{Y+i+1}], s[58:59]")
    for i in range(32): p(f"v_exp_f32 v{G+i}, v{G+i}")
    WF3 = [192, 208, 48]
    def wreads3(h):
        g_ = h >> 2
        off = (WOFF[g_] & 0xffff) + (h & 3) * 4096
        ops = []
        for nb in range(4):
            for e in range(2):
                b = WF3[h % 3] + 4 * nb + 2 * e
                ops.append(lambda b=b, nb=nb, e=e: p.lds(f"ds_read_b64_tr_b16 v[{b}:{b+1}], v{VRD+nb} offset:{off + e*2048}", f"w3_{h}_{nb}"))
        return ops
    for o in wreads3(0) + wreads3(1): o()
    p("s_mov_b32 s39, 0")
    if OT:
        p("s_and_b32 s3, s47, 7")
        p("s_lshl_b32 s3, s3, 7")
        p("v_lshlrev_b32 v8, 10, v0")
        p("v_add_u32 v8, s3, v8")
        p("v_bfrev_b32 v9, 1")
        p("v_cmp_gt_u32 vcc, 16, v0")
        p("s_movk_i32 s40, 0x4000")
        p("s_nop 0")
        p("v_cndmask_b32 v8, v9, v8, vcc")
    def otouch():
        p.vmem("buffer_load_dword v9, v8, s[28:31], s40 offen sc1", "ot")
        p("s_add_u32 s40, s40, 0x4000")
    p("s_cmp_lg_u32 s45, 0")
    p("s_cbranch_scc1 L_c_ok")
    spin(p, "c", 13, 12, 76, "s69", 4, first_check=False)
    p.wait(vm=["wo7", "x"])
    p("s_barrier")
    stamp(p, 9, 3)
    def oload(k):
        if k % 4 == 0 and k > 0: p("s_add_u32 s39, s39, 0x1000")
        p.vmem(f"buffer_load_dwordx4 {r4(OB + 4*(k % 32), 'a')}, v1, s[28:31], s39 offen offset:{1024*(k%4)} sc1", f"o{k}")
    OTP = []
    pre = [lambda i=i: p.lds(f"ds_write_b128 v11, {r4(XRr+4*i)} offset:{i*8*144}", "xs") for i in range(4)]
    pre += [lambda i=i: p(f"v_pk_add_f32 v[{G+i}:{G+i+1}], v[{G+i}:{G+i+1}], 1.0 op_sel_hi:[1,0]") for i in range(0, 32, 2)]
    pre += [lambda: p.wait(lg="xs")]
    pre += [lambda q=q: p.lds(f"ds_read_b64 v[{XD+2*q}:{XD+2*q+1}], v10 offset:{(q>>2)*16*144 + 32*(q&3)}", "xd") for q in range(8)]
    pre += [lambda i=i: p(f"v_rcp_f32 v{G+i}, v{G+i}") for i in range(32)]
    pre += [lambda i=i: p(f"v_pk_mul_f32 v[{G+i}:{G+i+1}], v[{G+i}:{G+i+1}], v[{Y+i}:{Y+i+1}]") for i in range(0, 32, 2)]
    pre += [lambda: p.wait(lg="xd")]
    for k in range(16):
        pre.append(lambda k=k: p(f"v_lshlrev_b32 v{XU+2*k}, 16, v{XD+k}"))
        pre.append(lambda k=k: p(f"v_and_b32 v{XU+2*k+1}, s51, v{XD+k}"))
    ILV = os.environ.get("ILV", "1") == "1"
    n0 = 3 if ILV else DEP
    for k in range(n0): oload(k)
    per = -(-len(pre) // (DEP - n0 + 1))
    kk = n0
    for n_, o in enumerate(pre):
        o()
        if n_ % per == per - 1 and kk < DEP: oload(kk); kk += 1
    while kk < DEP: oload(kk); kk += 1
    for h in range(32):
        wr = wreads3(h + 2) if h + 2 < 32 else []
        if h + 2 in (12, 28):
            for nb in range(4): p(f"v_xor_b32 v{VRD+nb}, 0x10000, v{VRD+nb}")
        m = 0
        for u in range(2):
            k = 2 * h + u
            for nb in (range(4) if u == 0 else range(3, -1, -1)):
                p.wait(vm=f"o{k}", lg=f"w3_{h}_3")
                d = r4(A3 + 16 * u + 4 * nb)
                p(f"{M16} {d}, {r4(WF3[h % 3] + 4*nb)}, {r4(OB + 4*(k % 32), 'a')}, {'0' if h == 0 else d}")
                if m % 4 == 1 and k + DEP < 64: oload(k + DEP)
                if m % 4 == 3 and OT and k + DEP in OTP: otouch()
                if wr: wr[m]()
                m += 1
    stamp(p, 10, 2); stamp(p, 10, 3)
    p("s_nop 7")
    T = 80
    for u in range(2):
        Sx = A3 + 16 * u
        for i in range(0, 16, 2):
            p(f"v_pk_fma_f32 v[{Sx+i}:{Sx+i+1}], v[{Sx+i}:{Sx+i+1}], v[{G+16*u+i}:{G+16*u+i+1}], v[{XU+16*u+i}:{XU+16*u+i+1}]")
        for nb in range(4):
            r = T + 8 * u + 2 * nb
            p(f"v_cvt_pk_bf16_f32 v{r}, v{Sx+4*nb}, v{Sx+4*nb+1}")
            p(f"v_cvt_pk_bf16_f32 v{r+1}, v{Sx+4*nb+2}, v{Sx+4*nb+3}")
            p.lds(f"ds_write_b64 v10, v[{r}:{r+1}] offset:{u*16*144 + 32*nb}", "tw")
    p.wait(lg="tw")
    for i in range(4):
        p.lds(f"ds_read_b128 {r4(XRr+4*i)}, v11 offset:{i*8*144}", f"tr{i}")
    for i in range(4):
        p.wait(lg=f"tr{i}")
        so = "0" if i == 0 else f"s{60+i}"
        p.vmem(f"buffer_store_dwordx4 {r4(XRr+4*i)}, v3, s[24:27], {so} offen {os.environ.get('OPOL', 'sc1')}", "st")
    if STAMP:
        p("s_waitcnt vmcnt(0)")
        stamp(p, 6, 2); stamp(p, 6, 3)
        p("s_memrealtime s[78:79]")
        p("s_waitcnt lgkmcnt(0)")
        stamp_out(p, 11, 2, 4, "s45", extra=[78])
    p("s_endpgm")
    fb = Prog()
    fb.label("L_k2_fallback")
    fb("s_waitcnt vmcnt(0) lgkmcnt(0)")
    for qq in range(4): fb(f"v_mov_b32 v{MR+qq}, 0xff800000")
    fb("s_mov_b32 s36, 0")
    fb.label("L_k2_fb1")
    for f in range(2):
        fb(f"buffer_load_dwordx4 {Kf(0,f)}, v1, s[12:15], s36 offen offset:{1024*f}{sc}")
    fb("s_waitcnt vmcnt(0)")
    for blk in range(2):
        for t in qk(blk, 0, True): fb(t)
    fb("s_nop 15")
    for i in range(0, 8, 2):
        for qq in range(4): fb(f"v_max3_f32 v{MR+qq}, v{MR+qq}, v{16+8*qq+i}, v{17+8*qq+i}")
    fb("s_add_u32 s36, s36, 0x1000")
    fb("s_cmp_lt_u32 s36, 0x40000")
    fb("s_cbranch_scc1 L_k2_fb1")
    rowmax(fb, MR)
    for i in range(0, 48): fb(f"v_accvgpr_write_b32 a{i}, 0")
    fb("s_mov_b32 s36, 0")
    fb.label("L_k2_fb2")
    for f in range(2):
        fb(f"buffer_load_dwordx4 {Kf(0,f)}, v1, s[12:15], s36 offen offset:{1024*f}{sc}")
        fb(f"buffer_load_dwordx4 {Vf(0,f)}, v1, s[12:15], s36 offen offset:{2048+1024*f}{sc}")
    fb("s_waitcnt vmcnt(0)")
    for blk in range(2):
        for t in qk(blk, 0): fb(t)
    fb("s_nop 15")
    for blk in range(2):
        for t, _ in softmax_valu(blk): fb(t)
    fb("s_nop 1")
    for blk in range(2):
        for t in pv(blk, 0): fb(t)
    fb("s_add_u32 s36, s36, 0x1000")
    fb("s_cmp_lt_u32 s36, 0x40000")
    fb("s_nop 15")
    fb("s_cbranch_scc1 L_k2_fb2")
    fb("s_mov_b32 s71, 1")
    fb("s_branch L_k2_out")
    final = Prog()
    final.ins = p.ins[:marks[1]] + [Ins(".p2align 6", "dir"), Ins("L_k2_loop:", "label")] + body + p.ins[marks[14]:] + fb.ins
    final.label("L_k2_end")
    final("s_endpgm")
    lins = [[x.text for x in p.ins], [x.text for x in fb.ins] + [x.text for x in fb.ins]]
    return dict(prog=final, lins=lins)
```

```python
from common import *
import math, struct

def f2u(x):
    return struct.unpack("<I", struct.pack("<f", x))[0]

def acc(mb, nb):
    if nb < 4:
        return ("v", 48 + 4 * (mb * 4 + nb))
    if nb < 8:
        if mb < 5:
            return ("v", 48 + 128 + 4 * (mb * 4 + nb - 4))
        return ("a", 144 + 4 * ((mb - 5) * 4 + nb - 4))
    return ("a", 144 + 48 + 4 * (mb * 2 + nb - 8))

def fragA(st, mb): return ("a", 72 * st + 4 * mb)
def fragB(st, nb): return ("a", 72 * st + 32 + 4 * nb)

HSC = os.environ.get("HSC", "sc1")
MERGED = [False]
M16 = [False]
def dma_ops(p, stage, tag, parts="AB"):
    ops = []
    sc = (" " + HSC) if MERGED[0] else ""
    if "A" in parts:
        ops.append(lambda: p(f"s_add_u32 m0, s40, {stage*16384}"))
        for i in range(4):
            va_ = ["v1", "v17", "v18", "v19"][i] if (XN3 and MERGED[0]) else "v1"
            ops.append(lambda i=i, va_=va_: p.vmem(f"buffer_load_dwordx4 {va_}, s[12:15], s36 offen offset:{1024*i}{sc} lds", tag))
    if "B" in parts:
        for u in range(5):
            srdn = [16, 16, 20, 20, 24][u]
            voff = "v2" if u < 4 else "v3"
            soff = "s37" if u < 4 else "s38"
            io = 128 if u in (1, 3) else 0
            ops.append(lambda u=u, io=io: p(f"s_add_u32 m0, s41, {u*16384 + stage*4096 - io}"))
            ops.append(lambda srdn=srdn, voff=voff, soff=soff, io=io: p.vmem(
                f"buffer_load_dwordx4 {voff}, s[{srdn}:{srdn+3}], {soff} offen offset:{io} lds", tag))
    k_ = 0
    if "A" in parts:
        for i in range(1, 5): ops[i].ld = True
        k_ = 5
    if "B" in parts:
        for u in range(5): ops[k_ + 2 * u + 1].ld = True
    if "A" in parts:
        ops.append(lambda: p("s_add_u32 s36, s36, 0x80" if (XN3 and MERGED[0]) else "s_add_u32 s36, s36, 0x4000"))
    if "B" in parts:
        ops.append(lambda: p("s_add_u32 s37, s37, s39"))
        ops.append(lambda: p(f"s_add_u32 s38, s38, {32*6144}"))
    return ops

def read_ops(p, stage, st, tag):
    ops = []
    ra = [lambda mb=mb: p.lds(f"ds_read_b128 {vr(fragA(st, mb), 4)}, v4 offset:{stage*16384 + mb*1024}", tag) for mb in range(8)]
    rb = []
    for nb in range(10):
        for e in range(2):
            f, b = fragB(st, nb)
            if nb < 8:
                a = 5 + (nb & 3); off = stage * 4096 + e * 512 + (nb >> 2) * 32768
            else:
                a = 9 + (nb - 8); off = stage * 4096 + e * 512
            rb.append(lambda b=b, e=e, a=a, off=off: p.lds(f"ds_read_b64_tr_b16 a[{b+2*e}:{b+2*e+1}], v{a} offset:{off}", tag))
    out = []
    ia = ib = 0
    while ia < len(ra) or ib < len(rb):
        if ia < len(ra): out.append(ra[ia]); ia += 1
        for _ in range(3 if ia > 4 else 2):
            if ib < len(rb): out.append(rb[ib]); ib += 1
    return out

def merge_ops(a, b):
    out = []
    na, nb = len(a), len(b)
    ia = ib = 0
    while ia < na or ib < nb:
        if ib >= nb or (ia < na and ia * nb <= ib * na):
            out.append(a[ia]); ia += 1
        else:
            out.append(b[ib]); ib += 1
    return out

PF = os.environ.get('K1PF', '1') == '1'
def iteration(p, t, isV, NK=32, loopctl=None, dmas=None, pf=None):
    st = t & 1
    slots = {}
    def add(k, fn): slots.setdefault(k, []).append(fn)
    if t + 1 < NK:
        add(0, lambda: p.wait(vm=f"d{t+1}", force=True))
        add(1, lambda: p("s_barrier"))
        rd = read_ops(p, (t + 1) & 3, 1 - st, f"f{t+1}")
        dm = []
        for d in dmas:
            d, parts = d if isinstance(d, tuple) else (d, "AB")
            dm += dma_ops(p, d & 3, f"d{d}", parts)
        if os.environ.get("K1SCHED", "1") == "1":
            isld = [getattr(o, "ld", False) for o in dm]
            nld = sum(isld) + (1 if pf else 0) + (1 if pf == "wo" else 0)
            per = 77.0 / max(nld, 1)
            ldg = [int(3 + n * per) for n in range(nld)]
            n = 0
            for i, o in enumerate(dm):
                if isld[i]:
                    add(ldg[n], o); n += 1
                elif i + 1 < len(dm) and isld[i + 1]:
                    slots.setdefault(ldg[n] - 1, []).insert(0, o)
                else:
                    extra_s = getattr(iteration, "_c", 0); iteration._c = (extra_s + 1) % 2
                    slots.setdefault(ldg[n - 1] + 1 + (i - max(j for j in range(i) if isld[j]) - 1), []).insert(0, o)
            pfg = ldg[n:]
            free = [k_ for k_ in range(2, 70) if k_ not in ldg]
            for i, o in enumerate(rd):
                add(free[(i * len(free)) // len(rd)], o)
        else:
            pfg = [77, 40]
            k0, k1 = 2, 66
            for i, o in enumerate(rd):
                add(k0 + (i * (k1 - k0)) // max(len(rd), 1), o)
            k0, k1 = 3, 76
            for i, o in enumerate(dm):
                add(k0 + (i * (k1 - k0)) // max(len(dm), 1), o)
    if PF and pf in ("wd", "wo"):
        add(pfg[0], lambda: p.vmem("buffer_load_dword v46, v44, s[64:67], s49 offen", "pf"))
        add(pfg[0] + 1, lambda: p("s_add_u32 s49, s49, s72"))
    if PF and pf == "wo":
        add(pfg[1], lambda: p.vmem("buffer_load_dword v46, v45, s[68:71], s51 offen", "pf"))
        add(pfg[1] + 1, lambda: p("s_add_u32 s51, s51, 0x80000"))
    if loopctl:
        add(76, lambda: p("s_sub_u32 s42, s42, 1"))
        add(79, lambda: p("s_cmp_lg_u32 s42, 0"))
    k = 0
    for mb in range(8):
        order = range(10) if mb % 2 == 0 else range(9, -1, -1)
        for nb in order:
            d = vr(acc(mb, nb), 4)
            c = "0" if t == 0 else d
            xa = vr(fragA(st, mb), 4); wb = vr(fragB(st, nb), 4)
            if os.environ.get("FAKECHAIN") == "1" and t >= 2:
                pi = k // 2; m2 = (pi // 10) + 4 * (t & 1); n2 = pi % 10
                d = c = vr(acc(m2, n2), 4)
                xa = vr(fragA(st, (pi // 10) + 4 * (k & 1)), 4); wb = vr(fragB(st, (n2 + 5 * (k & 1)) % 10), 4)
            if isV and nb < 8:
                p(f"v_mfma_f32_16x16x32_bf16 {d}, {xa}, {wb}, {c}")
            else:
                p(f"v_mfma_f32_16x16x32_bf16 {d}, {wb}, {xa}, {c}")
            for fn in slots.get(k, []): fn()
            k += 1
    LST = STAMP and os.environ.get("ST4") == "1"
    if LST and loopctl: p("s_memtime s[74:75]")
    if t + 1 < NK:
        p.wait(lg=f"f{t+1}")
    if LST and loopctl:
        p("s_waitcnt lgkmcnt(0)")
        p("s_mov_b32 m0, s42")
        p("s_nop 1")
        p("v_writelane_b32 v47, s74, m0")
    if loopctl:
        p(f"s_cbranch_scc1 {loopctl}")

def get4(p, tile, tmp):
    f, b = tile
    if f == "v": return b
    for i in range(4):
        p(f"v_accvgpr_read_b32 v{tmp+i}, a{b+i}")
    return tmp

STP = os.environ.get('K1ST', 'sc1')
def epi_qk(p):
    for mb in range(8):
        T = 16 + 16 * (mb & 1)
        a = get4(p, acc(mb, 8), T)
        b = get4(p, acc(mb, 9), T + 4)
        for i in range(0, 8, 2):
            p(f"v_pk_mul_f32 v[{T+i}:{T+i+1}], v[{T+i}:{T+i+1}], s[56:57]")
        for i in range(4):
            p(f"v_cvt_pk_bf16_f32 v{T+8+i}, v{T+2*i}, v{T+2*i+1}")
        p.vmem(f"buffer_store_dwordx4 v[{T+8}:{T+11}], v{13+(mb&1)}, s[32:35], s{52+(mb>>1)} offen {STP}", "st")

def epi_f(p):
    n = 0
    for mb in range(8):
        for pr in range(2):
            T = 16 + 16 * (n & 1); n += 1
            g0 = acc(mb, 2 * pr)[1]; g1 = acc(mb, 2 * pr + 1)[1]
            assert g1 == g0 + 4
            for i in range(0, 8, 2):
                p(f"v_pk_mul_f32 v[{g0+i}:{g0+i+1}], v[{g0+i}:{g0+i+1}], s[58:59]")
            u0 = get4(p, acc(mb, 4 + 2 * pr), T)
            u1 = get4(p, acc(mb, 5 + 2 * pr), T + 4)
            assert u1 == u0 + 4
            for i in range(8):
                p(f"v_exp_f32 v{g0+i}, v{g0+i}")
            for i in range(0, 8, 2):
                p(f"v_pk_add_f32 v[{g0+i}:{g0+i+1}], v[{g0+i}:{g0+i+1}], 1.0 op_sel_hi:[1,0]")
            for i in range(8):
                p(f"v_rcp_f32 v{g0+i}, v{g0+i}")
            for i in range(0, 8, 2):
                p(f"v_pk_mul_f32 v[{g0+i}:{g0+i+1}], v[{g0+i}:{g0+i+1}], v[{u0+i}:{u0+i+1}]")
            for i in range(4):
                p(f"v_cvt_pk_bf16_f32 v{T+8+i}, v{g0+2*i}, v{g0+2*i+1}")
            so = "0" if pr == 0 else "s50"
            p.vmem(f"buffer_store_dwordx4 v[{T+8}:{T+11}], v12, s[28:31], {so} offen offset:{(mb>>1)*1024 + (mb&1)*256} {STP}", "st")

def epi_v(p):
    n = 0
    for j in range(4):
        for nb in range(8):
            T = 16 + 16 * (n & 1); n += 1
            a = get4(p, acc(2 * j, nb), T)
            b = get4(p, acc(2 * j + 1, nb), T + 4)
            hd = (nb >> 2) * 4 + ((nb & 3) >> 1)
            p(f"s_mov_b32 s51, {hex(hd * 262144 + j * 4096)}")
            p(f"v_cvt_pk_bf16_f32 v{T+8}, v{a}, v{a+1}")
            p(f"v_cvt_pk_bf16_f32 v{T+9}, v{a+2}, v{a+3}")
            p(f"v_cvt_pk_bf16_f32 v{T+10}, v{b}, v{b+1}")
            p(f"v_cvt_pk_bf16_f32 v{T+11}, v{b+2}, v{b+3}")
            p.vmem(f"buffer_store_dwordx4 v[{T+8}:{T+11}], v12, s[28:31], s51 offen offset:{(nb&1)*256} {STP}", "st")
            if len(p.vmq) > 40:
                p.vmq = p.vmq[-20:]


def epi_ops_group(p, isV, mbs, nbs, st, packed):
    ops = []
    def V(text, cost=4): ops.append((lambda text=text: p(text), cost))
    def get(tile, tmp):
        f, b = tile
        if f == "v": return b
        for i in range(4): V(f"v_accvgpr_read_b32 v{tmp+i}, a{b+i}")
        return tmp
    def mul_s(base, n, sreg):
        if packed:
            for i in range(0, n, 2): V(f"v_pk_mul_f32 v[{base+i}:{base+i+1}], v[{base+i}:{base+i+1}], s[{sreg}:{sreg+1}]")
        else:
            for i in range(n): V(f"v_mul_f32 v{base+i}, s{sreg}, v{base+i}")
    if nbs == (8, 9):
        for mb in mbs:
            T = 16 + 16 * (st["n"] & 1); st["n"] += 1
            get(acc(mb, 8), T); get(acc(mb, 9), T + 4)
            mul_s(T, 8, 56)
            for i in range(4): V(f"v_cvt_pk_bf16_f32 v{T+8+i}, v{T+2*i}, v{T+2*i+1}")
            ops.append((lambda T=T, mb=mb: p.vmem(f"buffer_store_dwordx4 v[{T+8}:{T+11}], v{13+(mb&1)}, s[32:35], s{52+(mb>>1)} offen {STP}", "stq"), 16))
    elif not isV:
        pr = nbs[0] // 2
        for mb in mbs:
            T = 16 + 16 * (st["n"] & 1); st["n"] += 1
            g0 = acc(mb, 2 * pr)[1]
            mul_s(g0, 8, 58)
            for i in range(8): V(f"v_exp_f32 v{g0+i}, v{g0+i}", 8)
            u0 = get(acc(mb, 4 + 2 * pr), T); u1 = get(acc(mb, 5 + 2 * pr), T + 4)
            assert u1 == u0 + 4
            if packed:
                for i in range(0, 8, 2): V(f"v_pk_add_f32 v[{g0+i}:{g0+i+1}], v[{g0+i}:{g0+i+1}], 1.0 op_sel_hi:[1,0]")
            else:
                for i in range(8): V(f"v_add_f32 v{g0+i}, 1.0, v{g0+i}")
            for i in range(8): V(f"v_rcp_f32 v{g0+i}, v{g0+i}", 8)
            if packed:
                for i in range(0, 8, 2): V(f"v_pk_mul_f32 v[{g0+i}:{g0+i+1}], v[{g0+i}:{g0+i+1}], v[{u0+i}:{u0+i+1}]")
            else:
                for i in range(8): V(f"v_mul_f32 v{g0+i}, v{g0+i}, v{u0+i}")
            for i in range(4): V(f"v_cvt_pk_bf16_f32 v{T+8+i}, v{g0+2*i}, v{g0+2*i+1}")
            if M16[0]:
                ops.insert(len(ops) - 2, (lambda pr=pr, mb=mb: p(f"s_movk_i32 s51, {hex((mb >> 1) * 4096)}"), 4))
                ops.append((lambda T=T, mb=mb, pr=pr: p.vmem(f"buffer_store_dwordx4 v[{T+8}:{T+11}], v12, s[28:31], s51 offen offset:{pr*2048 + (mb&1)*1024} {STP}", "st"), 16))
                continue
            so = "0" if pr == 0 else "s50"
            ops.append((lambda T=T, mb=mb, so=so: p.vmem(f"buffer_store_dwordx4 v[{T+8}:{T+11}], v12, s[28:31], {so} offen offset:{(mb>>1)*1024 + (mb&1)*256} {STP}", "st"), 4))
    else:
        for j in sorted({mb >> 1 for mb in mbs}):
            for nb in nbs:
                T = 16 + 16 * (st["n"] & 1); st["n"] += 1
                a = get(acc(2 * j, nb), T); b = get(acc(2 * j + 1, nb), T + 4)
                hd = (nb >> 2) * 4 + ((nb & 3) >> 1)
                V(f"s_mov_b32 s51, {hex(hd * 262144 + j * 4096)}")
                V(f"v_cvt_pk_bf16_f32 v{T+8}, v{a}, v{a+1}")
                V(f"v_cvt_pk_bf16_f32 v{T+9}, v{a+2}, v{a+3}")
                V(f"v_cvt_pk_bf16_f32 v{T+10}, v{b}, v{b+1}")
                V(f"v_cvt_pk_bf16_f32 v{T+11}, v{b+2}, v{b+3}")
                ops.append((lambda T=T, nb=nb: p.vmem(f"buffer_store_dwordx4 v[{T+8}:{T+11}], v12, s[28:31], s51 offen offset:{(nb&1)*(1024 if M16[0] else 256)} {STP}", "st"), 16))
    return ops

def tail(p, isV, T0=28, NK=32, hooks=None, late=None, early=None):
    M0, M1 = (0, 1, 2, 3), (4, 5, 6, 7)
    N0, N1, NQ = (0, 1, 4, 5), (2, 3, 6, 7), (8, 9)
    groups = {"0": [(M0, N0), (M0, NQ), (M0, N1), (M1, N1), (M1, NQ), (M1, N0)],
              "1": [(M0 + M1, NQ), (M1, N0), (M1, N1), (M0, N1), (M0, N0)],
              "2": [(M0, N0), (M0, N1), (M0, NQ), (M1, NQ), (M1, N1), (M1, N0)],
              "3": [(M0, N0), (M0, NQ), (M0, N1), (M1, N1), (M1, N0), (M1, NQ)],
              "4": [(M0, N0), (M0, NQ), (M0, N1), (M1, N1), (M1, NQ), ((4, 5), N0), ((6, 7), N0)]}[os.environ.get("TG", "1")]
    steps = list(range(T0, NK))
    seq = []
    t = T0 - 1
    for mb in range(8):
        for nb in (range(10) if mb % 2 == 0 else range(9, -1, -1)): seq.append((mb, nb, t, -1))
    gend = []
    for gi, (ms, ns) in enumerate(groups):
        for t in steps:
            for a, mb in enumerate(ms):
                for nb in (ns if a % 2 == 0 else ns[::-1]): seq.append((mb, nb, t, gi))
        gend.append(len(seq) - 1)
    uses = {}
    for i, (mb, nb, t, gi) in enumerate(seq):
        uses.setdefault(("A", mb, t), []).append((i, gi))
        uses.setdefault(("B", nb, t), []).append((i, gi))
    inst = []
    for key, u in uses.items():
        cur = None
        for i, gi in u:
            if cur and gi - cur["g"] <= 1:
                cur["last"] = i; cur["g"] = gi
            else:
                cur = dict(key=key, first=i, last=i, g=gi); inst.append(cur)
    st0 = (T0 - 1) & 1
    free_at = {}
    for sl in range(36): free_at[sl] = -1
    where = {}
    for x in inst:
        k, idx, t = x["key"]
        if t == T0 - 1:
            x["slot"] = 18 * st0 + (idx if k == "A" else 8 + idx)
            x["rd"] = None
            free_at[x["slot"]] = x["last"]
    vis = {T0: 1, T0 + 1: 1, T0 + 2: 81, T0 + 3: 81 + 24}
    todo = sorted([x for x in inst if "slot" not in x], key=lambda x: x["first"])
    gap = 2
    for x in todo:
        k, idx, t = x["key"]
        sl = min(free_at, key=lambda s_: free_at[s_])
        g_ = max(gap, free_at[sl], vis[t], x["first"] - 72)
        assert g_ <= x["first"] - 6, (x, g_)
        x["slot"] = sl; x["rd"] = g_
        free_at[sl] = x["last"]
        gap = g_ + (2 if k == "B" else 1)
    reads = {}
    for x in todo:
        k, idx, t = x["key"]
        stage = t & 3; b = 4 * x["slot"]; tag = f"t{k}{idx}_{t}_{x['first']}"
        x["tag"] = tag
        if k == "A":
            reads.setdefault(x["rd"], []).append(lambda b=b, idx=idx, stage=stage, tag=tag: p.lds(f"ds_read_b128 a[{b}:{b+3}], v4 offset:{stage*16384 + idx*1024}", tag))
        else:
            for e in range(2):
                if idx < 8: a = 5 + (idx & 3); off = stage * 4096 + e * 512 + (idx >> 2) * 32768
                else: a = 9 + (idx - 8); off = stage * 4096 + e * 512
                reads.setdefault(x["rd"] + e, []).append(lambda b=b, e=e, a=a, off=off, tag=tag: p.lds(f"ds_read_b64_tr_b16 a[{b+2*e}:{b+2*e+1}], v{a} offset:{off}", tag))
    def find(k, idx, t, i):
        for x in inst:
            if x["key"] == (k, idx, t) and x["first"] <= i <= x["last"]: return x
        raise KeyError
    misc = {}
    def add(k, fn): misc.setdefault(k, []).append(fn)
    add(0, lambda: p.wait(vm=[f"d{T0}", f"d{T0+1}"], force=True)); add(1, lambda: p("s_barrier"))
    dm = dma_ops(p, (T0 + 3) & 3, f"d{T0+3}")
    for i, o in enumerate(dm): add(2 + 2 * i, o)
    add(80, lambda: p.wait(vm=f"d{T0+2}", force=True)); add(81, lambda: p("s_barrier"))
    add(80 + 24, lambda: p.wait(vm=f"d{T0+3}", force=True)); add(81 + 24, lambda: p("s_barrier"))
    for k_, fn in (hooks or []): add(k_ if k_ >= 0 else len(seq) + k_, fn)
    stt = {"n": 0}
    epis = [epi_ops_group(p, isV, ms, ns, stt, packed=(gi == len(groups) - 1)) for gi, (ms, ns) in enumerate(groups)]
    DELAY = 4
    tot = sum(c for e in epis[:-1] for _, c in e)
    nm = len(seq) - (gend[0] + DELAY)
    rate = tot / nm * float(os.environ.get('TR', '1.15'))
    fifo = []
    credit = 0.0
    for i, (mb, nb, t, gi) in enumerate(seq):
        xa = find("A", mb, t, i); xb = find("B", nb, t, i)
        tags = [x["tag"] for x in (xa, xb) if x.get("tag")]
        if tags: p.wait(lg=tags)
        d = vr(acc(mb, nb), 4)
        ra = f"a[{4*xa['slot']}:{4*xa['slot']+3}]"; rb = f"a[{4*xb['slot']}:{4*xb['slot']+3}]"
        if isV and nb < 8: p(f"v_mfma_f32_16x16x32_bf16 {d}, {ra}, {rb}, {d}")
        else: p(f"v_mfma_f32_16x16x32_bf16 {d}, {rb}, {ra}, {d}")
        for fn in misc.get(i, []): fn()
        for fn in reads.get(i, []): fn()
        for g2, e in enumerate(gend[:-1]):
            if i == e + DELAY: fifo += epis[g2]
        if fifo: credit += rate
        else: credit = 0.0
        while fifo and credit >= fifo[0][1] / 2:
            fn, c = fifo.pop(0); fn(); credit -= c
    stamp(p, 4, 1); stamp(p, 4, 5)
    for fn, c in fifo: fn()
    inter = early() if early else []
    if len(fifo) < 8 and not early: p("s_nop 7")
    lastn = len(epis[-1]); lp = max(0, lastn - late[0]) if late else lastn
    per = max(1, lp // max(len(inter), 1))
    for n_, (fn, c) in enumerate(epis[-1]):
        if late and n_ == lp:
            while inter:
                inter.pop(0)()
                if "m0," in p.ins[-1].text: p("s_nop 0")
            late[1]()
        elif inter and n_ % per == 0: inter.pop(0)()
        fn()

def setup_ids(p):
    p("s_and_b32 s3, s2, 7")
    p("s_lshr_b32 s43, s2, 3")
    p("s_lshr_b32 s61, s43, 3")
    p("s_and_b32 s43, s43, 7")
    p("s_mul_i32 s44, s3, 3")
    p("s_add_u32 s44, s44, s61")
    p("s_lshr_b32 s62, s43, 2")
    p("s_xor_b32 s62, s62, s3")
    p("s_and_b32 s62, s62, 1")
    p("s_lshl_b32 s62, s62, 2")
    p("s_lshr_b32 s63, s3, 1")
    p("s_sub_u32 s63, s63, s62")
    p("s_add_u32 s63, s63, 28")
    p("s_cmp_eq_u32 s61, 3")
    p("s_cselect_b32 s44, s63, s44")
    p("s_lshr_b32 s46, s45, 1")
    p("s_and_b32 s47, s45, 1")
    p("s_cmp_ge_u32 s44, 28")
    p("s_cselect_b32 s48, 1, 0")
    csel(p, "s60", 6144, 7168)
    p("s_lshl_b32 s39, s60, 5")
    p("s_lshl_b32 s40, s45, 12")
    p("v_lshlrev_b32 v1, 4, v0")
    p("v_add_u32 v1, s40, v1")
    p("s_lshl_b32 s41, s45, 10")
    p("s_add_u32 s41, s41, 0x10000")
    p("v_lshrrev_b32 v11, 3, v0")
    p("s_lshl_b32 s3, s45, 3")
    p("v_add_u32 v11, s3, v11")
    p("v_bfe_u32 v12, v0, 4, 1")
    p("s_and_b32 s3, s45, 1")
    p("s_lshl_b32 s3, s3, 1")
    p("v_or_b32 v12, s3, v12")
    p("v_lshlrev_b32 v12, 1, v12")
    p("v_and_b32 v13, 7, v0")
    p("v_xor_b32 v12, v12, v13")
    p("v_lshlrev_b32 v12, 4, v12")
    p("v_mul_lo_u32 v2, v11, s60")
    p("v_add_u32 v2, v2, v12")
    p("v_mul_u32_u24 v3, 6144, v11")
    p("v_add_u32 v3, v3, v12")

def setup_srds(p):
    if XN3 and MERGED[0]:
        p(f"s_mul_i32 s3, s43, {128*XNP}")
        p(f"s_add_u32 s3, s3, {hex(XN3_OFF)}")
        srd(p, 12, 4, "s3", 128 * XNP)
    else:
        p("s_lshl_b32 s3, s43, 19")
        if XN_OFF: p(f"s_add_u32 s3, s3, {hex(XN_OFF)}")
        srd(p, 12, 4, "s3", 524288)
    p("s_lshl_b32 s61, s44, 8")
    p("s_lshl_b32 s62, s44, 9")
    p(f"s_sub_u32 s62, s62, {28*512 - 4096}")
    p("s_add_u32 s63, s62, 256")
    p("s_cmp_eq_u32 s48, 1")
    p("s_cselect_b32 s64, s62, s61")
    p("s_cselect_b32 s65, s63, s61")
    p("s_cselect_b32 s66, s6, s8")
    p("s_cselect_b32 s67, s7, s9")
    p("s_cselect_b32 s68, s6, s10")
    p("s_cselect_b32 s69, s7, s11")
    csel(p, "s70", D*3*D*2, D*F*2)
    p("s_sub_u32 s71, s70, s64")
    srd(p, 16, 66, "s64", "s71")
    p("s_sub_u32 s71, s70, s65")
    srd(p, 20, 68, "s65", "s71")
    p("s_lshl_b32 s61, s44, 7")
    p(f"s_sub_u32 s71, {hex(D*3*D*2)}, s61")
    srd(p, 24, 6, "s61", "s71")
    p("s_mov_b32 s36, 0")
    p("s_mov_b32 s37, 0")
    p("s_mov_b32 s38, 0")

def setup_addrs(p):
    p("v_lshlrev_b32 v4, 4, v0")
    p("s_lshl_b32 s3, s46, 13")
    p("v_add_u32 v4, s3, v4")
    p("v_lshrrev_b32 v11, 4, v0")
    p("v_bfe_u32 v12, v0, 2, 2")
    p("v_and_b32 v13, 3, v0")
    p("v_lshlrev_b32 v14, 10, v11")
    p("v_lshl_add_u32 v14, v12, 7, v14")
    p("v_lshl_add_u32 v14, v13, 3, v14")
    p("v_lshrrev_b32 v15, 1, v12")
    p("v_and_b32 v16, 1, v11")
    p("v_lshl_or_b32 v15, v16, 1, v15")
    p("s_lshl_b32 s3, s47, 14")
    p("s_add_u32 s3, s3, 0x10000")
    for nb in range(4):
        p(f"v_xor_b32 v16, {nb}, v15")
        p(f"v_lshl_add_u32 v16, v16, 5, v14")
        p(f"v_add_u32 v{5+nb}, s3, v16")
    p("s_lshl_b32 s3, s47, 1")
    for i in range(2):
        p(f"s_add_u32 s61, s3, {i}")
        p(f"v_xor_b32 v16, s61, v15")
        p(f"v_lshl_add_u32 v16, v16, 5, v14")
        p(f"v_add_u32 v{9+i}, 0x20000, v16")
    p("v_and_b32 v16, 15, v0")
    p("v_lshrrev_b32 v17, 1, v11")
    p("v_and_b32 v18, 1, v11")
    p("v_lshlrev_b32 v19, 9, v18")
    p("s_cmp_eq_u32 s48, 1")
    p("s_cselect_b32 s61, 10, 12")
    p("v_lshlrev_b32 v12, s61, v17")
    p("v_add_u32 v12, v12, v19")
    p("v_lshl_add_u32 v12, v16, 4, v12")
    p("v_lshl_add_u32 v19, v17, 10, v19")
    p("v_lshrrev_b32 v17, 3, v16")
    p("v_and_b32 v18, 7, v16")
    p("v_lshl_add_u32 v17, v17, 4, v18")
    p("s_cmp_lt_u32 s44, 16")
    p("s_cselect_b64 vcc, -1, 0")
    csel(p, "s61", 256, 128)
    csel(p, "s62", 2048, 4096)
    p(f"s_cselect_b32 s56, {hex(f2u(32**-0.5 * math.log2(math.e)))}, 1.0")
    p("s_mov_b32 s57, s56")
    csel(p, "s63", QF_OFF, KV_OFF)
    p("s_cselect_b32 s6, 17, 18")
    p("v_cndmask_b32 v17, v17, v16, vcc")
    p("v_lshl_add_u32 v13, v17, 4, v19")
    p("v_add_u32 v14, s61, v13")
    if M16[0]:
        p("v_lshlrev_b32 v12, 4, v0")
        p("v_mov_b32 v13, v12")
        p("v_add_u32 v14, 0x400, v12")
    p("s_mov_b32 s52, 0")
    p("s_mov_b32 s53, s62")
    p("s_lshl_b32 s54, s62, 1")
    p("s_add_u32 s55, s54, s62")
    p("s_and_b32 s7, s44, 15")
    p("s_lshl_b32 s7, s7, 1")
    p("s_add_u32 s7, s7, s47")
    p("s_lshl_b32 s7, s7, s6")
    p("s_add_u32 s63, s63, s7")
    p("s_lshl_b32 s7, s43, 3")
    p("s_lshl_b32 s8, s46, 2")
    p("s_add_u32 s7, s7, s8")
    p("s_mul_i32 s8, s7, s62")
    p("s_add_u32 s63, s63, s8")
    p("s_lshl_b32 s9, s62, 2")
    srd(p, 32, 4, "s63", "s9")
    p("s_lshl_b32 s8, s43, 1")
    p("s_add_u32 s8, s8, s46")
    p("s_mul_i32 s8, s8, 917504")
    p("s_lshl_b32 s9, s44, 1")
    p("s_add_u32 s9, s9, s47")
    p("s_lshl_b32 s9, s9, 14")
    p("s_add_u32 s8, s8, s9")
    p(f"s_add_u32 s8, s8, {hex(HF_OFF)}")
    p("s_sub_u32 s9, s44, 28")
    p("s_lshl_b32 s9, s9, 2")
    p("s_add_u32 s9, s9, s47")
    p("s_lshl_b32 s9, s9, 19")
    p("s_lshl_b32 s10, s7, 12")
    p("s_add_u32 s9, s9, s10")
    p(f"s_add_u32 s9, s9, {hex(KV_OFF + 2048)}")
    p("s_cmp_eq_u32 s48, 1")
    p("s_cselect_b32 s8, s9, s8")
    csel(p, "s9", 5*262144 + 4*4096 - 2048, 0x4000)
    srd(p, 28, 4, "s8", "s9")
    p("s_mov_b32 s50, 0x2000")
    p(f"s_mov_b32 s58, {hex(f2u(-math.log2(math.e)))}")
    p("s_mov_b32 s59, s58")

def setup_xn3(p):
    p("v_lshrrev_b32 v16, 3, v0")
    p("s_lshl_b32 s3, s45, 5")
    p("v_add_u32 v16, s3, v16")
    p(f"v_mul_u32_u24 v1, {XNP}, v16")
    p("v_and_b32 v16, 7, v0")
    p("v_lshl_add_u32 v1, v16, 4, v1")
    for i in range(1, 4): p(f"v_add_u32 v{16+i}, {hex(i * (8 * XNP - 1024))}, v1")
    p("v_bfe_u32 v16, v0, 3, 1")
    p("v_lshlrev_b32 v16, 1, v16")
    p("v_lshrrev_b32 v4, 4, v0")
    p("v_xor_b32 v4, v4, v16")
    p("v_lshlrev_b32 v4, 4, v4")
    p("v_and_b32 v16, 15, v0")
    p("v_lshl_add_u32 v4, v16, 6, v4")
    p("s_lshl_b32 s3, s46, 13")
    p("v_add_u32 v4, s3, v4")

def setup_pf(p, R0):
    if PF:
        p("s_lshl_b32 s3, s2, 2")
        p("s_add_u32 s3, s3, s45")
        p("s_lshl_b32 s3, s3, 6")
        p("v_add_u32 v45, s3, v0")
        p("v_lshlrev_b32 v45, 3, v45")
        srd(p, 68, 74, 0, D * D * 2)
        p("s_mov_b32 s51, 0")
        p("s_mov_b64 s[62:63], s[6:7]"); p("s_mov_b32 s61, 6"); p(f"s_mov_b32 s60, {hex(D*3*D*2)}"); p(f"s_mov_b32 s49, {R0*6144}")
        p("s_cmp_eq_u32 s45, 0")
        p("s_cbranch_scc1 L_k1_pfsel")
        p("s_mov_b64 s[62:63], s[8:9]"); p("s_mov_b32 s61, 7"); p(f"s_mov_b32 s60, {hex(D*F*2)}"); p(f"s_mov_b32 s49, {R0*7168}")
        p("s_cmp_eq_u32 s45, 1")
        p("s_cbranch_scc1 L_k1_pfsel")
        p("s_mov_b64 s[62:63], s[10:11]")
        p("s_cmp_eq_u32 s45, 2")
        p("s_cbranch_scc1 L_k1_pfsel")
        p("s_mov_b64 s[62:63], s[72:73]"); p("s_mov_b32 s61, 10"); p("s_mov_b32 s49, 0")
        p.label("L_k1_pfsel")
        srd(p, 64, 62, 0, "s60")
        p("s_lshl_b32 s72, s61, 15")
        p("s_mul_i32 s3, s2, s61")
        p("v_add_u32 v44, s3, v0")
        p("v_lshlrev_b32 v44, 7, v44")
        p("v_cmp_gt_u32 vcc, s61, v0")
        p("v_bfrev_b32 v17, 1")
        p("s_nop 0")
        p("v_cndmask_b32 v44, v17, v44, vcc")

def gen_k1(name="gemm1_kernel"):
    p = Prog()
    p("s_cmp_ge_u32 s2, 256")
    p("s_cbranch_scc1 L_k1_end")
    stamp(p, 0); stamp_rt(p, 1)
    p(f"s_load_dwordx2 s[4:5], s[0:1], {KA_WS}")
    p(f"s_load_dwordx2 s[6:7], s[0:1], {KA_WQKV}")
    p(f"s_load_dwordx4 s[8:11], s[0:1], {KA_WG}")
    if PF:
        p(f"s_load_dwordx2 s[72:73], s[0:1], {KA_WD}")
        p(f"s_load_dwordx2 s[74:75], s[0:1], {KA_WO}")
    code_prefetch(p, "k1", "L_k1_end", 0, 20, 76, n=2)
    p("v_lshrrev_b32 v11, 6, v0")
    p("v_and_b32 v0, 63, v0")
    p("v_readfirstlane_b32 s45, v11")
    setup_ids(p)
    p("s_waitcnt lgkmcnt(0)")
    stamp(p, 8)
    setup_srds(p)
    def pro_dma(t):
        for i, o in enumerate(dma_ops(p, t, f"d{t}")):
            o()
            if "m0" in p.ins[-1].text and p.ins[-1].text.startswith("s_add"):
                p("s_nop 0")
    pro_dma(0)
    stamp(p, 9)
    pro_dma(1)
    setup_pf(p, int(os.environ.get("K0PF", "192")))
    stamp(p, 7)
    setup_addrs(p)
    stamp(p, 2)
    p.wait(vm="d0")
    p("s_barrier")
    stamp(p, 3)
    for o in read_ops(p, 0, 0, "f0"): o()
    p("s_mov_b32 s42, 6")
    p("s_cmp_eq_u32 s48, 1")
    p.wait(lg="f0")
    p("s_cbranch_scc1 L_k1_v")
    head = p.mark()
    lin_all = []
    out_text = []
    final = Prog()
    final.ins = list(p.ins)
    for isV in (False, True):
        q = Prog(); q.vmq = list(p.vmq); q.lgq = list(p.lgq)
        sfx = "v" if isV else "f"
        marks = []
        iteration(q, 0, isV, dmas=[2, 3], pf="wd")
        iteration(q, 1, isV, dmas=[4, 5], pf="wd")
        for t in range(2, 26):
            if t % 4 == 2: marks.append(q.mark())
            iteration(q, t, isV, loopctl=(f"L_k1_loop_{sfx}" if t % 4 == 1 else None), dmas=[t + 4],
                      pf=("wo" if t % 4 == 0 else "wd"))
        marks.append(q.mark())
        iteration(q, 26, isV, dmas=[30])
        body = unify([q.ins[marks[i]:marks[i+1]] for i in range(6)])
        if STAMP:
            for i in range(5): q(f"v_readlane_b32 s{64+i}, v47, {[5,4,3,1,0][i]}")
        tail(q, isV)
        stamp(q, 5)
        if STAMP: q("s_waitcnt vmcnt(0)")
        stamp(q, 6); stamp_rt(q, 10)
        stamp_out(q, 11, 1, 4, "s45", extra=[64, 65, 66, 67, 68])
        q("s_endpgm")
        lin_all.append([i.text for i in p.ins] + [i.text for i in q.ins])
        if isV:
            final.label("L_k1_v")
        final.ins += q.ins[:marks[0]]
        final.ins.append(Ins(".p2align 6", "dir"))
        final.label(f"L_k1_loop_{sfx}")
        final.ins += body
        final.ins += q.ins[marks[6]:]
    final.label("L_k1_end")
    final("s_endpgm")
    launch = f"; @launch kernel={name} grid=(256,1,1) block=(256,1,1) lds=147456"
    return dict(name=name, prog=final, launch=launch, kd=kd(name, 512, 102, 256), lins=lin_all)
```

```python
from common import *
import k1_gemm1 as K1
from k1_gemm1 import acc, dma_ops, epi_ops_group, PF

def rd_ops(p, k, idx, t, slot, tag):
    stage = t & 3; b = 4 * slot
    if k == "A":
        return [lambda: p.lds(f"ds_read_b128 a[{b}:{b+3}], v4 offset:{stage*16384 + idx*1024}", tag)]
    ops = []
    for e in range(2):
        if idx < 8: a = 5 + (idx & 3); off = stage * 4096 + e * 512 + (idx >> 2) * 32768
        else: a = 9 + (idx - 8); off = stage * 4096 + e * 512
        ops.append(lambda e=e, a=a, off=off: p.lds(f"ds_read_b64_tr_b16 a[{b+2*e}:{b+2*e+1}], v{a} offset:{off}", tag))
    return ops

def sslot(k, idx, t):
    pi = t >> 1; e = t & 1
    if k == "A":
        if pi == 13 and idx >= 4: return 8 + 2 * (idx - 4) + e
        return 2 * (idx & 3) + e
    if idx < 4: return 8 + 8 * (pi & 1) + 2 * idx + e
    return 24 + 2 * (idx - 4) + e

def first_reads(p):
    for e in range(2):
        for o in rd_ops(p, "A", 0, e, sslot("A", 0, e), f"A0_{e}"): o()
    for nb in range(9):
        for e in range(2):
            for o in rd_ops(p, "B", nb, e, sslot("B", nb, e), f"B{nb}_{e}"): o()

def body(p, isV, sfx, head_dma, hooks, late, early):
    NP = 14
    AL = os.environ.get('AL', '1') == '1'
    G0 = 160 * NP
    seq = []
    z = 0
    for pi in range(NP):
        for mb in range(8):
            order = list(range(10)) if mb % 2 == 0 else list(range(9, -1, -1))
            if mb == 7: order = [4, 5, 6, 7, 8, 9, 0, 1, 2, 3]
            for nb in order:
                for e in ((0, 1) if z % 2 == 0 else (1, 0)): seq.append((mb, nb, 2 * pi + e, -1))
                z += 1
    M0, M1 = (0, 1, 2, 3), (4, 5, 6, 7)
    N0, N1, NQ = (0, 1, 4, 5), (2, 3, 6, 7), (8, 9)
    groups = [(M0 + M1, NQ), (M1, N0), (M1, N1), (M0, N1), (M0, N0)]
    gend = []
    for gi, (ms, ns) in enumerate(groups):
        for t0 in (28, 30):
            for a, mb in enumerate(ms):
                for nb in (ns if a % 2 == 0 else ns[::-1]):
                    for e in ((0, 1) if z % 2 == 0 else (1, 0)): seq.append((mb, nb, t0 + e, gi))
                    z += 1
        gend.append(len(seq) - 1)
    sc_ = {}; vec = {}
    def S(g, fn): sc_.setdefault(g, []).append(fn)
    def V(g, fn): vec.setdefault(g, []).append(fn)
    slot_of = {}
    def static(k, idx, t, g):
        tag = f"{k}{idx}_{t}"
        for n, o in enumerate(rd_ops(p, k, idx, t, sslot(k, idx, t), tag)): V(g + n, o)
    def place_dma(ops, gaps):
        n = 0; last = None
        for i, o in enumerate(ops):
            if getattr(o, "ld", False):
                V(gaps[n], o); last = gaps[n]; n += 1; k_ = 0
            elif i + 1 < len(ops) and getattr(ops[i + 1], "ld", False):
                S(gaps[n] - 1, o)
            else:
                k_ += 1; S(last + k_, o)
        assert n == len(gaps)
    def pf_op(g, wo=False):
        if not PF: return
        if wo:
            V(g, lambda: p.vmem("buffer_load_dword v46, v45, s[68:71], s51 offen", "pf")); S(g + 1, lambda: p("s_add_u32 s51, s51, 0x80000"))
        else:
            V(g, lambda: p.vmem("buffer_load_dword v46, v44, s[64:67], s49 offen", "pf")); S(g + 1, lambda: p("s_add_u32 s49, s49, s72"))
    for pi in range(NP):
        G = 160 * pi; t = 2 * pi
        for e in range(2):
            static("B", 9, t + e, G + 1 + 2 * e)
            static("A", 1, t + e, G + 5 + e)
        if pi < 13:
            for mb in range(2, 8):
                for e in range(2): static("A", mb, t + e, G + 20 * (mb - 2) + (9 if mb < 7 else 3) + 4 * e)
            S(G + 21, lambda: p("s_barrier"))
            S(G + 121, lambda t=t: p.wait(vm=[f"d{t+2}", f"d{t+3}"], lg=[f"A7_{t}", f"A7_{t+1}"], force=True))
            S(G + 122, lambda: p("s_barrier"))
            for nb in range(4):
                for e in range(2): static("B", nb, t + 2 + e, G + 123 + 4 * nb + 2 * e)
            for e in range(2): static("A", 0, t + 2 + e, G + 139 + e)
            for nb in range(4, 9):
                for e in range(2): static("B", nb, t + 2 + e, G + 141 + 4 * (nb - 4) + 2 * e)
            bops = dma_ops(p, (t + 4) & 3, f"d{t+4}", "B") + dma_ops(p, (t + 5) & 3, f"d{t+5}", "B")
            if pi == 0:
                hops = []
                for d_, parts in head_dma: hops += dma_ops(p, d_ & 3, f"d{d_}", parts)
                nh = sum(1 for o in hops if getattr(o, "ld", False))
                place_dma(hops, [2 + 4 * i for i in range(nh)])
                g1 = 2 + 4 * nh + 3
                place_dma(bops, [g1 + ((112 - g1) * i) // 10 for i in range(10)])
                pf_op(114); pf_op(118)
            else:
                if AL:
                    place_dma(bops, [G + x for x in (48, 55, 61, 67, 74, 80, 86, 92, 98, 105)])
                    pf_op(G + 110); pf_op(G + 115)
                    if pi % 2 == 1: pf_op(G + 119, wo=True)
                else:
                    place_dma(bops, [G + 26 + 8 * i for i in range(10)])
                    pf_op(G + 106); pf_op(G + 114)
                    if pi % 2 == 1: pf_op(G + 18, wo=True)
            aops = dma_ops(p, (t + 4) & 3, f"d{t+4}", "A") + dma_ops(p, (t + 5) & 3, f"d{t+5}", "A")
            if AL and pi < 12: place_dma(aops, [G + 160 + x for x in (7, 12, 17, 22, 27, 32, 37, 42)])
            elif AL: place_dma(aops, [G + 160 + x for x in (1, 5, 9, 13, 17, 21, 25, 29)])
            else: place_dma(aops, [G + 124 + 7 * i for i in range(7)] + [G + 171])
            if pi >= 2 and pi % 2 == 0:
                S(G + 156, lambda: p("s_sub_u32 s42, s42, 1"))
                S(G + 159, lambda: p("s_cmp_lg_u32 s42, 0"))
        else:
            for mb in range(2, 8):
                for e in range(2): static("A", mb, t + e, G + 8 + 4 * (mb - 2) + 2 * e)
            S(G + 40, lambda t=t: p.wait(lg=[f"A7_{t}", f"A7_{t+1}"], force=True))
            S(G + 41, lambda: p("s_barrier"))
            S(G + 21, lambda: p("s_barrier"))
            b0 = 34 if AL else 23
            place_dma(dma_ops(p, 2, "d30", "B") + dma_ops(p, 3, "d31", "B"), [G + b0 + 4 * i for i in range(10)])
            place_dma(dma_ops(p, 2, "d30", "A") + dma_ops(p, 3, "d31", "A"), [G + b0 + 41 + 4 * i for i in range(8)])
            S(G + 108, lambda: p.wait(vm=["d28", "d29"], force=True))
            S(G + 109, lambda: p("s_barrier"))
            ZG = int(os.environ.get("ZG", "12"))
            S(G0 + ZG, lambda: p.wait(vm=["d30", "d31"], force=True))
            S(G0 + ZG + 1, lambda: p("s_barrier"))
    uses = {}
    for i, (mb, nb, t, gi) in enumerate(seq):
        uses.setdefault(("A", mb, t), []).append((i, gi))
        uses.setdefault(("B", nb, t), []).append((i, gi))
    inst = []
    free_at = {sl: -1 for sl in range(36)}
    for key, u in uses.items():
        if key[2] < 28:
            sl = sslot(*key)
            slot_of[key] = [(u[0][0], u[-1][0], sl, f"{key[0]}{key[1]}_{key[2]}")]
            free_at[sl] = max(free_at[sl], u[-1][0])
            continue
        cur = None
        for i, gi in u:
            if cur and gi - cur["g"] <= 1:
                cur["last"] = i; cur["g"] = gi
            else:
                cur = dict(key=key, first=i, last=i, g=gi); inst.append(cur)
    vis = {28: G0 - 160 + 109, 29: G0 - 160 + 109, 30: G0 + ZG + 1, 31: G0 + ZG + 1}
    gap = 0
    for x in sorted(inst, key=lambda x: x["first"]):
        k, idx, t = x["key"]
        sl = min(free_at, key=lambda s_: free_at[s_])
        g_ = max(gap, free_at[sl], vis[t], x["first"] - 72)
        assert g_ <= x["first"] - 6, (x, g_ - G0, x["first"] - G0)
        tag = f"t{k}{idx}_{t}_{x['first']}"
        for n, o in enumerate(rd_ops(p, k, idx, t, sl, tag)): V(g_ + n, o)
        x["rd"] = g_
        slot_of.setdefault(x["key"], []).append((x["first"], x["last"], sl, tag))
        free_at[sl] = x["last"]
        gap = g_ + (2 if k == "B" else 1)
    if os.environ.get("DBGL") and not isV:
        print(" ".join(f"{x['key'][0]}{x['key'][1]}.{x['key'][2]}@{x['first']-G0}:{x['first']-x['rd']}" for x in sorted(inst, key=lambda x: x["first"])))
    def find(k, idx, t, i):
        for f, l, sl, tag in slot_of[(k, idx, t)]:
            if f <= i <= l: return sl, tag
        raise KeyError
    base = G0 - 80
    for k_, fn in hooks: S(base + k_ if k_ >= 0 else len(seq) + k_, fn)
    stt = {"n": 0}
    epis = [epi_ops_group(p, isV, ms, ns, stt, packed=(gi == len(groups) - 1)) for gi, (ms, ns) in enumerate(groups)]
    DELAY = 4
    tot = sum(c for e in epis[:-1] for _, c in e)
    rate = tot / (len(seq) - (gend[0] + DELAY)) * float(os.environ.get('TR', '1.15'))
    fifo = []; credit = 0.0
    marks = []
    done = set()
    def need(i):
        mb, nb, t, gi = seq[i]
        return [find("A", mb, t, i)[1], find("B", nb, t, i)[1]]
    scanned = [0]
    issued = {f"A0_{e}": 1 for e in range(2)}
    issued.update({f"B{nb}_{e}": 2 for nb in range(9) for e in range(2)})
    p.wait(lg=need(0) + need(1))
    for i, (mb, nb, t, gi) in enumerate(seq):
        if i == 160: stamp(p, 7, 6)
        if i % 160 == 0 and i < G0: marks.append(p.mark())
        if i == 160 * 13: stamp(p, 8, 6)
        if i == G0: stamp(p, 2, 6); stamp(p, 2, 7)
        if i - G0 in (64, 128, 168, 192, 256): stamp(p, {64: 3, 128: 7, 168: 8, 192: 9, 256: 10}[i - G0], 7)
        assert p._cnt(p.lgq, need(i)) is None, i
        while scanned[0] < len(p.ins):
            x_ = p.ins[scanned[0]]; scanned[0] += 1
            if x_.kind == "lds": issued[x_.tag] = issued.get(x_.tag, 0) + 1
        ta, tb = need(i)
        assert issued.get(ta, 0) == 1 and issued.get(tb, 0) == 2, (i, ta, tb)
        sa = find("A", mb, t, i)[0]; sb = find("B", nb, t, i)[0]
        d = vr(acc(mb, nb), 4)
        c = d
        if (mb, nb) not in done: c = "0"; done.add((mb, nb))
        ra = f"a[{4*sa}:{4*sa+3}]"; rb = f"a[{4*sb}:{4*sb+3}]"
        if isV and nb < 8: p(f"v_mfma_f32_16x16x32_bf16 {d}, {ra}, {rb}, {c}")
        else: p(f"v_mfma_f32_16x16x32_bf16 {d}, {rb}, {ra}, {c}")
        if i % 2 == 1 and i + 1 < len(seq):
            p.wait(lg=need(i + 1) + need(i + 2))
        for fn in sc_.get(i, []): fn()
        for fn in vec.get(i, []): fn()
        for g2, e in enumerate(gend[:-1]):
            if i == e + DELAY: fifo += epis[g2]
        if fifo: credit += rate
        else: credit = 0.0
        while fifo and credit >= fifo[0][1] / 2:
            fn, c_ = fifo.pop(0); fn(); credit -= c_
        if i % 320 == 159 and 320 < i + 1 <= 160 * 13:
            p(f"s_cbranch_scc1 L_k1_loop_{sfx}")
    stamp(p, 4, 1); stamp(p, 4, 5); stamp(p, 4, 6); stamp(p, 4, 7)
    for fn, c in fifo: fn()
    early()
    lastn = len(epis[-1]); lp = max(0, lastn - late[0])
    for n_, (fn, c) in enumerate(epis[-1]):
        if n_ == lp: late[1]()
        fn()
    return marks
```

```python
from common import *
import k1_gemm1 as K1
import p2n, k1c
CH = os.environ.get('CH', '1') == '1'

def ln_compute(p, R, X, T, vw, vr, lds0, smask, mid=None):
    for k in range(16):
        p(f"v_lshlrev_b32 v{X+2*k}, 16, v{R+k}")
        p(f"v_and_b32 v{X+2*k+1}, {smask}, v{R+k}")
    def pk(op, d, a, b, extra=""):
        p(f"v_pk_{op}_f32 v[{d}:{d+1}], v[{a}:{a+1}], v[{b}:{b+1}]{extra}")
    def cross(off, dst):
        pk("add", T, T, T + 2); pk("add", T + 4, T + 4, T + 6); pk("add", T, T, T + 4)
        p(f"v_add_f32 v{T}, v{T}, v{T+1}")
        if XN3:
            for d_ in ("quad_perm:[1,0,3,2]", "quad_perm:[2,3,0,1]", "row_ror:8"):
                p("s_nop 1")
                p(f"v_add_f32_dpp v{T}, v{T}, v{T} {d_} row_mask:0xf bank_mask:0xf")
            for w_ in ("16", "32"):
                p(f"v_mov_b32 v{T+1}, v{T}")
                p("s_nop 1")
                p(f"v_permlane{w_}_swap_b32 v{T}, v{T+1}")
                p(f"v_add_f32 v{T}, v{T}, v{T+1}")
            p(f"v_mul_f32 v{dst}, 0x3a800000, v{T}")
            return
        p("s_nop 1")
        p(f"v_add_f32_dpp v{T}, v{T}, v{T} row_ror:8 row_mask:0xf bank_mask:0xf")
        p.lds(f"ds_write_b32 v{vw}, v{T} offset:{off}", "lw")
        p.wait(lg="lw")
        p("s_barrier")
        for j in range(4):
            p.lds(f"ds_read_b128 v[{T+8+4*j}:{T+11+4*j}], v{vr} offset:{off+16*j}", "lr")
        p.wait(lg="lr")
        for j in range(4): pk("add", T + 8 + 2 * j, T + 8 + 2 * j, T + 16 + 2 * j)
        pk("add", T + 8, T + 8, T + 12); pk("add", T + 10, T + 10, T + 14); pk("add", T + 8, T + 8, T + 10)
        p(f"v_add_f32 v{dst}, v{T+8}, v{T+9}")
        p(f"v_mul_f32 v{dst}, 0x3a800000, v{dst}")
    for a in range(4): pk("add", T + 2 * a, X + 2 * a, X + 8 + 2 * a)
    for k in range(8, 16): pk("add", T + 2 * (k % 4), T + 2 * (k % 4), X + 2 * k)
    M = T + 24; Vv = T + 26; Dd = T + 28
    cross(0, M)
    NEG = " op_sel_hi:[1,0] neg_lo:[0,1] neg_hi:[0,1]"
    for k in range(16):
        d = Dd + 2 * (k % 8)
        pk("add", d, X + 2 * k, M, NEG)
        if k >= 3:
            kk = k - 3; dd = Dd + 2 * (kk % 8); a = T + 2 * (kk % 4)
            if kk < 4: pk("mul", a, dd, dd)
            else: p(f"v_pk_fma_f32 v[{a}:{a+1}], v[{dd}:{dd+1}], v[{dd}:{dd+1}], v[{a}:{a+1}]")
    for kk in range(13, 16):
        dd = Dd + 2 * (kk % 8); a = T + 2 * (kk % 4)
        p(f"v_pk_fma_f32 v[{a}:{a+1}], v[{dd}:{dd+1}], v[{dd}:{dd+1}], v[{a}:{a+1}]")
    p(f"v_cvt_pk_bf16_f32 v{Dd}, v{M}, v{M}")
    p(f"v_and_b32 v{M}, {smask}, v{Dd}")
    if mid: mid()
    cross(1024, Vv)
    p(f"v_cvt_pk_bf16_f32 v{Dd}, v{Vv}, v{Vv}")
    p(f"v_and_b32 v{Vv}, {smask}, v{Dd}")
    p(f"v_add_f32 v{Vv}, 0x3727c5ac, v{Vv}")
    p(f"v_cvt_pk_bf16_f32 v{Dd}, v{Vv}, v{Vv}")
    p(f"v_and_b32 v{Vv}, {smask}, v{Dd}")
    p(f"v_sqrt_f32 v{Vv}, v{Vv}")
    pk("add", X, X, M, NEG)
    p(f"v_cvt_pk_bf16_f32 v{Dd}, v{Vv}, v{Vv}")
    p(f"v_and_b32 v{Vv}, {smask}, v{Dd}")
    p(f"v_rcp_f32 v{Vv}, v{Vv}")
    for k in range(1, 16): pk("add", X + 2 * k, X + 2 * k, M, NEG)
    for k in range(16): p(f"v_cvt_pk_bf16_f32 v{R+k}, v{X+2*k}, v{X+2*k+1}")
    for k in range(16):
        p(f"v_lshlrev_b32 v{X+2*k}, 16, v{R+k}")
        p(f"v_and_b32 v{X+2*k+1}, {smask}, v{R+k}")
    for k in range(16): pk("mul", X + 2 * k, X + 2 * k, Vv, " op_sel_hi:[1,0]")

def gen_mega(name):
    K1.MERGED[0] = True
    K1.M16[0] = True
    p = Prog()
    def run_ops(ops):
        for o in ops:
            o()
            if "m0," in p.ins[-1].text: p("s_nop 0")
    p("s_cmp_ge_u32 s2, 256")
    p("s_cbranch_scc1 L_k2_end")
    stamp(p, 0); stamp_rt(p, 1)
    p(f"s_load_dwordx2 s[30:31], s[0:1], {KA_X}")
    p(f"s_load_dwordx4 s[76:79], s[0:1], {KA_DBG}")
    if CPF:
        p("s_getpc_b64 s[62:63]")
        p.label("L_p0_pc")
        CM = os.environ.get("CM", "2")
        if CM == "0":
            p("s_lshr_b32 s3, s2, 3")
            p("s_and_b32 s3, s3, 3")
            p("s_lshl_b32 s3, s3, 14")
            p("v_lshlrev_b32 v20, 7, v0")
            p("v_add_u32 v21, s3, v20")
            p("v_subrev_u32 v21, 0x2000, v21")
            p("v_lshrrev_b32 v20, 1, v20")
            p("v_cmp_gt_u32 vcc, 128, v0")
            p("s_nop 1")
            p("v_cndmask_b32 v20, v21, v20, vcc")
        else:
            sh = 4 if CM == "1" else 2
            p("s_lshr_b32 s3, s2, 3")
            if CM == "2": p("s_and_b32 s3, s3, 7")
            p(f"v_lshrrev_b32 v20, {sh}, v0")
            p(f"v_lshlrev_b32 v20, {5 if CM == '1' else 3}, v20")
            p("v_add_u32 v20, s3, v20")
            p("v_lshlrev_b32 v20, 7, v20")
        p("v_min_u32 v20, L_code_end-L_p0_pc, v20")
        p.vmem("global_load_dword v46, v20, s[62:63]", "cpf")
    p(f"s_load_dwordx2 s[6:7], s[0:1], {KA_WQKV}")
    p(f"s_load_dwordx4 s[8:11], s[0:1], {KA_WG}")
    p(f"s_load_dwordx2 s[72:73], s[0:1], {KA_WD}")
    p(f"s_load_dwordx2 s[74:75], s[0:1], {KA_WO}")
    R, X, T = 56, 72, 104
    VIN, VOUT, VW, VR = 48, 49, 50, 51
    LDS0 = 147456
    p("v_and_b32 v20, 7, v0")
    p("v_lshrrev_b32 v21, 3, v0")
    if XN3:
        p("s_and_b32 s3, s2, 1")
        p("s_lshl_b32 s3, s3, 1")
        p("v_and_b32 v22, 3, v0")
        p("v_xor_b32 v22, s3, v22")
        p(f"v_lshlrev_b32 v{VIN}, 4, v22")
        p("v_bfe_u32 v22, v0, 3, 3")
        p(f"v_lshl_add_u32 v{VIN}, v22, 6, v{VIN}")
        p("v_bfe_u32 v22, v0, 2, 1")
        p(f"v_lshl_add_u32 v{VIN}, v22, 11, v{VIN}")
        p("v_lshrrev_b32 v22, 6, v0")
        p(f"v_lshl_add_u32 v{VIN}, v22, 12, v{VIN}")
    else:
        p(f"v_lshlrev_b32 v{VIN}, 11, v20")
        p(f"v_lshl_add_u32 v{VIN}, v21, 4, v{VIN}")
    p("v_lshrrev_b32 v11, 6, v0")
    p("s_lshl_b32 s33, s2, 14")
    p("v_readfirstlane_b32 s45, v11")
    p("s_waitcnt lgkmcnt(0)")
    p("s_mov_b64 s[4:5], s[78:79]")
    p("s_or_b32 s3, s2, s45")
    p("s_cmp_lg_u32 s3, 0")
    p("s_cbranch_scc1 L_p0_nozero")
    srd(p, 56, 4, FL_OFF, 32768)
    p("v_lshlrev_b32 v24, 7, v0")
    p("v_mov_b32 v25, 0")
    for i in range(4):
        p(f"s_movk_i32 s3, {hex(8192*i)}")
        p(f"buffer_store_dword v25, v24, s[56:59], s3 offen sc1")
    p.label("L_p0_nozero")
    nz = len(p.vmq)
    p("s_mov_b32 s28, s30"); p("s_and_b32 s29, s31, 0xffff"); p(f"s_mov_b32 s30, {hex(S*D*2)}"); p("s_mov_b32 s31, 0x20000")
    for i in range(4):
        p.vmem(f"buffer_load_dwordx4 v[{R+4*i}:{R+4*i+3}], v{VIN}, s[28:31], s33 offen offset:{512*i} {os.environ.get('XPOL', '')}", "x")
    stamp(p, 8, 1); stamp(p, 8, 4)
    if not XN3:
        p(f"v_lshrrev_b32 v{VOUT}, 2, v21")
        p(f"v_lshlrev_b32 v{VOUT}, 14, v{VOUT}")
        p("v_and_b32 v22, 3, v21")
        p(f"v_lshl_add_u32 v{VOUT}, v22, 8, v{VOUT}")
        p(f"v_lshl_add_u32 v{VOUT}, v20, 4, v{VOUT}")
        p(f"v_mul_u32_u24 v{VR}, 80, v20")
        p(f"v_add_u32 v{VR}, {LDS0}, v{VR}")
        p("v_lshrrev_b32 v22, 4, v0")
        p(f"v_lshl_add_u32 v{VW}, v22, 2, v{VR}")
    p("v_and_b32 v0, 63, v0")
    if XN3: p(f"v_lshlrev_b32 v{VOUT}, 4, v0")
    K1.setup_ids(p)
    K1.setup_srds(p)
    BE = int(os.environ.get("BE", "2"))
    BL = os.environ.get("BL", "0") == "1"
    def untracked(ops):
        sv = list(p.vmq); run_ops(ops); p.vmq = sv
    if BL:
        K1.setup_pf(p, 192 if os.environ.get("PFE") == "n" else 64)
    else:
        if BE >= 1: run_ops(K1.dma_ops(p, 0, "d0", "B"))
        K1.setup_pf(p, 192 if os.environ.get("PFE") == "n" else 64)
        if BE >= 2: run_ops(K1.dma_ops(p, 1, "d1", "B"))
    p("s_or_b32 s3, s2, s45")
    p("s_cmp_lg_u32 s3, 0")
    p("s_cbranch_scc1 L_p0_nogo")
    p("v_mov_b32 v20, 1")
    p("v_mov_b32 v21, 0")
    p(f"s_waitcnt vmcnt({len(p.vmq) - nz})")
    p("s_mov_b64 exec, 1")
    p("global_store_dword v21, v20, s[76:77] sc1")
    p("s_mov_b64 exec, -1")
    p.label("L_p0_nogo")
    PFE = os.environ.get("PFE", "1") == "1"
    PFN = os.environ.get("PFE", "1") == "n"
    if PFE:
        for i in range(4):
            p.vmem("buffer_load_dword v46, v44, s[64:67], s49 offen", "pf")
            p("s_add_u32 s49, s49, s72")
    if XN3:
        p("s_lshl_b32 s3, s2, 2")
        p("s_add_u32 s3, s3, s45")
        p(f"s_mul_i32 s3, s3, {XNP}")
        p(f"s_add_u32 s3, s3, {hex(XN3_OFF)}")
        srd(p, 60, 4, "s3", 4096)
    else:
        p("s_lshr_b32 s3, s2, 5")
        p("s_lshl_b32 s3, s3, 19")
        p("s_lshl_b32 s73, s2, 9")
        p("s_and_b32 s73, s73, 0x3c00")
        p("s_add_u32 s3, s3, s73")
        p("s_and_b32 s73, s2, 1")
        p("s_lshl_b32 s73, s73, 7")
        p("s_add_u32 s3, s3, s73")
        if XN_OFF: p(f"s_add_u32 s3, s3, {hex(XN_OFF)}")
        srd(p, 60, 4, "s3", 524288 - 16384 + 1024)
    p("s_mov_b32 s73, 0xffff0000")
    stamp(p, 7, 1); stamp(p, 7, 4)
    p.wait(vm="x")
    stamp(p, 2, 1); stamp(p, 2, 4)
    if BL:
        p("s_cmp_lg_u32 s45, 3")
        p("s_cbranch_scc1 L_p0_nob3")
        untracked(K1.dma_ops(p, 0, "d0", "B") + K1.dma_ops(p, 1, "d1", "B"))
        p.label("L_p0_nob3")
    ln_compute(p, R, X, T, VW, VR, LDS0, "s73", mid=lambda: (p("v_mov_b32 v21, 0"), p.vmem("global_load_dword v23, v21, s[76:77] sc1", "go")))
    for i in range(4):
        for k in range(4):
            kk = 4 * i + k
            p(f"v_cvt_pk_bf16_f32 v{R+kk}, v{X+2*kk}, v{X+2*kk+1}")
        if XN3:
            p.vmem(f"buffer_store_dwordx4 v[{R+4*i}:{R+4*i+3}], v{VOUT}, s[60:63], 0 offen offset:{1024*i} sc1", "xs")
            continue
        p.vmem(f"buffer_store_dwordx4 v[{R+4*i}:{R+4*i+3}], v{VOUT}, s[60:63], 0 offen sc1", "xs")
        if i < 3: p(f"v_add_u32 v{VOUT}, 0x20000, v{VOUT}")
    stamp(p, 4, 4)
    K1.setup_addrs(p)
    if XN3: K1.setup_xn3(p)
    p2n.qkv_poll_addr(p, 15, 24)
    p2n.touch_addr(p)
    p("s_mov_b64 s[74:75], s[76:77]")
    srd(p, 76, 4, FL_OFF, 32768)
    p("s_lshl_b32 s73, s2, 7")
    p("s_lshl_b32 s60, s43, 12")
    p("v_and_b32 v20, 31, v0")
    p("v_lshlrev_b32 v20, 7, v20")
    p("v_mov_b32 v22, 1")
    stamp(p, 5, 4)
    p.wait(vm="xs")
    p("s_barrier")
    stamp(p, 6, 4)
    p("s_cmp_eq_u32 s45, 3")
    p("s_cbranch_scc1 L_p0_sig")
    if BL: untracked(K1.dma_ops(p, 0, "d0", "B") + K1.dma_ops(p, 1, "d1", "B"))
    for i in range(0 if (PFE or PFN) else 4):
        p("buffer_load_dword v46, v44, s[64:67], s49 offen")
        p("s_add_u32 s49, s49, s72")
    PW = os.environ.get("PW", "1") == "1"
    if PW:
        p("s_mov_b64 exec, 0")
        p("s_cmp_eq_u32 s45, 0")
        p("s_cbranch_scc1 L_pw_entry0")
        p("s_cmp_eq_u32 s45, 1")
        p("s_cbranch_scc1 L_pw_entry1")
        p("s_branch L_pw_entry2")
        p.label("L_pw_back")
        p("s_mov_b64 exec, -1")
    p("s_branch L_p0_polled")
    p.label("L_p0_sig")
    p("s_mov_b32 s61, 0x40000")
    p.label("L_p0_go")
    p("v_cmp_ne_u32 vcc, 1, v23")
    p("s_sub_u32 s61, s61, 1")
    p("s_cmp_eq_u32 s61, 0")
    p("s_cbranch_scc1 L_p0_gone")
    p("s_nop 1")
    p("s_cbranch_vccz L_p0_gone")
    p("global_load_dword v23, v21, s[74:75] sc1")
    p("s_waitcnt vmcnt(0)")
    p("s_branch L_p0_go")
    p.label("L_p0_gone")
    p("s_mov_b64 exec, 1")
    p("buffer_store_dword v22, v21, s[76:79], s73 offen sc1")
    p("s_mov_b64 exec, -1")
    p("s_mov_b32 s61, 0x40000")
    p.label("L_p0_poll")
    p("buffer_load_dword v23, v20, s[76:79], s60 offen sc1")
    p("s_sub_u32 s61, s61, 1")
    p("s_waitcnt vmcnt(0)")
    p("v_cmp_gt_u32 vcc, 1, v23")
    p("s_cmp_eq_u32 s61, 0")
    p("s_cbranch_scc1 L_p0_polled")
    p("s_nop 2")
    p("s_cbranch_vccnz L_p0_poll")
    p.label("L_p0_polled")
    p("s_barrier")
    stamp(p, 3, 1); stamp(p, 3, 4)
    run_ops(K1.dma_ops(p, 0, "d0", "A" if BE >= 1 else "AB"))
    run_ops(K1.dma_ops(p, 1, "d1", "A" if BE >= 2 else "AB"))
    p(f"s_load_dwordx4 s[60:63], s[0:1], {KA_WD}")
    p(f"s_load_dwordx2 s[8:9], s[0:1], {KA_WO}")
    p(f"s_load_dwordx2 s[10:11], s[0:1], {KA_X}")
    HV = os.environ.get("HV", "2")
    win, h0, h1 = {"0": ([], [2, 3], [4, 5]),
                   "1": ([(2, "AB")], [3, (4, "B")], [(4, "A"), 5]),
                   "2": ([(2, "B")], [(2, "A"), 3], [4, 5]),
                   "3": ([(2, "B")], [(2, "A"), 3, (4, "B")], [(4, "A"), 5])}[HV]
    for d_, parts in win: run_ops(K1.dma_ops(p, d_, f"d{d_}", parts))
    if CH:
        p.wait(vm=["d0", "d1"])
        p("s_barrier")
        k1c.first_reads(p)
    else:
        p.wait(vm="d0")
        p("s_barrier")
        for o in K1.read_ops(p, 0, 0, "f0"): o()
    p("s_mov_b32 s42, 6")
    p("s_cmp_eq_u32 s48, 1")
    p.wait_all(vm=False)
    stamp(p, 9, 1); stamp(p, 9, 4); stamp(p, 9, 6)
    p("s_cbranch_scc1 L_k1_v")
    if PW:
        p("s_branch L_pg_base")
        p.ins.append(Ins(".p2align 12", "dir"))
        p.label("L_pg_base")
    k2 = p2n.gen_p2()
    lin_all = []
    final = Prog()
    final.ins = list(p.ins)
    for isV in (False, True):
        q = Prog(); q.vmq = list(p.vmq); q.lgq = list(p.lgq)
        sfx = "v" if isV else "f"
        marks = []
        if not CH:
            K1.iteration(q, 0, isV, dmas=h0, pf="wd")
            K1.iteration(q, 1, isV, dmas=h1, pf="wd")
            if os.environ.get("ST4") == "1": stamp(q, 3, 1)
            for t in range(2, 26):
                if t % 4 == 2: marks.append(q.mark())
                K1.iteration(q, t, isV, loopctl=(f"L_k1_loop_{sfx}" if t % 4 == 1 else None), dmas=[t + 4],
                             pf=("wo" if t % 4 == 0 else "wd"))
            marks.append(q.mark())
            K1.iteration(q, 26, isV, dmas=[30])
            body = unify([q.ins[marks[i]:marks[i+1]] for i in range(6)])
            if STAMP and os.environ.get("ST4") == "1":
                q("v_readlane_b32 s94, v47, 5"); q("v_readlane_b32 s96, v47, 0"); q("v_readlane_b32 s84, v47, 4")
        MS = int(os.environ.get("MS", "250"))
        g1, g2 = p2n.scalar_setup()
        hooks = []
        for n_, g_ in enumerate(g1): hooks.append((110 + n_, lambda g_=g_, q=q: [q(t_) for t_ in g_]))
        assert 110 + len(g1) < MS
        for n_, g_ in enumerate(g2): hooks.append((MS + 4 + n_, lambda g_=g_, q=q: [q(t_) for t_ in g_]))
        if not isV and p2n.EQ: hooks.append((-int(os.environ.get("QP0", "50")), lambda q=q: q.vmem("buffer_load_dword v47, v15, s[76:79], 0 offen sc1", "qp0")))
        if p2n.CT and not isV:
            to = p2n.touch_ops(q, "p" + sfx, "L_p2", 46)
            CTP = int(os.environ.get("CTP", "360"))
            hooks += [(CTP, to[0]), (CTP + 1, to[1])]
        WDT = int(os.environ.get("WDT", "0"))
        if WDT and not isV:
            to = p2n.wd_touch_ops(q)
            hooks += [(WDT, to[0]), (WDT + 1, to[1])]
        late = (6 if isV else int(os.environ.get("QPL", "30")), lambda q=q: q.vmem("buffer_load_dword v47, v15, s[76:79], 0 offen sc1", "qp"))
        def chk(q=q):
            assert sum(1 for x in q.ins if x.tag == "stq") == 8
            if not isV: q.wait(vm="stq", force=True)
        hooks.append((MS, chk))
        if not isV:
            hooks += [(MS + 1, lambda q=q: q("s_barrier")), (MS + 2, lambda q=q: p2n.signal(q, "f2", 2, 76, "s73", t0=44))]
        if CH:
            hd = {"0": [(2, "AB"), (3, "AB")], "1": [(3, "AB")], "2": [(2, "A"), (3, "AB")], "3": [(2, "A"), (3, "AB")]}[HV]
            pm = k1c.body(q, isV, sfx, hd, hooks, late, lambda q=q: p2n.early_block(q, sfx))
            marks = [pm[i] for i in range(1, 14, 2)]
            body = unify([q.ins[marks[i]:marks[i+1]] for i in range(6)])
        else:
            K1.tail(q, isV, hooks=hooks, late=late, early=lambda q=q: p2n.early_block(q, sfx))
        stamp(q, 5, 1); stamp(q, 5, 5); stamp(q, 5, 6)
        assert isV or q._cnt(q.vmq, ["qp"]) >= p2n.QP_YOUNGER, q._cnt(q.vmq, ["qp"])
        if isV:
            q("s_waitcnt vmcnt(0)")
            q("s_barrier")
            p2n.signal(q, "v3", 3, 76, "s73")
            q("s_branch L_p2")
        lin_all.append([i.text for i in p.ins] + [i.text for i in q.ins] + k2["lins"][0][:200])
        if isV:
            final.ins += k2["prog"].ins
            if PW: final.ins.append(Ins(".p2align 12", "dir"))
            final.label("L_k1_v")
        final.ins += q.ins[:marks[0]]
        final.ins.append(Ins(".p2align 6", "dir"))
        final.label(f"L_k1_loop_{sfx}")
        final.ins += body
        final.ins += q.ins[marks[6]:]
    final.label("L_code_end")
    launch = f"; @launch grid=(256,1,1) block=(256,1,1) lds=163840"
    return dict(name=name, prog=final, launch=launch, kd=kd(name, 512, 102, 256), lins=lin_all + k2["lins"])
```

```python
import os, sys
from build import *
from mega import gen_mega
NAME = "recurrent_scan__softmax_full_mha__glu_gated_glu__prompt_kernel"
k = gen_mega(NAME)
if os.environ.get("ASLIST", "1") == "1":
    k["launch"] = k["launch"].replace("@launch grid", f"@launch kernel={NAME} grid")
assemble([k], sys.argv[1] if len(sys.argv) > 1 else "m.s")
if os.environ.get("PW", "1") == "1":
    import pagewarm
    path = sys.argv[1] if len(sys.argv) > 1 else "m.s"
    t, n = pagewarm.apply(open(path).read())
    open(path, "w").write(t)
    print("page stubs:", n)
```

```python
from common import *
import k1_gemm1 as K1
from k1_gemm1 import acc, dma_ops, epi_ops_group, PF

def rd_ops(p, k, idx, t, slot, tag):
    stage = t & 3; b = 4 * slot
    if k == "A":
        return [lambda: p.lds(f"ds_read_b128 a[{b}:{b+3}], v4 offset:{stage*16384 + idx*1024}", tag)]
    ops = []
    for e in range(2):
        if idx < 8: a = 5 + (idx & 3); off = stage * 4096 + e * 512 + (idx >> 2) * 32768
        else: a = 9 + (idx - 8); off = stage * 4096 + e * 512
        ops.append(lambda e=e, a=a, off=off: p.lds(f"ds_read_b64_tr_b16 a[{b+2*e}:{b+2*e+1}], v{a} offset:{off}", tag))
    return ops

def sslot(k, idx, t):
    pi = t >> 1; e = t & 1
    if k == "A":
        if pi == 13 and idx >= 4: return 8 + 2 * (idx - 4) + e
        return 2 * (idx & 3) + e
    if idx < 4: return 8 + 8 * (pi & 1) + 2 * idx + e
    return 24 + 2 * (idx - 4) + e

def first_reads(p):
    for e in range(2):
        for o in rd_ops(p, "A", 0, e, sslot("A", 0, e), f"A0_{e}"): o()
    for nb in range(9):
        for e in range(2):
            for o in rd_ops(p, "B", nb, e, sslot("B", nb, e), f"B{nb}_{e}"): o()

def body(p, isV, sfx, head_dma, hooks, late, early):
    NP = 14
    AL = os.environ.get('AL', '1') == '1'
    G0 = 160 * NP
    seq = []
    z = 0
    for pi in range(NP):
        for mb in range(8):
            order = list(range(10)) if mb % 2 == 0 else list(range(9, -1, -1))
            if mb == 7: order = [4, 5, 6, 7, 8, 9, 0, 1, 2, 3]
            for nb in order:
                for e in ((0, 1) if z % 2 == 0 else (1, 0)): seq.append((mb, nb, 2 * pi + e, -1))
                z += 1
    M0, M1 = (0, 1, 2, 3), (4, 5, 6, 7)
    N0, N1, NQ = (0, 1, 4, 5), (2, 3, 6, 7), (8, 9)
    groups = [(M0 + M1, NQ), (M1, N0), (M1, N1), (M0, N1), (M0, N0)]
    gend = []
    for gi, (ms, ns) in enumerate(groups):
        for t0 in (28, 30):
            for a, mb in enumerate(ms):
                for nb in (ns if a % 2 == 0 else ns[::-1]):
                    for e in ((0, 1) if z % 2 == 0 else (1, 0)): seq.append((mb, nb, t0 + e, gi))
                    z += 1
        gend.append(len(seq) - 1)
    sc_ = {}; vec = {}
    def S(g, fn): sc_.setdefault(g, []).append(fn)
    def V(g, fn): vec.setdefault(g, []).append(fn)
    slot_of = {}
    def static(k, idx, t, g):
        tag = f"{k}{idx}_{t}"
        for n, o in enumerate(rd_ops(p, k, idx, t, sslot(k, idx, t), tag)): V(g + n, o)
    def place_dma(ops, gaps):
        n = 0; last = None
        for i, o in enumerate(ops):
            if getattr(o, "ld", False):
                V(gaps[n], o); last = gaps[n]; n += 1; k_ = 0
            elif i + 1 < len(ops) and getattr(ops[i + 1], "ld", False):
                S(gaps[n] - 1, o)
            else:
                k_ += 1; S(last + k_, o)
        assert n == len(gaps)
    def pf_op(g, wo=False):
        if not PF: return
        if wo:
            V(g, lambda: p.vmem("buffer_load_dword v46, v45, s[68:71], s51 offen", "pf")); S(g + 1, lambda: p("s_add_u32 s51, s51, 0x80000"))
        else:
            V(g, lambda: p.vmem("buffer_load_dword v46, v44, s[64:67], s49 offen", "pf")); S(g + 1, lambda: p("s_add_u32 s49, s49, s72"))
    for pi in range(NP):
        G = 160 * pi; t = 2 * pi
        for e in range(2):
            static("B", 9, t + e, G + 1 + 2 * e)
            static("A", 1, t + e, G + 5 + e)
        if pi < 13:
            for mb in range(2, 8):
                for e in range(2): static("A", mb, t + e, G + 20 * (mb - 2) + (9 if mb < 7 else 3) + 4 * e)
            S(G + 21, lambda: p("s_barrier"))
            S(G + 121, lambda t=t: p.wait(vm=[f"d{t+2}", f"d{t+3}"], lg=[f"A7_{t}", f"A7_{t+1}"], force=True))
            S(G + 121, lambda: p("s_barrier"))
            for nb in range(4):
                for e in range(2): static("B", nb, t + 2 + e, G + 123 + 4 * nb + 2 * e)
            for e in range(2): static("A", 0, t + 2 + e, G + 139 + e)
            for nb in range(4, 9):
                for e in range(2): static("B", nb, t + 2 + e, G + 141 + 4 * (nb - 4) + 2 * e)
            bops = dma_ops(p, (t + 4) & 3, f"d{t+4}", "B") + dma_ops(p, (t + 5) & 3, f"d{t+5}", "B")
            if pi == 0:
                hops = []
                for d_, parts in head_dma: hops += dma_ops(p, d_ & 3, f"d{d_}", parts)
                nh = sum(1 for o in hops if getattr(o, "ld", False))
                place_dma(hops, [3 + 4 * i for i in range(nh)])
                g1 = 3 + 4 * nh + 3
                place_dma(bops, [(g1 + ((112 - g1) * i) // 10) | 1 for i in range(10)])
                pf_op(113); pf_op(117)
            else:
                if AL:
                    place_dma(bops, [G + x for x in (47, 55, 61, 67, 75, 81, 87, 95, 101, 105)])
                    pf_op(G + 111); pf_op(G + 115)
                    if pi % 2 == 1: pf_op(G + 119, wo=True)
                else:
                    place_dma(bops, [G + 26 + 8 * i for i in range(10)])
                    pf_op(G + 106); pf_op(G + 114)
                    if pi % 2 == 1: pf_op(G + 18, wo=True)
            aops = dma_ops(p, (t + 4) & 3, f"d{t+4}", "A") + dma_ops(p, (t + 5) & 3, f"d{t+5}", "A")
            if AL and pi < 12: place_dma(aops, [G + 160 + x for x in (7, 11, 17, 23, 27, 31, 37, 43)])
            elif AL: place_dma(aops, [G + 160 + x for x in (1, 5, 9, 13, 17, 21, 25, 29)])
            else: place_dma(aops, [G + 124 + 7 * i for i in range(7)] + [G + 171])
            if pi >= 2 and pi % 2 == 0:
                S(G + 156, lambda: p("s_sub_u32 s42, s42, 1"))
                S(G + 159, lambda: p("s_cmp_lg_u32 s42, 0"))
        else:
            for mb in range(2, 8):
                for e in range(2): static("A", mb, t + e, G + 8 + 4 * (mb - 2) + 2 * e)
            S(G + 40, lambda t=t: p.wait(lg=[f"A7_{t}", f"A7_{t+1}"], force=True))
            S(G + 41, lambda: p("s_barrier"))
            S(G + 21, lambda: p("s_barrier"))
            b0 = 35 if AL else 23
            S13 = int(os.environ.get('S13', '4'))
            place_dma(dma_ops(p, 2, "d30", "B") + dma_ops(p, 3, "d31", "B"), [G + b0 + S13 * i for i in range(10)])
            place_dma(dma_ops(p, 2, "d30", "A") + dma_ops(p, 3, "d31", "A"), [G + b0 + 10 * S13 + 2 + S13 * i for i in range(8)])
            S(G + 108, lambda: p.wait(vm=["d28", "d29"], force=True))
            S(G + 109, lambda: p("s_barrier"))
            ZG = int(os.environ.get("ZG", "12"))
            S(G0 + ZG, lambda: p.wait(vm=["d30", "d31"], force=True))
            S(G0 + ZG + 1, lambda: p("s_barrier"))
    uses = {}
    for i, (mb, nb, t, gi) in enumerate(seq):
        uses.setdefault(("A", mb, t), []).append((i, gi))
        uses.setdefault(("B", nb, t), []).append((i, gi))
    inst = []
    free_at = {sl: -1 for sl in range(36)}
    for key, u in uses.items():
        if key[2] < 28:
            sl = sslot(*key)
            slot_of[key] = [(u[0][0], u[-1][0], sl, f"{key[0]}{key[1]}_{key[2]}")]
            free_at[sl] = max(free_at[sl], u[-1][0])
            continue
        cur = None
        for i, gi in u:
            if cur and gi - cur["g"] <= 1:
                cur["last"] = i; cur["g"] = gi
            else:
                cur = dict(key=key, first=i, last=i, g=gi); inst.append(cur)
    vis = {28: G0 - 160 + 109, 29: G0 - 160 + 109, 30: G0 + ZG + 1, 31: G0 + ZG + 1}
    gap = 0
    for x in sorted(inst, key=lambda x: x["first"]):
        k, idx, t = x["key"]
        sl = min(free_at, key=lambda s_: free_at[s_])
        g_ = max(gap, free_at[sl], vis[t], x["first"] - 72)
        assert g_ <= x["first"] - 6, (x, g_ - G0, x["first"] - G0)
        tag = f"t{k}{idx}_{t}_{x['first']}"
        for n, o in enumerate(rd_ops(p, k, idx, t, sl, tag)): V(g_ + n, o)
        x["rd"] = g_
        slot_of.setdefault(x["key"], []).append((x["first"], x["last"], sl, tag))
        free_at[sl] = x["last"]
        gap = g_ + (2 if k == "B" else 1)
    if os.environ.get("DBGL") and not isV:
        print(" ".join(f"{x['key'][0]}{x['key'][1]}.{x['key'][2]}@{x['first']-G0}:{x['first']-x['rd']}" for x in sorted(inst, key=lambda x: x["first"])))
    def find(k, idx, t, i):
        for f, l, sl, tag in slot_of[(k, idx, t)]:
            if f <= i <= l: return sl, tag
        raise KeyError
    base = G0 - 80
    for k_, fn in hooks: S(base + k_ if k_ >= 0 else len(seq) + k_, fn)
    stt = {"n": 0}
    epis = [epi_ops_group(p, isV, ms, ns, stt, packed=(gi == len(groups) - 1)) for gi, (ms, ns) in enumerate(groups)]
    DELAY = 4
    ADR = os.environ.get('ADR', '1') == '1'
    TIGHT = os.environ.get('TIGHT', '1') == '1'
    tot = sum(c for e in epis[:-1] for _, c in e)
    rate = tot / (len(seq) - (gend[0] + DELAY)) * float(os.environ.get('TR', '1.15'))
    fifo = []; credit = 0.0
    marks = []
    done = set()
    def need(i):
        mb, nb, t, gi = seq[i]
        return [find("A", mb, t, i)[1], find("B", nb, t, i)[1]]
    scanned = [0]
    issued = {f"A0_{e}": 1 for e in range(2)}
    issued.update({f"B{nb}_{e}": 2 for nb in range(9) for e in range(2)})
    p.wait(lg=need(0) + need(1))
    for i, (mb, nb, t, gi) in enumerate(seq):
        if i == 160: stamp(p, 7, 6)
        if i % 160 == 0 and i < G0: marks.append(p.mark())
        if i == 160 * 13: stamp(p, 8, 6)
        if i == G0: stamp(p, 2, 6); stamp(p, 2, 7)
        if i - G0 in (64, 128, 168, 192, 256): stamp(p, {64: 3, 128: 7, 168: 8, 192: 9, 256: 10}[i - G0], 7)
        assert p._cnt(p.lgq, need(i)) is None, i
        while scanned[0] < len(p.ins):
            x_ = p.ins[scanned[0]]; scanned[0] += 1
            if x_.kind == "lds": issued[x_.tag] = issued.get(x_.tag, 0) + 1
        ta, tb = need(i)
        assert issued.get(ta, 0) == 1 and issued.get(tb, 0) == 2, (i, ta, tb)
        sa = find("A", mb, t, i)[0]; sb = find("B", nb, t, i)[0]
        d = vr(acc(mb, nb), 4)
        c = d
        if (mb, nb) not in done: c = "0"; done.add((mb, nb))
        ra = f"a[{4*sa}:{4*sa+3}]"; rb = f"a[{4*sb}:{4*sb+3}]"
        if isV and nb < 8: p(f"v_mfma_f32_16x16x32_bf16 {d}, {ra}, {rb}, {c}")
        else: p(f"v_mfma_f32_16x16x32_bf16 {d}, {rb}, {ra}, {c}")
        if i % 2 == 1 and i + 1 < len(seq):
            p.wait(lg=need(i + 1) + need(i + 2))
        for fn in sc_.get(i, []): fn()
        for fn in vec.get(i, []): fn()
        for g2, e in enumerate(gend[:-1]):
            if i == e + DELAY:
                fifo += epis[g2]
                if ADR:
                    nxt = gend[g2 + 1] + (DELAY if g2 + 2 < len(gend) else 0)
                    rate = sum(c_ for _, c_ in fifo) / (nxt - i)
        if fifo: credit += rate
        else: credit = 0.0
        used = 4 * len(vec.get(i, []))
        while fifo and credit >= fifo[0][1] / 2:
            if TIGHT and i % 2 == 0 and used + fifo[0][1] > 8: break
            fn, c_ = fifo.pop(0); fn(); credit -= c_; used += c_
        if i % 320 == 159 and 320 < i + 1 <= 160 * 13:
            p(f"s_cbranch_scc1 L_k1_loop_{sfx}")
    stamp(p, 4, 1); stamp(p, 4, 5); stamp(p, 4, 6); stamp(p, 4, 7)
    for fn, c in fifo: fn()
    early()
    lastn = len(epis[-1]); lp = max(0, lastn - late[0])
    for n_, (fn, c) in enumerate(epis[-1]):
        if n_ == lp: late[1]()
        fn()
    return marks
```

```python
from common import *
from k3_final import tile_map
import math, struct
def f2u(x): return struct.unpack("<I", struct.pack("<f", x))[0]
HSC = os.environ.get("HSC", "sc1")
sc = " " + HSC
HMAP = os.environ.get("HMAP", "1") == "1"
EQ = os.environ.get("EQ", "1") == "1"
M16 = "v_mfma_f32_16x16x32_bf16"
S_ = [16, 32]; CB = 48; P_ = [80, 88]; QR = 96; SEL = 112
VRD = 64; VXW = 68; VXR = 71; VDMA = 116; VROT = 120; HB = 128
QA = 240; OA = 0; LA = 32; KB = 48; VB = 64; ACC = 80; WFR = 208
def r4(b, f="v"): return f"{f}[{b}:{b+3}]"
def Kf(j, f): return r4(KB + 8 * (j & 1) + 4 * f, "a")
def Vf(j, f): return r4(VB + 8 * (j & 1) + 4 * f, "a")
def qk(blk, j, zero=False):
    out = []
    for kb, q in ((0, 0), (0, 1), (1, 1), (1, 0)):
        c = "0" if zero else r4(CB + 4 * (2 * blk + q))
        out.append(f"{M16} {r4(S_[blk] + 8*q + 4*kb)}, {Kf(j, kb)}, {r4(QA + 4*(2*blk+q), 'a')}, {c}")
    return out
def pv(blk, j):
    out = []
    for q, what in ((0, 0), (0, 1), (0, "L"), (1, "L"), (1, 1), (1, 0)):
        P = r4(P_[blk] + 4 * q); qq = 2 * blk + q
        if what == "L":
            d = r4(LA + 4 * qq, "a"); out.append(f"{M16} {d}, {r4(SEL)}, {P}, {d}")
        else:
            d = r4(OA + 8 * qq + 4 * what, "a"); out.append(f"{M16} {d}, {Vf(j, what)}, {P}, {d}")
    return out
def Pb(blk, j): return P_[blk] + 16 * (j & 1)
def pv2(blk, j):
    out = []
    for q in range(2):
        qq = 2 * blk + q
        order = ((0, (0, 1)), (1, (1, 0)), ("L", (0, 1))) if q == 0 else (("L", (0, 1)), (1, (1, 0)), (0, (0, 1)))
        for what, es in order:
            for e in es:
                P = r4(Pb(blk, j + e) + 4 * q)
                if what == "L":
                    d = r4(LA + 4 * qq, "a"); out.append(f"{M16} {d}, {r4(SEL)}, {P}, {d}")
                else:
                    d = r4(OA + 8 * qq + 4 * what, "a"); out.append(f"{M16} {d}, {Vf(j + e, what)}, {P}, {d}")
    return out
def place(n, tight, stream, busy=()):
    U = [g for g in range(n) if g not in tight]
    vi = [x for x, (k, _) in enumerate(stream) if k[0] == "v"]
    lead = vi[0] if vi else 0
    lv = max([x for x in vi if stream[x][0] == "vg"], default=None)
    ntr = sum(1 for x in range(lv, len(stream)) if stream[x][0] == "s") if lv is not None else 0
    nsync = sum(1 for k, fn in stream if k == "s" and getattr(fn, "sync", False))
    gap = {}
    vg = [x for x in vi if stream[x][0] == "vg"]; vd = [x for x in vi if stream[x][0] != "vg"]
    if n >= 12:
        g0 = min(lead, 3) if vg and lead else 1
        g0 = max(g0, 1)
        span = max(n - 1 - max(ntr, 2) - g0, 1)
        taken = []
        for m, x in enumerate(vg):
            t = g0 + (m * span) / max(len(vg) - 1, 1) if len(vg) > 1 else n // 2
            cand = [g for g in U if g >= g0 and (not taken or g >= taken[-1] + (1 if len(vg) <= 6 else 0))]
            g = min(cand, key=lambda g: (abs(g - t), g))
            gap[x] = g; taken.append(g)
        U2 = [g for g in U if g not in taken and g >= max(nsync - 1, 0)] or U
        if len(vd) > 2 * len(U2): U2 = [g for g in U if g >= max(nsync - 1, 0)]
        for m, x in enumerate(vd): gap[x] = U2[(m * len(U2)) // len(vd)]
    else:
        if lead and len(U) > len(vi): U = [g for g in U if g >= min(lead, 2)] or U
        for m, x in enumerate(vi): gap[x] = U[(m * len(U)) // len(vi)]
    out = []
    used = set(busy)
    prev = -1
    for x, (k, fn) in enumerate(stream):
        if k[0] == "v":
            out.append((gap[x], fn, "v"))
            if k == "vg" or getattr(fn, "order", False): prev = max(prev, gap[x])
            continue
        nx = [gap[y] for y in range(x + 1, len(stream)) if stream[y][0] == "vg" or (getattr(fn, "sync", False) and stream[y][0][0] == "v")]
        nxt = nx or None
        hi = min(nx) if nx else n - 1
        g = prev + 1
        while g in used and g < hi: g += 1
        g = min(g, hi)
        if g <= prev: g = prev
        used.add(g)
        out.append((g, fn, "s", x))
        prev = g if g > prev else prev
        prev = g - 0
        if g < hi or nxt is None: pass
    return out
def softmax_valu(blk, j=0):
    S = S_[blk]; P = Pb(blk, j)
    e = [(f"v_exp_f32 v{S+i}, v{S+i}", 8) for i in range(16)]
    c = [(f"v_cvt_pk_bf16_f32 v{P+k}, v{S+2*k}, v{S+2*k+1}", 4) for k in range(8)]
    out = []
    for i in range(16):
        out.append(e[i])
        if i >= 2 and i % 2 == 0: out.append(c[(i - 2) // 2])
    return out[:-2] + [e[15], c[6], c[7]]

def fill16(p, mf, valu, side, tight=()):
    n = len(mf)
    ext = {i: [] for i in range(n)}
    for g_, fn, kind in side:
        assert 0 <= g_ < n, (g_, n)
        ext[g_].append((fn, kind))
    cost = []
    for i in range(n):
        c = 4 * len(ext[i])
        if ext[i] and ext[i][0][1] == "s": c -= 4
        cost.append(c)
    tot = sum(cost) + sum(c for _, c in valu)
    cum = 0; vi = 0
    for i in range(n):
        p(mf[i])
        for fn, kind in ext[i]:
            if kind == "v" and "m0," in p.ins[-1].text and getattr(fn, "dma", True): p("s_nop 0")
            fn()
        used = cost[i]; cum += cost[i]
        target = tot * (i + 1) / n
        while vi < len(valu):
            c = valu[vi][1]
            need_later = sum(max(0, 8 - cost[k]) for k in range(i + 1, n))
            left = sum(x for _, x in valu[vi:])
            if i in tight:
                if used + c > 8: break
            elif (i + 1) in tight and c == 4 and i != n - 1 and vi + 1 < len(valu) and valu[vi + 1][1] == 8:
                p(valu[vi][0]); cum += c; used += c; vi += 1
                continue
            if i == n - 1 or used < 8 or (cum + c / 2 <= target and left - c >= need_later):
                p(valu[vi][0]); cum += c; used += c; vi += 1
            else: break

def wg_of(p, nt, mt, out, t1, t2, t3):
    p(f"v_mul_u32_u24 v{out}, 43, v{nt}")
    p(f"v_lshrrev_b32 v{out}, 7, v{out}")
    p(f"v_mul_u32_u24 v{t1}, 3, v{out}")
    p(f"v_sub_u32 v{t1}, v{nt}, v{t1}")
    p(f"v_lshl_add_u32 v{out}, v{t1}, 6, v{out}")
    p(f"v_and_b32 v{t1}, 3, v{nt}")
    p(f"v_lshlrev_b32 v{t1}, 1, v{t1}")
    p(f"v_lshrrev_b32 v{t2}, 2, v{mt}")
    p(f"v_bfe_u32 v{t3}, v{nt}, 2, 1")
    p(f"v_xor_b32 v{t2}, v{t2}, v{t3}")
    p(f"v_xor_b32 v{t2}, 1, v{t2}")
    p(f"v_add3_u32 v{t1}, v{t1}, v{t2}, 64")
    p(f"v_add_u32 v{t1}, 128, v{t1}")
    p(f"v_cmp_gt_u32 vcc, 24, v{nt}")
    p("s_nop 1")
    p(f"v_cndmask_b32 v{out}, v{t1}, v{out}, vcc")
    p(f"v_lshl_add_u32 v{out}, v{mt}, 3, v{out}")
    p(f"v_lshlrev_b32 v{out}, 7, v{out}")

CT = os.environ.get("CT", "0") == "1"
def touch_addr(p):
    p("s_lshr_b32 s3, s2, 3")
    p("s_lshl_b32 s3, s3, 2")
    p("s_add_u32 s3, s3, s45")
    p("v_and_b32 v11, 3, v0")
    p("v_lshlrev_b32 v11, 5, v11")
    p("v_add_u32 v11, s3, v11")
    p("v_and_b32 v11, 127, v11")
    p("v_lshlrev_b32 v11, 7, v11")
def touch_ops(p, tag, target, vdst):
    def a():
        p("s_getpc_b64 s[74:75]")
        p.label(f"L_ct_{tag}")
        p(f"s_add_u32 s74, s74, {target}-L_ct_{tag}")
        p("s_addc_u32 s75, s75, 0")
    return [a, lambda: p.vmem(f"global_load_dword v{vdst}, v11, s[74:75]", "ct")]

def qkv_poll_addr(p, out, t):
    p("s_and_b32 s3, s2, 7")
    p("s_lshl_b32 s3, s3, 2")
    if HMAP:
        p("s_lshr_b32 s3, 0x04621753, s3")
        p("s_and_b32 s3, s3, 7")
        p("s_lshl_b32 s3, s3, 2")
    p("s_lshr_b32 s6, s2, 6")
    p("s_add_u32 s3, s3, s6")
    p("s_lshr_b32 s6, s3, 1")
    p("s_lshr_b32 s7, s3, 3")
    p("s_add_u32 s7, s7, 28")
    p(f"v_mov_b32 v{t}, s6")
    p(f"v_mov_b32 v{t+2}, s7")
    p("s_bfe_u32 s3, s2, 0x30003")
    p(f"v_mov_b32 v{t+1}, s3")
    p(f"v_and_b32 v{t+3}, 7, v0")
    p("v_cmp_gt_u32 vcc, 16, v0")
    p("s_add_u32 s6, s6, 16")
    p(f"v_mov_b32 v{t+4}, s6")
    p(f"v_cndmask_b32 v{t}, v{t}, v{t+2}, vcc")
    p(f"v_cndmask_b32 v{t+1}, v{t+1}, v{t+3}, vcc")
    p("v_cmp_gt_u32 vcc, 8, v0")
    p("s_nop 1")
    p(f"v_cndmask_b32 v{t}, v{t}, v{t+4}, vcc")
    wg_of(p, t, t + 1, out, t + 2, t + 3, t + 4)

def spin(p, tag, vdst, vaddr, srdn, soff, need, first_check=True):
    p("s_mov_b32 s70, 0x40000")
    if not first_check:
        p(f"s_branch L_{tag}_ld")
    p.label(f"L_{tag}_ck")
    p(f"v_cmp_gt_u32 vcc, {need}, v{vdst}")
    p("s_sub_u32 s70, s70, 1")
    p("s_cmp_eq_u32 s70, 0")
    p(f"s_cbranch_scc1 L_{tag}_ok")
    p("s_nop 1")
    p(f"s_cbranch_vccz L_{tag}_ok")
    p.label(f"L_{tag}_ld")
    p(f"buffer_load_dword v{vdst}, v{vaddr}, s[{srdn}:{srdn+3}], {soff} offen sc1")
    p("s_waitcnt vmcnt(0)")
    p(f"s_branch L_{tag}_ck")
    p.label(f"L_{tag}_ok")

def signal(p, tag, val, srdn, soff, t0=6, cond=None):
    p("s_cmp_lg_u32 s45, 0" if cond is None else cond)
    p(f"s_cbranch_scc1 L_{tag}_ns")
    p(f"v_mov_b32 v{t0}, {val}")
    p(f"v_mov_b32 v{t0+1}, 0")
    p("s_mov_b64 exec, 1")
    p(f"buffer_store_dword v{t0}, v{t0+1}, s[{srdn}:{srdn+3}], {soff} offen sc1")
    p("s_mov_b64 exec, -1")
    p.label(f"L_{tag}_ns")

QP_YOUNGER = int(os.environ.get('QPY', '1'))
def scalar_setup():
    p = Prog()
    p("s_and_b32 s44, s2, 7")
    p("s_lshl_b32 s44, s44, 2")
    if HMAP:
        p("s_lshr_b32 s44, 0x04621753, s44")
        p("s_and_b32 s44, s44, 7")
        p("s_lshl_b32 s44, s44, 2")
    p("s_lshr_b32 s43, s2, 3")
    p("s_lshr_b32 s3, s43, 3")
    p("s_add_u32 s44, s44, s3")
    p("s_and_b32 s43, s43, 7")
    p("s_lshl_b32 s36, s45, 12")
    p("s_mov_b32 s37, s36")
    p("s_lshl_b32 s3, s44, 18")
    p(f"s_add_u32 s3, s3, {hex(KV_OFF)}")
    srd(p, 12, 4, "s3", 262144)
    p("s_add_u32 s70, s3, s36")
    p("s_lshl_b32 s3, s44, 17")
    p("s_lshl_b32 s6, s43, 14")
    p("s_add_u32 s3, s3, s6")
    p("s_add_u32 s3, s3, s36")
    p(f"s_add_u32 s3, s3, {hex(QF_OFF)}")
    srd(p, 16, 4, "s3", 4096)
    tile_map(p, "s46", "s47")
    p("s_lshl_b32 s41, s45, 14")
    p("s_add_u32 s41, s41, 0x10000")
    p(f"s_mul_i32 s3, s45, {896*2048}")
    p("s_lshl_b32 s6, s47, 7")
    p("s_add_u32 s3, s3, s6")
    p(f"s_sub_u32 s7, 0x10000, s6")
    srd(p, 64, 60, "s3", "s7")
    p("s_mul_i32 s3, s46, 917504")
    p(f"s_mul_i32 s6, s45, {28*8192}")
    p("s_add_u32 s3, s3, s6")
    p(f"s_add_u32 s3, s3, {hex(HF_OFF)}")
    srd(p, 24, 4, "s3", 16384)
    p("s_lshl_b32 s3, s43, 2")
    p("s_add_u32 s3, s3, s45")
    p(f"s_mul_i32 s3, s3, {2*OF_ST}")
    p("s_lshl_b32 s6, s44, 11")
    p("s_add_u32 s3, s3, s6")
    p(f"s_add_u32 s3, s3, {hex(OF_OFF)}")
    srd(p, 20, 4, "s3", OF_ST + 2048)
    p(f"s_mov_b32 s50, {OF_ST}")
    p("s_mov_b32 s38, 0x4000")
    p("s_lshl_b32 s68, s45, 16")
    p("s_lshl_b32 s49, s45, 12")
    p("s_lshr_b32 s69, s46, 1")
    p("s_mov_b32 s42, 13")
    n1 = len(p.ins)
    p("s_lshl_b32 s6, s47, 7")
    p(f"s_sub_u32 s7, {D*D*2}, s6")
    srd(p, 32, 8, "s6", "s7")
    for a in range(4):
        p(f"s_add_u32 s{52+a}, s45, {a}")
        p(f"s_and_b32 s{52+a}, s{52+a}, 3")
        p(f"s_lshl_b32 s{52+a}, s{52+a}, 12")
    def groups(ins):
        out = []
        for x in ins:
            if x.text.startswith("s_addc"): out[-1].append(x.text)
            else: out.append([x.text])
        return out
    return groups(p.ins[:n1]), groups(p.ins[n1:])

def adv(p, b, step):
    return [lambda: p(f"s_add_u32 s{b}, s{b}, {hex(step)}"), lambda: p(f"s_addc_u32 s{b+1}, s{b+1}, 0")]
def w_dma_ops(p, fg):
    ops = [lambda: p(f"s_add_u32 m0, s41, {(fg & 1)*4096}")]
    ops += [lambda i=i: p.vmem(f"buffer_load_dwordx4 v{VDMA+i}, s[64:67], 0 offen offset:{1024*i} lds", f"w{fg}") for i in range(4)]
    ops += adv(p, 64, 0x10000)
    if fg & 1: ops.append(lambda: p("s_xor_b32 s41, s41, 0x2000"))
    return ops

def wd_touch_ops(p):
    def a():
        p("s_and_b32 s3, s46, 3")
        p("s_mul_i32 s3, s3, 0xc000")
        p("v_min_u32 v44, 23, v0")
        p("v_lshlrev_b32 v44, 11, v44")
    return [a, lambda: p.vmem("buffer_load_dword v45, v44, s[64:67], s3 offen", "wdt")]

def early_block(p, sfx):
    p("v_lshlrev_b32 v1, 4, v0")
    p("v_lshrrev_b32 v6, 3, v0")
    p("v_lshrrev_b32 v7, 4, v0")
    p("v_and_b32 v8, 7, v0")
    p("v_lshlrev_b32 v9, 1, v7")
    p("v_xor_b32 v8, v8, v9")
    p("v_lshlrev_b32 v8, 4, v8")
    p(f"v_lshl_add_u32 v{VDMA}, v6, 11, v8")
    for i in range(1, 4): p(f"v_add_u32 v{VDMA+i}, {hex(i*(16384-1024))}, v{VDMA}")
    p("s_mov_b32 s72, 0")
    p("s_barrier")
    if sfx == "f" and EQ:
        p.wait(vm="qp0")
        p("v_readlane_b32 s72, v47, 16")
        p("s_nop 1")
        p("s_cmp_lt_u32 s72, 2")
        p(f"s_cbranch_scc1 L_noq_{sfx}")
        for i in range(4):
            p(f"buffer_load_dwordx4 {r4(QA+4*i, 'a')}, v1, s[16:19], 0 offen offset:{1024*i}{sc}")
        p.label(f"L_noq_{sfx}")
    return []

def gen_p2():
    p = Prog()
    def run_ops(ops):
        for o in ops:
            o()
            if "m0," in p.ins[-1].text: p("s_nop 0")
    p.label("L_p2")
    def kv_dma(c):
        ops = [lambda: p("s_mov_b32 m0, s37")]
        ops += [lambda i=i: p.vmem(f"buffer_load_dwordx4 v1, s[28:31], 0 offen offset:{1024*i}{sc} lds", f"kv{c}") for i in range(4)]
        ops += adv(p, 28, 0x4000)
        ops.append(lambda: p("s_add_u32 s37, s37, 0x4000"))
        ops.append(lambda: p("s_and_b32 s37, s37, 0xffff"))
        return ops
    def w_dma(fg): return w_dma_ops(p, fg)
    def loads(tag):
        p("s_cmp_ge_u32 s72, 2")
        p(f"s_cbranch_scc1 L_hasq_{tag}")
        for i in range(4):
            p(f"buffer_load_dwordx4 {r4(QA+4*i, 'a')}, v1, s[16:19], 0 offen offset:{1024*i}{sc}")
        p.label(f"L_hasq_{tag}")
        p.vmq = []
        for f in range(2):
            p.vmem(f"buffer_load_dwordx4 {Kf(0,f)}, v1, s[12:15], 0 offen offset:{1024*f}{sc}", "q")
        run_ops(kv_dma(0))
    srd(p, 28, 4, "s70", 4096)
    p("s_mov_b32 s3, s41")
    p("v_lshrrev_b32 v6, 2, v0")
    p("v_bfe_u32 v7, v0, 3, 2")
    p("v_and_b32 v8, 3, v0")
    p("v_lshlrev_b32 v8, 3, v8")
    p("v_lshl_add_u32 v8, v6, 7, v8")
    p("v_add_u32 v8, s3, v8")
    for nb in range(4):
        p(f"v_xor_b32 v9, {nb}, v7")
        p(f"v_lshl_add_u32 v{VRD+nb}, v9, 5, v8")
    p("v_add_u32 v9, 0x20000, v1")
    for a in range(4):
        p(f"v_add_u32 v{VROT+a}, s{52+a}, v1")
        p(f"v_lshl_add_u32 v{VXR if a == 0 else VXW + a - 1}, s{52+a}, 1, v9")
    p("v_and_b32 v2, 3, v0")
    p("v_cmp_eq_u32 vcc, 0, v2")
    p("v_mov_b32 v3, 0x3f803f80")
    p("v_mov_b32 v4, v1")
    p(f"v_cndmask_b32 v{SEL}, 0, v3, vcc")
    for i in range(1, 4): p(f"v_mov_b32 v{SEL+i}, v{SEL}")
    p("v_add_u32 v5, 0x4000, v1")
    p("s_mov_b32 s51, 0xffff0000")
    p("v_min_u32 v6, 6, v0")
    p("s_mul_i32 s3, s45, 7")
    p("v_add_u32 v6, s3, v6")
    p("v_mov_b32 v7, s69")
    wg_of(p, 6, 7, 14, 8, 9, 10)
    p("s_lshl_b32 s69, s69, 10")
    p("v_and_b32 v12, 7, v0")
    p("v_bfe_u32 v13, v0, 3, 2")
    p("v_lshl_add_u32 v12, v13, 6, v12")
    p("v_lshlrev_b32 v12, 7, v12")
    zl = list(range(48)) + list(range(ACC, ACC + 128))
    Z0, Z1, Z2 = [int(x) for x in os.environ.get("ZZ", "64,40,64").split(",")]
    assert Z0 >= 0 and Z0 + Z1 + Z2 + 8 <= 176
    def zero(n):
        for _ in range(n): p(f"v_accvgpr_write_b32 a{zl.pop(0)}, 0")
    zero(Z0)
    stamp(p, 10, 5)
    p(f"s_waitcnt vmcnt({QP_YOUNGER})")
    stamp(p, 6, 5)
    p("v_cmp_gt_u32 vcc, 2, v47")
    p("s_mov_b32 s71, 0")
    p("s_nop 2")
    p("s_cbranch_vccnz L_p2_late")
    p("s_mov_b32 s71, 1")
    loads("e")
    p.label("L_p2_late")
    zero(Z1)
    p("s_cmp_eq_u32 s71, 1")
    p("s_cbranch_scc1 L_p2_w6")
    p("s_waitcnt vmcnt(0)")
    p.label("L_p2_w6")
    p("s_waitcnt vmcnt(6)")
    p("s_barrier")
    p("s_or_b32 s3, s48, s45")
    signal(p, "b3", 3, 76, "s73", cond="s_cmp_lg_u32 s3, 0")
    stamp(p, 2, 2); stamp(p, 2, 5)
    p("s_cmp_eq_u32 s71, 1")
    p("s_cbranch_scc1 L_p2_have")
    spin(p, "qkv", 47, 15, 76, "0", 2, first_check=False)
    loads("l")
    p.label("L_p2_have")
    zero(Z2)
    p.wait(vm="q")
    for blk in range(2):
        for t in qk(blk, 0, True): p(t)
    stamp(p, 8, 2); stamp(p, 8, 5)
    zero(8)
    def rowmax(q_, mreg):
        for stage in ("16", "32"):
            for qq in range(4): q_(f"v_mov_b32 v{mreg+4+qq}, v{mreg+qq}")
            q_("s_nop 0")
            for qq in range(4): q_(f"v_permlane{stage}_swap_b32 v{mreg+qq}, v{mreg+4+qq}")
            for qq in range(4): q_(f"v_max_f32 v{mreg+qq}, v{mreg+qq}, v{mreg+4+qq}")
        for qq in range(4):
            for i in range(4): q_(f"v_sub_f32 v{CB+4*qq+i}, 0, v{mreg+qq}")
    MR = 72
    for qq in range(4): p(f"v_max3_f32 v{MR+qq}, v{16+8*qq}, v{17+8*qq}, v{18+8*qq}")
    for qq in range(4): p(f"v_max3_f32 v{MR+qq}, v{MR+qq}, v{19+8*qq}, v{20+8*qq}")
    for qq in range(4): p(f"v_max3_f32 v{MR+qq}, v{MR+qq}, v{21+8*qq}, v{22+8*qq}")
    for qq in range(4): p(f"v_max_f32 v{MR+qq}, v{MR+qq}, v{23+8*qq}")
    rowmax(p, MR)
    for qq in range(2):
        for i in range(8): p(f"v_sub_f32 v{16+8*qq+i}, v{16+8*qq+i}, v{MR+qq}")
    p("s_or_b32 s3, s48, s45")
    p("s_cmp_eq_u32 s3, 0")
    p("s_cselect_b32 s3, s71, 0")
    p("s_cmp_eq_u32 s3, 1")
    p("s_cbranch_scc1 L_p2_w1")
    p.wait(vm="kv0")
    p.label("L_p2_w1")
    p("s_waitcnt vmcnt(1)")
    p("s_barrier")
    stamp(p, 3, 2); stamp(p, 3, 5)
    NC = 16; NKS = 56; KOFF = 4
    WT = os.environ.get('WT', '1') == '1'
    B0 = int(os.environ.get('B0', '1'))
    TG2 = os.environ.get('TG2', '1') == '1'
    OT = os.environ.get('OT', '0') == '1'
    def hreg(k, n): return r4(HB + 16 * (k % 4) + 4 * n)
    SL = [1, 2, 3, 0]
    GS = int(os.environ.get('GS', '2'))
    def h_loads(k):
        a = SL[k % 4]
        ops = [lambda n=n: p.vmem(f"buffer_load_dwordx4 {hreg(k, n)}, v{VROT + a}, s[24:27], 0 offen offset:{1024*n}{sc}", f"h{k}") for n in range(4)]
        if k % 4 == 3: ops += adv(p, 24, 0x4000)
        return ops
    def w_reads(pi, nb):
        ops = []
        for f in range(2):
            for e in range(2):
                b = WFR + 16 * f + 4 * nb + 2 * e
                ops.append(lambda b=b, f=f, e=e: p.lds(f"ds_read_b64_tr_b16 a[{b}:{b+1}], v{VRD+nb} offset:{f*4096 + e*2048}", f"f{pi}_{nb}"))
        return ops
    def gmf(k, ph):
        a = SL[k % 4]
        out = []
        for nb in range(4):
            for u, f in ((0, 0), (0, 1), (1, 1), (1, 0)):
                d = r4(ACC + 32 * a + 16 * u + 4 * nb, "a")
                out.append(f"{M16} {d}, {r4(WFR + 16*f + 4*nb, 'a')}, {hreg(k, 2*f + u)}, {d}")
        cut = GS if k % 2 == 0 else 16 - GS
        return out[:cut] if ph == 0 else out[cut:]
    WOFF = [0, 0x4000, 0x8000, 0x10000, 0x14000, 0x18000, 0x1c000, 0xc000]
    def wo_dma(g_):
        ops = [lambda: p(f"s_add_u32 s3, s68, {hex(g_ * 0x40000)}"), lambda: p(f"s_add_u32 m0, s49, {hex(WOFF[g_])}")]
        ops += [lambda n=n: p.vmem(f"buffer_load_dwordx4 v{VDMA+n}, s[32:35], s3 offen offset:{1024*n} lds", f"wo{g_}") for n in range(4)]
        return ops
    XT = {1: 192, 2: 128, 3: 160}
    def XW(a): return [lambda q=q: p.lds(f"ds_write_b128 v{VXW+a-1}, {r4(ACC + 32*a + 4*q, 'a')} offset:{1024*q}", f"xw{a}") for q in range(8)]
    def XR(a): return [lambda q=q: p.lds(f"ds_read_b128 {r4(XT[a] + 4*q)}, v{VXR} offset:{1024*q}", f"xr{a}") for q in range(8)]
    marks = []
    for c in range(NC):
        marks.append(p.mark())
        inloop = 1 <= c <= 13
        for i in range(4):
            j = 4 * c + i
            k = j - KOFF
            fused = 0 <= k < NKS
            if j == 56: stamp(p, 5, 3)
            if j == 60: stamp(p, 7, 3)
            for ph in range(2):
                key = (j, ph)
                fixed = []; st = []
                def SC(g_, fn): fixed.append((g_, fn, "s"))
                def V(fn): st.append(("v", fn))
                def Sx(fn):
                    fn.sync = True; st.append(("s", fn))
                def T(text): Sx(lambda: p(text))
                def dma(ops, nsc): return [("s", o) for o in ops[:nsc]] + [("vg", o) for o in ops[nsc:nsc+4]] + [("s", o) for o in ops[nsc+4:]]
                def mix(ds, vm):
                    nv = sum(1 for k_, _ in vm if k_[0] == "v")
                    per = len(ds) / max(nv, 1); done = 0; m = 0
                    for k_, o in vm:
                        if k_[0] == "v":
                            m += 1
                            while done < round(m * per - per / 2 + 0.49) and done < len(ds): V(ds[done]); done += 1
                        st.append((k_, o))
                    for o in ds[done:]: V(o)
                va = softmax_valu(ph, j)
                if ph == 0:
                    a_qk = qk(1, j); a_pv = pv2(1, j - 2) if (j % 2 == 0 and j > 0) else []
                else:
                    a_qk = qk(0, j + 1) if j < 63 else []; a_pv = pv2(0, j - 1) if j % 2 == 1 else []
                gm = gmf(k, ph) if fused else []
                mf = a_qk + a_pv + gm
                n = len(mf); nq = len(a_qk); g0 = nq + len(a_pv)
                tight = tuple(range(nq, n, 2))
                pi = k >> 2
                rdV = [lambda f=f: p.lds(f"ds_read_b128 {Vf(j,f)}, v4 offset:{i*4096 + 2048 + 1024*f}", f"v{j}") for f in range(2)]
                ds = []; vm = []
                if ph == 0:
                    kaddr, koff = ("v4", (i + 1) * 4096) if i < 3 else ("v5", 0)
                    if j < 63: ds += [lambda f=f: p.lds(f"ds_read_b128 {Kf(j+1,f)}, {kaddr} offset:{koff + 1024*f}", f"k{j+1}") for f in range(2)]
                    if j % 2 == 1: ds += rdV
                    if fused:
                        SC(g0 - 1, lambda: p.wait(vm=f"h{k}", lg=f"f{pi}_0", force=True))
                        if i == 0: ds += w_reads(pi, 2) + w_reads(pi, 3)
                        if k + 3 < NKS: vm += dma(h_loads(k + 3), 0)
                        if i == 3 and pi + 1 < 14:
                            va = [(f"v_xor_b32 v{VRD+nb}, 0x2000, v{VRD+nb}", 4) for nb in range(4)] + va
                    if j == 0:
                        va = va + [(f"v_accvgpr_write_b32 a{x}, 0", 4) for x in zl]
                        vm += dma(w_dma(0), 1)
                    if j == 1: vm += dma(w_dma(1), 1)
                    if j == 2: vm += dma(w_dma(2), 1) + dma(w_dma(3), 1)
                    if j == 3: vm += dma(h_loads(1), 0)
                    if j < 63: SC(n - 1, lambda: p.wait(lg=f"k{j+1}", force=True))
                else:
                    if j % 2 == 0: ds += rdV
                    if a_pv:
                        if nq: SC(nq - 1, lambda: p.wait(lg=f"v{j}", force=True))
                        else: p.wait(lg=f"v{j}"); p("s_nop 1")
                    if fused:
                        if i == 0:
                            SC(g0 + 7 - GS, lambda: p.wait(lg=f"f{pi}_2", force=True))
                            SC(g0 + 11 - GS, lambda: p.wait(lg=f"f{pi}_3", force=True))
                            if c <= 13: vm += dma(kv_dma(c + 2), 1)
                        if i in (1, 2) and inloop: vm += dma(w_dma(2 * (pi + 2) + i - 1), 1)
                        if i == 3 and pi + 1 < 14:
                            Sx(lambda: p.wait(vm=f"w{2*pi+3}", force=True))
                            ds += w_reads(pi + 1, 0) + w_reads(pi + 1, 1)
                    if j == 0: vm += dma(kv_dma(1), 1)
                    if j == 1:
                        vm += [("vg", lambda: p.vmem("buffer_load_dword v13, v14, s[76:79], 0 offen sc1", "hp"))] + dma(kv_dma(2), 1)
                    if j == 2:
                        p.wait(vm="hp")
                        spin(p, "hp", 13, 14, 76, "0", 3)
                        stamp(p, 9, 2); stamp(p, 9, 5)
                        vm += dma(h_loads(0), 0)
                    if j == 3:
                        ds += w_reads(0, 0) + w_reads(0, 1)
                        vm += dma(h_loads(2), 0)
                    if i == 3 and c < 15: va = [("v_mov_b32 v4, v5", 4), ("v_add_u32 v5, s38, v1", 4)] + va
                def sync(**kw):
                    Sx(lambda: p.wait(force=True, **kw)); T("s_barrier")
                if WT and key == (56, 1):
                    for t_ in ("s_and_b32 s3, s46, 3", "s_lshl_b32 s3, s3, 2", "s_add_u32 s3, s3, s45", "s_lshl_b32 s3, s3, 17"): vm.append(("s", lambda t_=t_: p(t_)))
                    va = [("v_lshlrev_b32 v6, 11, v0", 4)] + va
                    vm.append(("vg", lambda: p.vmem("buffer_load_dword v7, v6, s[32:35], s3 offen", "wt")))
                if key == (57, 0): vm += [("vg", o) for o in XW(1)[:4]]
                if key == (57, 1): vm += [("vg", o) for o in XW(1)[4:]]
                if key == (58, 0): sync(vm="w29", lg="xw1"); ds += XR(1)[:6]; vm += dma(wo_dma(0), 2)
                if key == (58, 1): ds = XR(1)[6:] + ds; vm += dma(wo_dma(1), 2)
                if key == (59, 0): vm += [("vg", o) for o in XW(2)[:4]]
                if key == (59, 1): ds += XW(2)[4:]; vm += dma(wo_dma(3), 2)
                if key == (60, 0): sync(lg="xw2"); ds += XR(2)[:6]; vm += dma(wo_dma(4), 2)
                if key == (60, 1): ds = XR(2)[6:] + ds
                if key == (61, 1): sync(lg="xr2"); vm += dma(wo_dma(2), 2)
                if key == (62, 0): vm += dma(wo_dma(5), 2)
                if key == (62, 1): vm += dma(wo_dma(6), 2)
                mix(ds, vm)
                if ph == 1:
                    if i == 2 and c <= 14:
                        kw = dict(vm=f"kv{c+1}")
                        if c == 14: kw["lg"] = "xr1"
                        SC(n - 1, lambda: p.wait(force=True, **kw)); SC(n - 1, lambda: p("s_barrier"))
                    if i == 1 and c < 15:
                        SC(4, lambda: p("s_add_u32 s38, s38, 0x4000")); SC(6, lambda: p("s_and_b32 s38, s38, 0xffff"))
                    if i == 1 and inloop: SC(8, lambda: p("s_sub_u32 s42, s42, 1"))
                if ph == 0 and i == 1 and inloop:
                    SC(4, lambda: p("s_cmp_eq_u32 s42, 1")); SC(5, lambda: p("s_cselect_b32 s66, 0, s66"))
                if ph == 1:
                    if i == 3 and inloop: SC(n - 1, lambda: p("s_cmp_lg_u32 s42, 0"))
                pl = place(n, tight, st, busy=[x[0] for x in fixed])
                side = [(g_, 0, o_, f_, k_) for o_, (g_, f_, k_) in enumerate(fixed)]
                for o_, x in enumerate(pl):
                    g_, f_, k_ = x[:3]
                    first = k_ == "s" and not any(y[0] == g_ and st[q_][0] == "vg" for q_, y in enumerate(pl[:o_]))
                    side.append((g_, 1 if first else 2, o_, f_, k_))
                side.sort(key=lambda x: x[:3])
                fill16(p, mf, va, [(x[0], x[3], x[4]) for x in side], tight)
            if i == 3 and c < 15:
                if inloop: p("s_cbranch_scc1 L_k2_loop")
                if c == 0: stamp(p, 2, 3); stamp(p, 7, 5)
    marks.append(p.mark())
    body = unify([p.ins[marks[i]:marks[i+1]] for i in range(1, 14)])
    stamp(p, 4, 2); stamp(p, 4, 3)
    p("s_mov_b32 s71, 0")
    p("s_nop 0")
    for t in pv2(1, 62): p(t)
    p.label("L_k2_out")
    def norm(blk):
        T = S_[blk]
        for q in range(2): p(f"v_accvgpr_read_b32 v{6+2*blk+q}, a{LA + 4*(2*blk+q)}")
        for i in range(16):
            p(f"v_accvgpr_read_b32 v{T+i}, a{OA + 16*blk + i}")
            if i < 2: p(f"v_rcp_f32 v{10+i}, v{6+2*blk+i}")
        for i in range(16): p(f"v_mul_f32 v{T+i}, v{T+i}, v{10 + (i>>3)}")
        for k in range(8): p(f"v_cvt_pk_bf16_f32 v{P_[blk]+k}, v{T+2*k}, v{T+2*k+1}")
    def ostore(blk):
        for u in range(2):
            so = "0" if blk == 0 else "s50"
            p.vmem(f"buffer_store_dwordx4 {r4(P_[blk] + 4*u)}, v1, s[20:23], {so} offen offset:{1024*u} sc1", "ost")
    norm(0)
    p(f"v_accvgpr_read_b32 v8, a{LA+8}")
    p(f"v_accvgpr_read_b32 v9, a{LA+12}")
    p(f"v_mov_b32 v2, {hex(f2u(2.0**30))}")
    p(f"v_mov_b32 v3, {hex(f2u(2.0**-20))}")
    p("v_add_f32 v10, v6, v7")
    p("v_add_f32 v11, v8, v9")
    p("v_add_f32 v10, v10, v11")
    p("v_min3_f32 v11, v6, v7, v8")
    p("v_min_f32 v11, v11, v9")
    p("v_cmp_nlt_f32 vcc, v10, v2")
    p("v_cmp_ngt_f32 s[6:7], v11, v3")
    p("s_cmp_lg_u32 s71, 0")
    p("s_cbranch_scc1 L_k2_safe")
    p("s_or_b64 vcc, vcc, s[6:7]")
    p("s_cbranch_vccnz L_k2_fallback")
    p.label("L_k2_safe")
    ostore(0)
    norm(1)
    ostore(1)
    stamp(p, 5, 2)
    p("s_lshl_b32 s3, s46, 2")
    p("s_add_u32 s3, s3, s45")
    p(f"s_mul_i32 s3, s3, {OF_ST}")
    p(f"s_add_u32 s3, s3, {hex(OF_OFF)}")
    srd(p, 28, 4, "s3", 65536)
    for nb in range(4): p(f"v_and_b32 v{VRD+nb}, 0xfff, v{VRD+nb}")
    for t_ in ["s_lshl_b32 s3, s46, 18", "s_lshl_b32 s6, s45, 16", "s_add_u32 s3, s3, s6", "s_lshl_b32 s6, s47, 7", "s_add_u32 s3, s3, s6", "s_sub_u32 s7, 0x10000, s6"]: p(t_)
    srd(p, 20, 10, "s3", "s7")
    srd(p, 24, 62, "s3", "s7")
    p("s_mul_i32 s6, s45, 4608")
    p("s_add_u32 s6, s6, 0x20000")
    for t_ in ["v_lshrrev_b32 v2, 3, v0", "v_and_b32 v4, 7, v0", "v_lshlrev_b32 v3, 4, v4", "v_lshl_add_u32 v3, v2, 11, v3",
               "v_and_b32 v10, 15, v0", "v_mul_u32_u24 v10, 144, v10", "v_lshrrev_b32 v11, 4, v0", "v_lshl_add_u32 v10, v11, 3, v10", "v_add_u32 v10, s6, v10",
               "v_mul_u32_u24 v11, 144, v2", "v_lshl_add_u32 v11, v4, 4, v11", "v_add_u32 v11, s6, v11"]: p(t_)
    for i in range(1, 4): p(f"s_mov_b32 s{60+i}, {hex(i*8*2048)}")
    XRr = 96; XD = 80; XU = 160; G = 128; Y = 224; A3 = 16; WF = 192; OB = 112; DEP = int(os.environ.get('DEP', '12'))
    for i in range(4):
        so = "0" if i == 0 else f"s{60+i}"
        p.vmem(f"buffer_load_dwordx4 {r4(XRr+4*i)}, v3, s[20:23], {so} offen", "x")
    va_ = [f"v_accvgpr_read_b32 v{Y+i}, a{ACC+i}" for i in range(32)]
    for a in (1, 2):
        va_ += [f"v_pk_add_f32 v[{Y+i}:{Y+i+1}], v[{Y+i}:{Y+i+1}], v[{XT[a]+i}:{XT[a]+i+1}]" for i in range(0, 32, 2)]
    xw3 = XW(3)
    for n_, t_ in enumerate(va_):
        if n_ % 8 == 0: xw3[n_ // 8]()
        p(t_)
    p.wait(vm="ost", lg="xw3")
    p("s_barrier")
    signal(p, "c4", 4, 76, "s73")
    stamp(p, 7, 2)
    for o in XR(3): o()
    run_ops(wo_dma(7))
    p.wait(lg="xr3")
    for i in range(0, 32, 2): p(f"v_pk_add_f32 v[{Y+i}:{Y+i+1}], v[{Y+i}:{Y+i+1}], v[{XT[3]+i}:{XT[3]+i+1}]")
    for i in range(0, 32, 2): p(f"v_pk_mul_f32 v[{G+i}:{G+i+1}], v[{Y+i}:{Y+i+1}], s[58:59]")
    for i in range(32): p(f"v_exp_f32 v{G+i}, v{G+i}")
    WF3 = [192, 208, 48]
    def wreads3(h):
        g_ = h >> 2
        off = (WOFF[g_] & 0xffff) + (h & 3) * 4096
        ops = []
        for nb in range(4):
            for e in range(2):
                b = WF3[h % 3] + 4 * nb + 2 * e
                ops.append(lambda b=b, nb=nb, e=e: p.lds(f"ds_read_b64_tr_b16 v[{b}:{b+1}], v{VRD+nb} offset:{off + e*2048}", f"w3_{h}_{nb}"))
        return ops
    for o in wreads3(0) + wreads3(1): o()
    p("s_mov_b32 s39, 0")
    if OT:
        p("s_and_b32 s3, s47, 7")
        p("s_lshl_b32 s3, s3, 7")
        p("v_lshlrev_b32 v8, 10, v0")
        p("v_add_u32 v8, s3, v8")
        p("v_bfrev_b32 v9, 1")
        p("v_cmp_gt_u32 vcc, 16, v0")
        p("s_movk_i32 s40, 0x4000")
        p("s_nop 0")
        p("v_cndmask_b32 v8, v9, v8, vcc")
    def otouch():
        p.vmem("buffer_load_dword v9, v8, s[28:31], s40 offen sc1", "ot")
        p("s_add_u32 s40, s40, 0x4000")
    p("s_cmp_lg_u32 s45, 0")
    p("s_cbranch_scc1 L_c_ok")
    spin(p, "c", 13, 12, 76, "s69", 4, first_check=False)
    p.wait(vm=["wo7", "x"])
    p("s_barrier")
    stamp(p, 9, 3)
    def oload(k):
        if k % 4 == 0 and k > 0: p("s_add_u32 s39, s39, 0x1000")
        p.vmem(f"buffer_load_dwordx4 {r4(OB + 4*(k % 32), 'a')}, v1, s[28:31], s39 offen offset:{1024*(k%4)} sc1", f"o{k}")
    OTP = []
    pre = [lambda i=i: p.lds(f"ds_write_b128 v11, {r4(XRr+4*i)} offset:{i*8*144}", "xs") for i in range(4)]
    pre += [lambda i=i: p(f"v_pk_add_f32 v[{G+i}:{G+i+1}], v[{G+i}:{G+i+1}], 1.0 op_sel_hi:[1,0]") for i in range(0, 32, 2)]
    pre += [lambda: p.wait(lg="xs")]
    pre += [lambda q=q: p.lds(f"ds_read_b64 v[{XD+2*q}:{XD+2*q+1}], v10 offset:{(q>>2)*16*144 + 32*(q&3)}", "xd") for q in range(8)]
    pre += [lambda i=i: p(f"v_rcp_f32 v{G+i}, v{G+i}") for i in range(32)]
    pre += [lambda i=i: p(f"v_pk_mul_f32 v[{G+i}:{G+i+1}], v[{G+i}:{G+i+1}], v[{Y+i}:{Y+i+1}]") for i in range(0, 32, 2)]
    pre += [lambda: p.wait(lg="xd")]
    for k in range(16):
        pre.append(lambda k=k: p(f"v_lshlrev_b32 v{XU+2*k}, 16, v{XD+k}"))
        pre.append(lambda k=k: p(f"v_and_b32 v{XU+2*k+1}, s51, v{XD+k}"))
    ILV = os.environ.get("ILV", "1") == "1"
    n0 = 3 if ILV else DEP
    for k in range(n0): oload(k)
    per = -(-len(pre) // (DEP - n0 + 1))
    kk = n0
    for n_, o in enumerate(pre):
        o()
        if n_ % per == per - 1 and kk < DEP: oload(kk); kk += 1
    while kk < DEP: oload(kk); kk += 1
    for h in range(32):
        wr = wreads3(h + 2) if h + 2 < 32 else []
        if h + 2 in (12, 28):
            for nb in range(4): p(f"v_xor_b32 v{VRD+nb}, 0x10000, v{VRD+nb}")
        m = 0
        for u in range(2):
            k = 2 * h + u
            for nb in (range(4) if u == 0 else range(3, -1, -1)):
                p.wait(vm=f"o{k}", lg=f"w3_{h}_3")
                d = r4(A3 + 16 * u + 4 * nb)
                p(f"{M16} {d}, {r4(WF3[h % 3] + 4*nb)}, {r4(OB + 4*(k % 32), 'a')}, {'0' if h == 0 else d}")
                if m % 4 == 1 and k + DEP < 64: oload(k + DEP)
                if m % 4 == 3 and OT and k + DEP in OTP: otouch()
                if wr: wr[m]()
                m += 1
    stamp(p, 10, 2); stamp(p, 10, 3)
    p("s_nop 7")
    T = 80
    for u in range(2):
        Sx = A3 + 16 * u
        for i in range(0, 16, 2):
            p(f"v_pk_fma_f32 v[{Sx+i}:{Sx+i+1}], v[{Sx+i}:{Sx+i+1}], v[{G+16*u+i}:{G+16*u+i+1}], v[{XU+16*u+i}:{XU+16*u+i+1}]")
        for nb in range(4):
            r = T + 8 * u + 2 * nb
            p(f"v_cvt_pk_bf16_f32 v{r}, v{Sx+4*nb}, v{Sx+4*nb+1}")
            p(f"v_cvt_pk_bf16_f32 v{r+1}, v{Sx+4*nb+2}, v{Sx+4*nb+3}")
            p.lds(f"ds_write_b64 v10, v[{r}:{r+1}] offset:{u*16*144 + 32*nb}", "tw")
    p.wait(lg="tw")
    for i in range(4):
        p.lds(f"ds_read_b128 {r4(XRr+4*i)}, v11 offset:{i*8*144}", f"tr{i}")
    for i in range(4):
        p.wait(lg=f"tr{i}")
        so = "0" if i == 0 else f"s{60+i}"
        p.vmem(f"buffer_store_dwordx4 {r4(XRr+4*i)}, v3, s[24:27], {so} offen {os.environ.get('OPOL', 'sc1')}", "st")
    if STAMP:
        p("s_waitcnt vmcnt(0)")
        stamp(p, 6, 2); stamp(p, 6, 3)
        p("s_memrealtime s[78:79]")
        p("s_waitcnt lgkmcnt(0)")
        stamp_out(p, 11, 2, 4, "s45", extra=[78])
    p("s_endpgm")
    fb = Prog()
    fb.label("L_k2_fallback")
    fb("s_waitcnt vmcnt(0) lgkmcnt(0)")
    for qq in range(4): fb(f"v_mov_b32 v{MR+qq}, 0xff800000")
    fb("s_mov_b32 s36, 0")
    fb.label("L_k2_fb1")
    for f in range(2):
        fb(f"buffer_load_dwordx4 {Kf(0,f)}, v1, s[12:15], s36 offen offset:{1024*f}{sc}")
    fb("s_waitcnt vmcnt(0)")
    for blk in range(2):
        for t in qk(blk, 0, True): fb(t)
    fb("s_nop 15")
    for i in range(0, 8, 2):
        for qq in range(4): fb(f"v_max3_f32 v{MR+qq}, v{MR+qq}, v{16+8*qq+i}, v{17+8*qq+i}")
    fb("s_add_u32 s36, s36, 0x1000")
    fb("s_cmp_lt_u32 s36, 0x40000")
    fb("s_cbranch_scc1 L_k2_fb1")
    rowmax(fb, MR)
    for i in range(0, 48): fb(f"v_accvgpr_write_b32 a{i}, 0")
    fb("s_mov_b32 s36, 0")
    fb.label("L_k2_fb2")
    for f in range(2):
        fb(f"buffer_load_dwordx4 {Kf(0,f)}, v1, s[12:15], s36 offen offset:{1024*f}{sc}")
        fb(f"buffer_load_dwordx4 {Vf(0,f)}, v1, s[12:15], s36 offen offset:{2048+1024*f}{sc}")
    fb("s_waitcnt vmcnt(0)")
    for blk in range(2):
        for t in qk(blk, 0): fb(t)
    fb("s_nop 15")
    for blk in range(2):
        for t, _ in softmax_valu(blk): fb(t)
    fb("s_nop 1")
    for blk in range(2):
        for t in pv(blk, 0): fb(t)
    fb("s_add_u32 s36, s36, 0x1000")
    fb("s_cmp_lt_u32 s36, 0x40000")
    fb("s_nop 15")
    fb("s_cbranch_scc1 L_k2_fb2")
    fb("s_mov_b32 s71, 1")
    fb("s_branch L_k2_out")
    final = Prog()
    final.ins = p.ins[:marks[1]] + [Ins(".p2align 6", "dir"), Ins("L_k2_loop:", "label")] + body + p.ins[marks[14]:] + fb.ins
    final.label("L_k2_end")
    final("s_endpgm")
    lins = [[x.text for x in p.ins], [x.text for x in fb.ins] + [x.text for x in fb.ins]]
    return dict(prog=final, lins=lins)
```
